```python
import torch

def _softmax(x, axis=-1):
    return torch.softmax(x, dim=axis)
def _gelu(x):
    return torch.nn.functional.gelu(x, approximate="tanh")
def _silu(x):
    return torch.nn.functional.silu(x)
def _sigmoid(x):
    return torch.sigmoid(x)
def _layernorm(x, axis=-1, eps=1e-5):
    m = x.mean(dim=axis, keepdim=True)
    v = x.var(dim=axis, keepdim=True, unbiased=False)
    return (x - m) / torch.sqrt(v + eps)
def _scatter_add(tgt, idx, src, axis=0):
    return tgt.clone().index_add_(axis, idx, src)
def _segment_sum(src, seg, n):
    out = torch.zeros((n,) + src.shape[1:], dtype=src.dtype)
    return out.index_add_(0, seg, src)
def _pad(x, pw):
    flat = tuple(v for pair in reversed(pw) for v in pair)
    return torch.nn.functional.pad(x, flat)

kernel_name = 'concat_heads__compressed_kv_cla__compressed_kv_cla__decode'

def setup_inputs():

    _w = (lambda a: (lambda t: t.to(torch.bfloat16) if t.is_floating_point() else t)(torch.as_tensor(a)))
    def _A_setup():
        B, H, Sq, Sk, D, M = 1, 32, 1, 4096, 128, 640
        Dc = 4 * D
        return {
            "x": _w((lambda *s: torch.randn(*s, dtype=torch.bfloat16) * 3.2)(B, Sq, M)),
            "c_kv": _w((lambda *s: torch.randn(*s, dtype=torch.bfloat16) * 0.05)(B, Sk, Dc)),
            "w_q": _w((lambda *s: torch.randn(*s, dtype=torch.bfloat16) * 3.2)(M, H, D) * (M ** -0.5)),
            "w_uk": _w((lambda *s: torch.randn(*s, dtype=torch.bfloat16) * 3.2)(Dc, H, D) * (Dc ** -0.5)),
            "w_uv": _w((lambda *s: torch.randn(*s, dtype=torch.bfloat16) * 0.05)(Dc, H, D) * (Dc ** -0.5)),
            "w_o": _w((lambda *s: torch.randn(*s, dtype=torch.bfloat16) * 0.05)(H, D, M) * ((H * D) ** -0.5)),
        }
    _A_in = _A_setup()

    def _B_setup():
        B, H, Sq, Sk, D, M = 1, 32, 1, 4096, 128, 640
        Dc = 4 * D
        return {
            "x": _w((lambda *s: torch.randn(*s, dtype=torch.bfloat16) * 3.2)(B, Sq, M)),
            "c_kv": _w((lambda *s: torch.randn(*s, dtype=torch.bfloat16) * 0.05)(B, Sk, Dc)),
            "w_q": _w((lambda *s: torch.randn(*s, dtype=torch.bfloat16) * 3.2)(M, H, D) * (M ** -0.5)),
            "w_uk": _w((lambda *s: torch.randn(*s, dtype=torch.bfloat16) * 3.2)(Dc, H, D) * (Dc ** -0.5)),
            "w_uv": _w((lambda *s: torch.randn(*s, dtype=torch.bfloat16) * 0.05)(Dc, H, D) * (Dc ** -0.5)),
            "w_o": _w((lambda *s: torch.randn(*s, dtype=torch.bfloat16) * 0.05)(H, D, M) * ((H * D) ** -0.5)),
        }
    _B_in = _B_setup()

    return {
        "A_x": _A_in["x"],
        "A_c_kv": _A_in["c_kv"],
        "A_w_q": _A_in["w_q"],
        "A_w_uk": _A_in["w_uk"],
        "A_w_uv": _A_in["w_uv"],
        "A_w_o": _A_in["w_o"],
        "B_x": _B_in["x"],
        "B_c_kv": _B_in["c_kv"],
        "B_w_q": _B_in["w_q"],
        "B_w_uk": _B_in["w_uk"],
        "B_w_uv": _B_in["w_uv"],
        "B_w_o": _B_in["w_o"],
    }

def reference(A_x, A_c_kv, A_w_q, A_w_uk, A_w_uv, A_w_o, B_x, B_c_kv, B_w_q, B_w_uk, B_w_uv, B_w_o):
    def _A_ref(x, c_kv, w_q, w_uk, w_uv, w_o):
        B, Sq, M = x.shape[0], x.shape[1], x.shape[2]
        Sk = c_kv.shape[1]
        H, D = w_q.shape[1], w_q.shape[2]
        q = torch.einsum("bqm,mhd->bhqd", x, w_q)
        k = torch.einsum("bkc,chd->bhkd", c_kv, w_uk)
        v = torch.einsum("bkc,chd->bhkd", c_kv, w_uv)
        scores = torch.einsum("bhqd,bhkd->bhqk", q, k) * (D ** -0.5)
        off = Sk - Sq
        qi = torch.arange(Sq)[:, None]
        kj = torch.arange(Sk)[None, :]
        cmask = kj <= (qi + off)
        scores = torch.where(cmask[None, None], scores, -1e9)
        p = _softmax(scores, axis=-1)
        ctx = torch.einsum("bhqk,bhkd->bhqd", p, v)
        return torch.einsum("bhqd,hdm->bqm", ctx, w_o)

    def _B_ref(x, c_kv, w_q, w_uk, w_uv, w_o):
        B, Sq, M = x.shape[0], x.shape[1], x.shape[2]
        Sk = c_kv.shape[1]
        H, D = w_q.shape[1], w_q.shape[2]
        q = torch.einsum("bqm,mhd->bhqd", x, w_q)
        k = torch.einsum("bkc,chd->bhkd", c_kv, w_uk)
        v = torch.einsum("bkc,chd->bhkd", c_kv, w_uv)
        scores = torch.einsum("bhqd,bhkd->bhqk", q, k) * (D ** -0.5)
        off = Sk - Sq
        qi = torch.arange(Sq)[:, None]
        kj = torch.arange(Sk)[None, :]
        cmask = kj <= (qi + off)
        scores = torch.where(cmask[None, None], scores, -1e9)
        p = _softmax(scores, axis=-1)
        ctx = torch.einsum("bhqk,bhkd->bhqd", p, v)
        return torch.einsum("bhqd,hdm->bqm", ctx, w_o)

    a = _A_ref(A_x, A_c_kv, A_w_q, A_w_uk, A_w_uv, A_w_o)
    b = _B_ref(B_x, B_c_kv, B_w_q, B_w_uk, B_w_uv, B_w_o)
    return torch.concatenate([a, b], axis=-1)
```

```python
import re
REG = re.compile(r"\b([vas])(\d+)\b|\b([vas])\[(\d+):(\d+)\]|\b(vcc|exec|m0|vcc_lo|vcc_hi|exec_lo|exec_hi)\b")
def regs(txt):
    out = set()
    for m in REG.finditer(txt):
        if m.group(1): out.add(m.group(1) + m.group(2))
        elif m.group(3):
            for k in range(int(m.group(4)), int(m.group(5)) + 1): out.add(m.group(3) + str(k))
        else:
            n = m.group(6)
            out.add(n.split("_")[0])
    return out
TRANS = ("v_exp_", "v_log_", "v_rcp_", "v_rsq_", "v_sqrt_", "v_sin_", "v_cos_")
class I:
    def __init__(s, txt):
        s.txt = txt
        t = txt.split(";")[0].strip()
        s.label = t[:-1] if t.endswith(":") else None
        s.dirv = t.startswith(".") and not s.label
        s.op = "" if (s.label or s.dirv or not t) else t.split()[0]
        ops = t[len(s.op):].strip() if s.op else ""
        parts = [p.strip() for p in re.split(r",(?![^\[]*\])", ops)] if ops else []
        op = s.op
        s.mfma = op.startswith("v_mfma")
        s.valu = op.startswith("v_") and not s.mfma
        s.ds = op.startswith("ds_")
        s.vmem = op.startswith(("buffer_", "global_"))
        s.salu = op.startswith("s_")
        s.trans = op.startswith(TRANS)
        s.dpp = "_dpp" in op or " row_" in t or "quad_perm" in t
        s.permlane = op.startswith("v_permlane")
        s.readlane = op.startswith(("v_readlane", "v_readfirstlane"))
        s.dot = op.startswith("v_dot")
        s.w = set(); s.r = set(); s.srcc = set(); s.ab = set(); s.stdata = set()
        s.states = 1
        if op == "s_nop": s.states = int(parts[0], 0) + 1
        if not op: s.states = 0
        if s.mfma:
            s.w = regs(parts[0]); s.ab = regs(parts[1]) | regs(parts[2]); s.srcc = regs(parts[3]); s.r = s.ab | s.srcc
        elif s.valu:
            s.w = regs(parts[0]); s.r = set().union(*[regs(p) for p in parts[1:]]) if len(parts) > 1 else set()
            if op.startswith(("v_fmac", "v_dot2c", "v_permlane")) or (s.dpp and "bank_mask:0xf" not in t): s.r |= s.w
            if s.permlane: s.w |= regs(parts[1])
            if "_co_" in op: s.w |= regs(parts[1])
            if op.startswith("v_cndmask") and len(parts) == 3: s.r.add("vcc")
            if op.startswith("v_cmpx"): s.w.add("exec")
        elif s.ds:
            if op.startswith(("ds_read", "ds_bpermute", "ds_permute", "ds_swizzle")) or "_rtn" in op:
                s.w = regs(parts[0]); s.r = set().union(*[regs(p) for p in parts[1:]])
            else:
                s.r = set().union(*[regs(p) for p in parts])
        elif s.vmem:
            lds = t.endswith(" lds") or " lds " in t
            if "load" in op and not lds:
                s.w = regs(parts[0]); s.r = set().union(*[regs(p) for p in parts[1:]])
            else:
                s.r = set().union(*[regs(p) for p in parts])
                if ("store" in op) and ("x3" in op or "x4" in op):
                    s.stdata = regs(parts[0]) if op.startswith("buffer") else regs(parts[1])
            if lds: s.r.add("m0")
            s.lds = lds
        elif s.salu and parts:
            if op.startswith(("s_cmp", "s_cbranch", "s_branch", "s_waitcnt", "s_nop", "s_sleep", "s_setprio", "s_barrier", "s_bitcmp", "s_endpgm")):
                s.r = set().union(*[regs(p) for p in parts])
            else:
                s.w = regs(parts[0]); s.r = set().union(*[regs(p) for p in parts[1:]]) if len(parts) > 1 else set()
        s.target = parts[0] if op.startswith(("s_cbranch", "s_branch")) else None
        s.nofall = op in ("s_branch", "s_endpgm")
def vg(x): return {r for r in x if r[0] in "va" and r not in ("vcc",)}
def sg(x): return {r for r in x if r[0] == "s" or r == "vcc"}
def need(p, c):
    n = 0
    if p.valu:
        pw = vg(p.w)
        if c.mfma and pw & c.r: n = max(n, 3 if p.dot else 2)
        if c.valu and c.dpp and pw & c.r: n = max(n, 2)
        if c.permlane and pw & (c.r | c.w): n = max(n, 2)
        if c.readlane and pw & c.r: n = max(n, 1)
        if p.trans and c.valu and not c.trans and pw & c.r: n = max(n, 1)
        if p.trans and (c.ds or c.vmem) and pw & c.r: n = max(n, 1)
        if p.dot and pw & (c.r | c.w) and not (c.op == p.op): n = max(n, 3)
        ps = sg(p.w)
        if ps:
            if c.valu and ps & c.r: n = max(n, 4 if c.readlane else 2)
            if c.vmem and ps & c.r: n = max(n, 5)
            if c.salu and ps & c.r: n = max(n, 1)
        if "exec" in p.w and (c.dpp or c.mfma or c.readlane or c.permlane): n = max(n, 5)
    if p.mfma:
        passes = 8 if "32x32" in p.op else 4
        d = p.w
        if c.mfma:
            if d & c.ab: n = max(n, {4: 8, 8: 12}[passes])
            if d & c.srcc and not (d == c.srcc and p.op == c.op): n = max(n, {4: 6, 8: 10}[passes])
            if d & c.w and not (d == c.srcc): n = max(n, {4: 8, 8: 12}[passes])
        elif (c.valu or c.ds or c.vmem) and d & (c.r | c.w): n = max(n, {4: 8, 8: 12}[passes])
        if c.valu and vg(p.srcc) & c.w: n = max(n, {4: 3, 8: 7}[passes])
    if p.salu and "m0" in p.w and c.vmem and getattr(c, "lds", False): n = max(n, 1)
    if p.stdata and p.stdata & c.w: n = max(n, 2)
    return n
def fix(lines, maxd=14):
    ins = [I(l) for l in lines]
    changed = True
    total = 0
    while changed:
        changed = False
        lab = {x.label: i for i, x in enumerate(ins) if x.label}
        src = {}
        for i, x in enumerate(ins):
            if x.target in lab: src.setdefault(lab[x.target], []).append(i)
        for i, c in enumerate(ins):
            if not c.op or c.op == "s_nop": continue
            worst = 0
            stack = [(i, 0)]; seen = set()
            while stack:
                j, dist = stack.pop()
                preds = []
                if j > 0 and not ins[j - 1].nofall: preds.append(j - 1)
                if ins[j].label: preds += src.get(j, [])
                for k in preds:
                    p = ins[k]
                    if p.op:
                        worst = max(worst, need(p, c) - dist)
                    nd = dist + p.states
                    if nd < maxd and (k, nd) not in seen:
                        seen.add((k, nd)); stack.append((k, nd))
            if worst > 0:
                ins.insert(i, I(f"s_nop {worst-1}"))
                total += 1
                changed = True
                break
    return [x.txt for x in ins], total
```

```python
import sys, argparse
sys.path.insert(0, "gen")
import hz
NAME = "concat_heads__compressed_kv_cla__compressed_kv_cla__decode"
HDR = open("cdna_kernels/%s.s.ref" % NAME).read().split("; Override launch")[0]

QA = 0x0
ST = 0x20000
OC = 0x40000
OB = 0x100000
WS_END = 0x300000
PITCH = 1056
L_KV = 0
L_QI = 128 * PITCH
L_MISC = L_QI + 16 * PITCH
L_FLAG = L_MISC
L_QACC = L_MISC + 256
L_CXACC = L_MISC + 512
L_CC = L_MISC + 768
L_MX = L_MISC + 1792
L_P = L_MISC + 2816
L_END = L_P + 4096
L_OUTP = 0
ZERO_BYTES = 1792
F_PISS, F_KISS, F_CCF = 0, 4, 8
F_Q, F_INV, F_KV, F_QI, F_MX, F_P, F_CX, F_OP, F_ARM, F_CPUB = 12, 13, 14, 15, 16, 17, 18, 19, 20, 21
SCALE = 0x3e0293ee

class G:
    def __init__(s, opt):
        s.L = []; s.o = opt; s.vm = []; s.nlab = 0; s.nst = 0
    def A(s, t): s.L.append(t)
    def lab(s, p):
        s.nlab += 1
        return f"L_{p}_{s.nlab}"
    def vmi(s, tag): s.vm.append(tag)
    def vmwait(s, tag):
        if tag not in s.vm: return
        k = len(s.vm) - 1 - max(i for i, t in enumerate(s.vm) if t == tag)
        s.A(f"s_waitcnt vmcnt({k})")
        s.vm = s.vm[len(s.vm) - k:]
    def vmlimit(s, k):
        if len(s.vm) > k:
            s.A(f"s_waitcnt vmcnt({k})"); s.vm = s.vm[len(s.vm) - k:]
    def stamp(s, i):
        if s.o.stamps: s.A(f"s_memrealtime s[{64+2*i}:{65+2*i}]")
    def setflag(s, idx, add=False, dyn=None):
        s.A("s_mov_b64 exec, 1")
        a = dyn or "v2"
        s.A(f"{'ds_add_u32' if add else 'ds_write_b32'} {a}, v3 offset:{4*idx}")
        s.A("s_mov_b64 exec, -1")
    def spin(s, idx, val, dyn=None, sleep=0, extra=None, tmp="v4"):
        l = s.lab("spin"); d = s.lab("spun")
        s.A("s_mov_b32 s33, 0x100000")
        s.A(f"{l}:")
        s.A(f"ds_read_b32 {tmp}, {dyn or 'v2'} offset:{4*idx}")
        if extra: extra()
        s.A("s_waitcnt lgkmcnt(0)")
        s.A(f"v_cmp_ne_u32 vcc, {val}, {tmp}")
        s.A(f"s_cbranch_vccz {d}")
        if sleep: s.A(f"s_sleep {sleep}")
        s.A("s_sub_u32 s33, s33, 1")
        s.A(f"s_cbranch_scc0 {l}")
        s.A(f"{d}:")
    def srd(s, d, base, off_sreg, size):
        s.A(f"s_add_u32 s{d}, s{base}, {off_sreg}")
        s.A(f"s_addc_u32 s{d+1}, s{base+1}, 0")
        s.A(f"s_sub_u32 s{d+2}, {size}, {off_sreg}")
        s.A(f"s_mov_b32 s{d+3}, 0x20000")
    def selectors(s, sel, tmp):
        A = s.A
        A(f"v_and_b32 v{tmp}, 1, v1")
        A(f"v_cmp_eq_u32 vcc, 1, v{tmp}")
        A(f"v_mov_b32 v{tmp+1}, 0x0c0c0100"); A(f"v_mov_b32 v{tmp+2}, 0x01000c0c")
        A(f"v_cndmask_b32 v{tmp+1}, v{tmp+1}, v{tmp+2}, vcc")
        A(f"v_mov_b32 v{tmp+2}, 0x0c0c0302"); A(f"v_mov_b32 v{tmp+3}, 0x03020c0c")
        A(f"v_cndmask_b32 v{tmp+2}, v{tmp+2}, v{tmp+3}, vcc")
        A(f"v_mov_b32 v{tmp+3}, 0x0c0c0c0c")
        A(f"v_bfe_u32 v{tmp}, v1, 1, 2")
        for r in range(4):
            A(f"v_cmp_eq_u32 vcc, {r}, v{tmp}")
            A(f"v_cndmask_b32 v{sel+r}, v{tmp+3}, v{tmp+1}, vcc")
            A(f"v_cndmask_b32 v{sel+4+r}, v{tmp+3}, v{tmp+2}, vcc")
    def frag(s, dst, src, par, sel):
        for r in range(4): s.A(f"v_perm_b32 v{dst+r}, v{src}, v{src}, v{sel+4*par+r}")

def gen(o):
    g = G(o); A = g.A
    LD = o.ld
    g.stamp(0)
    A("s_cmp_ge_u32 s2, 256"); A("s_cbranch_scc1 L_end")
    A("s_bfe_u32 s4, s2, 0x10002")
    A("s_mul_i32 s3, s4, 48")
    A("s_add_u32 s34, s0, s3"); A("s_addc_u32 s35, s1, 0")
    A("s_load_dwordx4 s[8:11], s[34:35], 0")
    A("s_load_dwordx4 s[12:15], s[34:35], 16")
    A("s_load_dwordx4 s[16:19], s[34:35], 32")
    A("s_load_dwordx4 s[20:23], s[0:1], 96")
    A("s_load_dwordx2 s[24:25], s[0:1], 112")
    A("v_lshrrev_b32 v4, 6, v0")
    A("v_and_b32 v1, 63, v0")
    A("v_readfirstlane_b32 s31, v4")
    A("s_and_b32 s5, s2, 3"); A("s_lshr_b32 s6, s2, 3"); A("s_lshr_b32 s7, s6, 3"); A("s_and_b32 s26, s6, 7")
    A("s_lshl_b32 s27, s5, 3"); A("s_add_u32 s27, s27, s26")
    A("s_lshl_b32 s28, s7, 3"); A("s_lshl_b32 s3, s5, 1"); A("s_add_u32 s28, s28, s3")
    A("s_lshr_b32 s3, s26, 2"); A("s_add_u32 s28, s28, s3")
    A("s_bfe_u32 s29, s26, 0x10001"); A("s_and_b32 s30, s26, 1")
    A("s_lshl_b32 s32, s5, 5"); A("s_add_u32 s32, s32, s6")
    A(f"v_mov_b32 v2, {L_FLAG}"); A("v_mov_b32 v3, 1")
    A("v_lshrrev_b32 v5, 3, v1")
    A("v_and_b32 v6, 7, v1")
    A("s_cmp_ge_u32 s31, 4"); A("s_cbranch_scc1 L_T")
    SEL = 8; XV = 16; FR = 28; ACC = 36; WQ = 100; UK = 180; UV = 212; WO = 100
    vWQ, vX, vUK, vWO, vFW, vQA = 40, 41, 42, 43, 44, 45
    A("s_lshl_b32 s3, s31, 3"); A(f"v_add_u32 v{vX}, s3, v5"); A(f"v_mul_u32_u24 v{vX}, 20, v{vX}")
    A(f"v_lshlrev_b32 v{vWQ}, 12, v{vX}"); A(f"v_lshl_add_u32 v{vWQ}, v6, 4, v{vWQ}")
    A(f"v_lshlrev_b32 v{vUK}, 16, v5"); A(f"v_lshl_add_u32 v{vUK}, v6, 4, v{vUK}")
    A("s_lshl_b32 s36, s28, 8"); A("s_lshl_b32 s3, s29, 7"); A("s_add_u32 s36, s36, s3")
    A("s_mul_i32 s37, s30, 640"); A("s_sub_u32 s38, 640, s37")
    A("s_lshl_b32 s39, s37, 12"); A("s_lshl_b32 s60, s38, 12")
    A("s_lshl_b32 s3, s30, 2"); A("s_add_u32 s3, s3, s31"); A("s_lshl_b32 s3, s3, 19"); A("s_add_u32 s61, s36, s3")
    A("s_waitcnt lgkmcnt(0)")
    g.stamp(1)
    A("s_mov_b32 s40, s8"); A("s_mov_b32 s41, s9"); A("s_mov_b32 s42, 1280"); A("s_mov_b32 s43, 0x20000")
    g.srd(44, 12, "s36", 5242880)
    for hf in range(2):
        A(f"buffer_load_dwordx4 v[{XV+6*hf}:{XV+6*hf+3}], v{vX}, s[40:43], s{37+hf} offen"); g.vmi("x")
        A(f"buffer_load_dword v{XV+6*hf+4}, v{vX}, s[40:43], s{37+hf} offen offset:16"); g.vmi("x")
    g.srd(48, 14, "s61", 4194304)
    seq = [("wq", n) for n in range(20)] + [("uk", n) for n in range(8)]
    pos = [0]
    def issue_p():
        if pos[0] >= len(seq): return
        k, n = seq[pos[0]]; pos[0] += 1
        if k == "wq":
            so = "s39" if n < 10 else "s60"
            A(f"buffer_load_dwordx4 v[{WQ+4*n}:{WQ+4*n+3}], v{vWQ}, s[44:47], {so} offen {LD}")
            A(f"s_add_u32 {so}, {so}, 8192")
        else:
            if n == 0: A("s_mov_b32 s39, 0")
            A(f"buffer_load_dwordx4 v[{UK+4*n}:{UK+4*n+3}], v{vUK}, s[48:51], s39 offen {LD}")
            A("s_add_u32 s39, s39, 8192")
        g.vmi((k, n))
        if pos[0] == len(seq):
            g.setflag(F_PISS, dyn=f"v{vFW}")
            g.stamp(2)
    A(f"s_lshl_b32 s3, s31, 2"); A(f"v_add_u32 v{vFW}, s3, v2")
    for _ in range(o.tw): issue_p()
    g.selectors(SEL, 46)
    A("s_barrier")
    g.srd(52, 16, "s61", 4194304)
    A("s_lshl_b32 s3, s28, 7"); A("s_lshl_b32 s62, s29, 6"); A("s_add_u32 s3, s3, s62"); A("s_lshl_b32 s62, s31, 4"); A("s_add_u32 s3, s3, s62")
    A("s_mul_i32 s62, s3, 1280")
    g.srd(56, 18, "s62", 5242880)
    A(f"v_lshrrev_b32 v46, 4, v1"); A(f"v_mul_u32_u24 v{vWO}, 5120, v46"); A("v_and_b32 v47, 15, v1"); A(f"v_lshl_add_u32 v{vWO}, v47, 4, v{vWO}")
    A("v_and_b32 v46, 16, v1"); A(f"v_lshl_add_u32 v{vQA}, v6, 5, v46"); A(f"v_add_u32 v{vQA}, {L_QACC}, v{vQA}")
    A("s_mov_b32 s40, s24"); A("s_mov_b32 s41, s25"); A(f"s_mov_b32 s42, {WS_END}")
    for n in range(20):
        g.vmwait(("wq", n))
        issue_p()
        hf, m = divmod(n, 10)
        f = FR + 4 * (n & 1)
        g.frag(f, XV + 6 * hf + (m >> 1), m & 1, SEL)
        A(f"v_mfma_f32_16x16x32_bf16 v[{ACC}:{ACC+3}], v[{f}:{f+3}], v[{WQ+4*n}:{WQ+4*n+3}], " + ("0" if n == 0 else f"v[{ACC}:{ACC+3}]"))
    while pos[0] < len(seq):
        g.vmlimit(o.tw - 1); issue_p()
    A("s_mov_b32 exec_lo, 0x00ff00ff"); A("s_mov_b32 exec_hi, 0xff00ff00")
    for r in range(4): A(f"ds_add_f32 v{vQA}, v{ACC+r} offset:{4*r}")
    g.setflag(F_Q, add=True)
    g.stamp(3)
    A(f"v_lshlrev_b32 v46, 5, v6"); A(f"v_add_u32 v46, {L_QACC}, v46")
    QF = 48
    def rdq():
        A(f"ds_read_b128 v[{QF}:{QF+3}], v46"); A(f"ds_read_b128 v[{QF+4}:{QF+7}], v46 offset:16")
    g.spin(F_Q, 4, extra=rdq)
    QP = 56; PP = 60
    for k in range(4): A(f"v_cvt_pk_bf16_f32 v{QP+k}, v{QF+2*k}, v{QF+2*k+1}")
    g.vmwait(("uk", 7))
    for k in range(4):
        for n in range(8):
            if k == 0: A(f"v_dot2_f32_bf16 v{PP+n}, v{UK+4*n}, v{QP}, 0")
            else: A(f"v_dot2c_f32_bf16 v{PP+n}, v{UK+4*n+k}, v{QP+k}")
    A("s_lshl_b32 s3, s4, 2"); A("s_add_u32 s3, s3, s7"); A("s_lshl_b32 s3, s3, 1"); A("s_add_u32 s3, s3, s29"); A("s_lshl_b32 s3, s3, 3")
    A("s_and_b32 s62, s28, 7"); A("s_add_u32 s3, s3, s62"); A("s_lshl_b32 s3, s3, 10")
    A("s_lshl_b32 s62, s30, 2"); A("s_add_u32 s62, s62, s31"); A("s_lshl_b32 s62, s62, 7"); A("s_add_u32 s62, s62, s3")
    A("v_lshlrev_b32 v46, 1, v1")
    A("v_and_b32 v47, 2, v1"); A("v_cmp_ne_u32 vcc, 0, v47")
    for n in range(4):
        A(f"v_add_f32_dpp v{PP+n}, v{PP+n}, v{PP+n} row_half_mirror row_mask:0xf bank_mask:0x5")
    for n in range(4):
        A(f"v_add_f32_dpp v{PP+n}, v{PP+n+4}, v{PP+n+4} row_half_mirror row_mask:0xf bank_mask:0xa")
    for n in range(4):
        A(f"v_add_f32_dpp v{PP+n}, v{PP+n}, v{PP+n} quad_perm:[2,3,0,1] row_mask:0xf bank_mask:0xf")
    for k in range(2): A(f"v_cndmask_b32 v{PP+k}, v{PP+k}, v{PP+k+2}, vcc")
    for k in range(2): A(f"v_add_f32_dpp v{PP+k}, v{PP+k}, v{PP+k} quad_perm:[1,0,3,2] row_mask:0xf bank_mask:0xf")
    A(f"v_cvt_pk_bf16_f32 v{PP}, v{PP}, v{PP+1}")
    g.spin(F_INV, 4)
    A("s_mov_b32 exec_lo, 0x55555555"); A("s_mov_b32 exec_hi, 0x55555555")
    A(f"buffer_store_dword v{PP}, v46, s[40:43], s62 offen sc1"); g.vmi("qa")
    A("s_mov_b64 exec, -1")
    g.stamp(4)
    A("s_lshl_b32 s3, s30, 1")
    for k in range(4):
        A(f"s_xor_b32 s{44+k}, s3, {k}"); A(f"s_mul_i32 s{44+k}, s{44+k}, 1280")
    g.spin(F_KISS, 1, dyn=f"v{vFW}", sleep=1)
    A("s_mov_b32 s39, 0")
    for n in range(8):
        g.vmlimit(o.tw2 - 1)
        A(f"buffer_load_dwordx4 v[{UV+4*n}:{UV+4*n+3}], v{vUK}, s[52:55], s39 offen {LD}"); g.vmi(("uv", n))
        A("s_add_u32 s39, s39, 8192")
    for k in range(4):
        for cb in range(5):
            g.vmlimit(o.tw2 - 1)
            d = WO + 4 * (5 * k + cb)
            A(f"buffer_load_dwordx4 v[{d}:{d+3}], v{vWO}, s[56:59], s{44+k} offen offset:{256*cb} {LD}"); g.vmi(("wo", k, cb))
    g.stamp(5)
    A(f"s_lshl_b32 s3, s31, 8"); A(f"v_lshl_add_u32 v46, v5, 5, s3"); A(f"v_add_u32 v46, {L_CC}, v46")
    A(f"v_add_u32 v{vQA}, {L_CXACC - L_QACC}, v{vQA}")
    g.spin(F_CCF, 1, dyn=f"v{vFW}", extra=rdq)
    g.stamp(6)
    for k in range(4): A(f"v_cvt_pk_bf16_f32 v{QP+k}, v{QF+2*k}, v{QF+2*k+1}")
    g.vmwait(("uv", 7))
    for n in range(8):
        f = FR + 4 * (n & 1)
        g.frag(f, QP + (n >> 1), n & 1, SEL)
        A(f"v_mfma_f32_16x16x32_bf16 v[{ACC}:{ACC+3}], v[{f}:{f+3}], v[{UV+4*n}:{UV+4*n+3}], " + ("0" if n == 0 else f"v[{ACC}:{ACC+3}]"))
    A("v_lshrrev_b32 v47, 4, v1"); A("s_lshl_b32 s3, s31, 6"); A("v_lshl_add_u32 v46, v47, 4, s3"); A(f"v_add_u32 v46, {L_CXACC}, v46")
    A("s_lshl_b32 s3, s30, 3"); A("v_add_u32 v47, s3, v46"); A("s_xor_b32 s3, s3, 8"); A("v_add_u32 v46, s3, v46")
    A("s_mov_b32 exec_lo, 0x00ff00ff"); A("s_mov_b32 exec_hi, 0xff00ff00")
    for r in range(4): A(f"ds_add_f32 v{vQA}, v{ACC+r} offset:{4*r}")
    g.setflag(F_CX, add=True)
    def rdc():
        A(f"ds_read_b64 v[{QF}:{QF+1}], v47"); A(f"ds_read_b64 v[{QF+2}:{QF+3}], v46")
    g.spin(F_CX, 4, extra=rdc)
    g.stamp(7)
    for k in range(2): A(f"v_cvt_pk_bf16_f32 v{QP+k}, v{QF+2*k}, v{QF+2*k+1}")
    OA = 60; F7 = 80
    for k in range(4): g.frag(F7 + 4 * k, QP + (k >> 1), k & 1, SEL)
    A("v_and_b32 v47, 15, v1"); A("v_and_b32 v46, 16, v1"); A("v_lshl_add_u32 v46, v47, 5, v46"); A("s_mul_i32 s3, s31, 2560"); A(f"v_add_u32 v46, s3, v46")
    A("s_mul_i32 s3, s31, 640"); A("v_lshl_add_u32 v47, v1, 4, s3")
    A("s_lshl_b32 s62, s4, 7"); A("s_add_u32 s62, s62, s32"); A("s_mul_i32 s62, s62, 2560"); A(f"s_add_u32 s62, s62, {OC}")
    for k in range(4):
        for cb in range(5):
            g.vmwait(("wo", k, cb))
            d = WO + 4 * (5 * k + cb); a = OA + 4 * cb
            A(f"v_mfma_f32_16x16x32_bf16 v[{a}:{a+3}], v[{F7+4*k}:{F7+4*k+3}], v[{d}:{d+3}], " + ("0" if k == 0 else f"v[{a}:{a+3}]"))
    g.stamp(8)
    A("s_mov_b32 exec_hi, 0")
    for cb in range(5): A(f"ds_write_b128 v46, v[{OA+4*cb}:{OA+4*cb+3}] offset:{L_OUTP+512*cb}")
    g.setflag(F_OP, add=True)
    def rdo():
        for w in range(4): A(f"ds_read_b128 v[{F7+4*w}:{F7+4*w+3}], v47 offset:{L_OUTP+2560*w}")
    g.spin(F_OP, 4, extra=rdo)
    for r in range(4): A(f"v_add_f32 v{F7+r}, v{F7+r}, v{F7+4+r}")
    for r in range(4): A(f"v_add_f32 v{F7+8+r}, v{F7+8+r}, v{F7+12+r}")
    for r in range(4): A(f"v_add_f32 v{F7+r}, v{F7+r}, v{F7+8+r}")
    A("s_mov_b32 exec_hi, 0xff")
    A(f"buffer_store_dwordx4 v[{F7}:{F7+3}], v47, s[40:43], s62 offen sc1")
    g.setflag(F_CPUB, add=True)
    g.stamp(9)
    if o.stamps:
        A("s_waitcnt vmcnt(0)"); g.stamp(10)
        for i in (11, 12, 13): A(f"s_mov_b64 s[{64+2*i}:{65+2*i}], 0")
        A("s_branch L_stamps")
    else:
        A("s_endpgm")
    g.vm = []
    A("L_T:")
    A("s_sub_u32 s31, s31, 4")
    SEL = 8; vFW = 7; SEN = 16; vL16 = 20; vK = 21; vQ = 22; vT0 = 23; vT1 = 24; vA = 25; vB = 26
    GA = 28
    QR = 52
    SA = 84
    PF = 92
    ON = 108
    LA = 112
    KF = 128
    OA = 52
    A(f"v_lshlrev_b32 v{vL16}, 4, v1")
    A(f"s_lshl_b32 s3, s31, 2"); A(f"v_add_u32 v{vFW}, s3, v2")
    for r in range(4): A(f"v_mov_b32 v{SEN+r}, 0")
    A("s_lshl_b32 s3, s31, 10"); A(f"v_add_u32 v46, s3, v{vL16}"); A(f"v_add_u32 v46, {L_FLAG}, v46")
    A("s_cmp_ge_u32 s31, 2"); A("s_cbranch_scc1 L_T_nz")
    A(f"ds_write_b128 v46, v[{SEN}:{SEN+3}]")
    A("L_T_nz:")
    for r in range(4): A(f"v_mov_b32 v{SEN+r}, -1")
    A("s_waitcnt lgkmcnt(0)")
    A("s_barrier")
    A("s_mov_b32 s40, s24"); A("s_mov_b32 s41, s25"); A(f"s_mov_b32 s42, {WS_END}"); A("s_mov_b32 s43, 0x20000")
    if o.pf:
        A("s_getpc_b64 s[36:37]")
        A("L_pc:")
        A(f"s_sub_u32 s36, s36, L_pc-{NAME}_kernel"); A("s_subb_u32 s37, s37, 0")
        A(f"s_and_b32 s3, s6, {o.pf-1}"); A("s_lshl_b32 s3, s3, 10"); A(f"v_add_u32 v46, s3, v{vL16}")
        A("s_cmp_lg_u32 s31, 3"); A("s_cbranch_scc1 L_T_npf")
        A(f"global_load_dwordx4 v[{GA}:{GA+3}], v46, s[36:37]")
        A("L_T_npf:")
    A("s_lshl_b32 s36, s4, 2"); A("s_add_u32 s36, s36, s7"); A("s_lshl_b32 s36, s36, 3")
    if o.inval:
        A("s_lshl_b32 s3, s31, 1"); A("s_add_u32 s3, s3, s36"); A("s_lshl_b32 s3, s3, 5"); A("s_add_u32 s3, s3, s27")
        A("s_lshl_b32 s38, s3, 3"); A(f"s_add_u32 s38, s38, {ST}")
        A("s_lshl_b32 s37, s3, 10"); A(f"s_add_u32 s37, s37, {OB}")
        A(f"buffer_store_dwordx4 v[{SEN}:{SEN+3}], v{vL16}, s[40:43], s37 offen sc1")
        A("s_add_u32 s37, s37, 32768")
        A(f"buffer_store_dwordx4 v[{SEN}:{SEN+3}], v{vL16}, s[40:43], s37 offen sc1")
        A("s_lshl_b32 s62, s4, 7"); A("s_add_u32 s62, s62, s32"); A("s_mul_i32 s62, s62, 2560"); A("s_mul_i32 s3, s31, 640"); A("s_add_u32 s62, s62, s3"); A(f"s_add_u32 s62, s62, {OC}")
        A("s_mov_b32 exec_hi, 0xff")
        A(f"buffer_store_dwordx4 v[{SEN}:{SEN+3}], v{vL16}, s[40:43], s62 offen sc1")
        A("s_lshl_b32 s3, s36, 1"); A("s_lshl_b32 s62, s29, 3"); A("s_add_u32 s3, s3, s62"); A("s_and_b32 s62, s28, 7"); A("s_add_u32 s3, s3, s62"); A("s_lshl_b32 s3, s3, 10")
        A("s_lshl_b32 s62, s30, 2"); A("s_add_u32 s62, s62, s31"); A("s_lshl_b32 s62, s62, 7"); A("s_add_u32 s62, s62, s3")
        A("s_mov_b64 exec, 0xff")
        A(f"buffer_store_dwordx4 v[{SEN}:{SEN+3}], v{vL16}, s[40:43], s62 offen sc1")
        A("v_lshlrev_b32 v46, 8, v1")
        A("s_mov_b64 exec, 3")
        A(f"buffer_store_dwordx2 v[{SEN}:{SEN+1}], v46, s[40:43], s38 offen sc1")
        A("s_mov_b64 exec, -1")
    g.selectors(SEL, 46)
    A("v_and_b32 v46, 15, v1"); A("v_lshrrev_b32 v47, 4, v1")
    A(f"v_mul_u32_u24 v{vQ}, {PITCH}, v46"); A(f"v_lshl_add_u32 v{vQ}, v47, 4, v{vQ}")
    A(f"s_mul_i32 s3, s31, {32*PITCH}"); A(f"v_add_u32 v{vK}, s3, v{vQ}"); A(f"v_add_u32 v{vQ}, {L_QI}, v{vQ}")
    A("v_lshrrev_b32 v48, 2, v1"); A(f"v_mul_u32_u24 v{vT0}, {PITCH}, v48"); A("v_and_b32 v48, 3, v1"); A(f"v_lshl_add_u32 v{vT0}, v48, 3, v{vT0}")
    A("s_lshl_b32 s3, s31, 8"); A(f"v_add_u32 v{vT0}, s3, v{vT0}"); A(f"v_add_u32 v{vT1}, {64*PITCH}, v{vT0}")
    for r in range(4): A(f"v_mov_b32 v{ON+r}, 0x3f803f80")
    A("s_lshl_b32 s3, s27, 17")
    g.srd(44, 10, "s3", 4194304)
    A("s_mov_b32 s48, s22"); A("s_mov_b32 s49, s23"); A("s_movk_i32 s50, 256"); A("s_mov_b32 s51, 0x20000")
    A("s_waitcnt vmcnt(0)")
    g.setflag(F_INV, add=True)
    g.stamp(1)
    A("s_mov_b32 s60, 0")
    A("s_cmp_lg_u32 s31, 0"); A("s_cbranch_scc1 L_T_arm_skip")
    g.spin(F_INV, 4)
    A("s_lshl_b32 s61, s4, 7"); A("s_add_u32 s3, s61, s32"); A("v_mov_b32 v46, s3")
    A("s_mov_b64 exec, 1")
    A("buffer_store_byte v3, v46, s[48:51], 0 offen sc1")
    A("s_mov_b64 exec, -1")
    A("v_and_b32 v47, 31, v1"); A("v_lshlrev_b32 v47, 2, v47")
    A("s_mov_b32 s33, 0x40000")
    A("L_T_arm1:")
    A("buffer_load_dword v48, v47, s[48:51], s61 offen sc1")
    A(f"ds_read_b32 v4, v{vFW} offset:{4*F_PISS}")
    A("s_waitcnt vmcnt(0) lgkmcnt(0)")
    A("v_cmp_ne_u32 vcc, 0x01010101, v48")
    A("s_cbranch_vccz L_T_arm1_ok")
    A("v_cmp_ne_u32 vcc, 0, v4")
    A("s_cbranch_vccnz L_T_arm_skip")
    A("s_sleep 2")
    A("s_sub_u32 s33, s33, 1"); A("s_cbranch_scc0 L_T_arm1")
    A("L_T_arm1_ok:")
    A("s_mov_b32 s60, 1")
    g.setflag(F_ARM)
    A("L_T_arm_skip:")
    g.stamp(2)
    g.spin(F_PISS, 1, dyn=f"v{vFW}", sleep=1)
    g.stamp(3)
    for qi in range(4):
        A(f"s_add_u32 s3, s7, {qi}"); A("s_and_b32 s3, s3, 3"); A("s_lshl_b32 s3, s3, 2"); A("s_add_u32 s3, s3, s31"); A("s_lshl_b32 s3, s3, 3")
        A("s_lshl_b32 s52, s3, 10"); A(f"s_mul_i32 s53, s3, {PITCH}")
        for k in range(8):
            g.vmlimit((o.tk if qi == 0 else o.tk2) - 1)
            A("s_mov_b32 m0, s53")
            A(f"s_add_u32 s53, s53, {PITCH}")
            A(f"buffer_load_dwordx4 v{vL16}, s[44:47], s52 offen {LD} lds"); g.vmi("kv")
            A("s_add_u32 s52, s52, 1024")
    g.setflag(F_KISS, dyn=f"v{vFW}")
    g.stamp(4)
    A("s_cmp_lg_u32 s31, 0"); A("s_cbranch_scc1 L_T_arm2_ok")
    A("s_cmp_lg_u32 s60, 0"); A("s_cbranch_scc1 L_T_arm2_ok")
    A("s_mov_b32 s33, 0x40000")
    A("L_T_arm2:")
    A("buffer_load_dword v48, v47, s[48:51], s61 offen sc1")
    A("s_waitcnt vmcnt(0)")
    A("v_cmp_ne_u32 vcc, 0x01010101, v48")
    A("s_cbranch_vccz L_T_arm2_set")
    A("s_sub_u32 s33, s33, 1"); A("s_cbranch_scc0 L_T_arm2")
    A("L_T_arm2_set:")
    g.setflag(F_ARM)
    A("L_T_arm2_ok:")
    g.spin(F_ARM, 1)
    A("s_lshl_b32 s52, s36, 1"); A("s_lshl_b32 s3, s31, 2"); A("s_add_u32 s52, s52, s3"); A("s_lshl_b32 s52, s52, 10")
    def gatherA():
        for n in range(4): A(f"buffer_load_dwordx4 v[{GA+4*n}:{GA+4*n+3}], v{vL16}, s[40:43], s52 offen offset:{1024*n} sc1")
    gatherA()
    for n in range(4): g.vmi("ga")
    g.vmwait("kv")
    g.setflag(F_KV, add=True)
    A(f"s_mul_i32 s3, s31, {4*PITCH}"); A(f"v_add_u32 v{vA}, s3, v{vL16}"); A(f"v_add_u32 v{vA}, {L_QI}, v{vA}")
    g.spin(F_KV, 4)
    g.stamp(5)
    for kk in range(16):
        for t in range(2):
            d = KF + 4 * (2 * kk + t)
            A(f"ds_read_b128 v[{d}:{d+3}], v{vK} offset:{16*t*PITCH + 64*kk}")
    def validate(first, n, lab_ok):
        A(f"v_max3_u32 v46, v{first}, v{first+1}, v{first+2}")
        A(f"v_max3_u32 v47, v{first+3}, v{first+4}, v{first+5}")
        k = 6; which = 46
        while k + 1 < n:
            A(f"v_max3_u32 v{which}, v{which}, v{first+k}, v{first+k+1}"); k += 2; which = 93 - which
        A("v_max_u32 v46, v46, v47")
        A("v_cmp_eq_u32 vcc, -1, v46")
        A(f"s_cbranch_vccz {lab_ok}")
    A("s_mov_b32 s33, 0x40000")
    A("L_T_ga:")
    A("s_waitcnt vmcnt(0)"); g.vm = []
    validate(GA, 16, "L_T_ga_ok")
    if o.sleepa: A(f"s_sleep {o.sleepa}")
    gatherA()
    A("s_sub_u32 s33, s33, 1"); A("s_cbranch_scc0 L_T_ga")
    A("L_T_ga_ok:")
    g.stamp(6)
    for n in range(4): A(f"ds_write_b128 v{vA}, v[{GA+4*n}:{GA+4*n+3}] offset:{n*PITCH}")
    g.setflag(F_QI, add=True)
    def rdq8():
        for kk in range(8): A(f"ds_read_b128 v[{QR+4*kk}:{QR+4*kk+3}], v{vQ} offset:{64*kk}")
    g.spin(F_QI, 4, extra=rdq8)
    vfr = [(ct, ks) for ct in range(8) for ks in range(4)]
    def rdv(idx, d):
        ct, ks = vfr[idx]
        base = vT0 if ks < 2 else vT1
        for hf in range(2):
            A(f"ds_read_b64_tr_b16 v[{d+2*hf}:{d+2*hf+1}], v{base} offset:{(32*(ks&1)+16*hf)*PITCH + 32*ct}")
    lg = []
    for kk in range(16):
        if kk >= 8:
            k = len(lg) - 1 - lg.index(("q", kk))
            A(f"s_waitcnt lgkmcnt({min(k,15)})"); lg = lg[len(lg) - min(k, 15):]
        q = QR + 4 * (kk & 7)
        for t in range(2):
            d = KF + 4 * (2 * kk + t)
            A(f"v_mfma_f32_16x16x32_bf16 v[{SA+4*t}:{SA+4*t+3}], v[{d}:{d+3}], v[{q}:{q+3}], " + ("0" if kk == 0 else f"v[{SA+4*t}:{SA+4*t+3}]"))
        if kk < 8:
            A(f"ds_read_b128 v[{q}:{q+3}], v{vQ} offset:{64*(kk+8)}"); lg.append(("q", kk + 8))
        if kk >= o.vstart:
            pass
    for idx in range(32): rdv(idx, KF + 4 * idx)
    for r in range(8): A(f"v_add_f32_dpp v{SA+r}, v{SA+r}, v{SA+r} row_ror:8 row_mask:0xf bank_mask:0xf")
    A(f"v_max3_f32 v46, v{SA}, v{SA+1}, v{SA+2}"); A(f"v_max3_f32 v47, v{SA+3}, v{SA+4}, v{SA+5}")
    A(f"v_max3_f32 v46, v46, v{SA+6}, v{SA+7}"); A("v_max_f32 v46, v46, v47")
    A("v_mov_b32 v47, v46"); A("v_permlane16_swap_b32 v46, v47"); A("v_max_f32 v46, v46, v47")
    A("v_mov_b32 v47, v46"); A("v_permlane32_swap_b32 v46, v47"); A("v_max_f32 v46, v46, v47")
    g.stamp(7)
    A(f"s_lshl_b32 s3, s31, 2"); A(f"v_add_u32 v47, s3, v{vL16}")
    A(f"ds_write_b32 v47, v46 offset:{L_MX - 131072}") if False else None
    A(f"v_add_u32 v48, {L_MX}, v{vL16}"); A(f"v_add_u32 v47, {L_MX}, v47")
    A("ds_write_b32 v47, v46")
    g.setflag(F_MX, add=True)
    def rdm(): A(f"ds_read_b128 v[{GA}:{GA+3}], v48")
    g.spin(F_MX, 4, extra=rdm)
    A(f"v_max3_f32 v46, v{GA}, v{GA+1}, v{GA+2}"); A(f"v_max_f32 v46, v46, v{GA+3}")
    A(f"s_mov_b32 s3, {SCALE}")
    A(f"v_mul_f32 v44, s3, v46")
    for r in range(8): A(f"v_fma_f32 v{SA+r}, v{SA+r}, s3, -v44")
    for r in range(8): A(f"v_exp_f32 v{SA+r}, v{SA+r}")
    for k in range(4): A(f"v_cvt_pk_bf16_f32 v{GA+k}, v{SA+2*k}, v{SA+2*k+1}")
    A("s_lshl_b32 s3, s31, 10"); A(f"v_add_u32 v48, {L_P}, v{vL16}"); A(f"v_add_u32 v47, s3, v48")
    A(f"ds_write_b128 v47, v[{GA}:{GA+3}]")
    g.setflag(F_P, add=True)
    A(f"v_lshlrev_b32 v{vB}, 15, v6"); A("v_and_b32 v46, 8, v1"); A(f"v_lshl_add_u32 v{vB}, v46, 3, v{vB}")
    A("v_and_b32 v46, 16, v1"); A(f"v_lshl_add_u32 v{vB}, v46, 1, v{vB}"); A("v_lshrrev_b32 v46, 5, v1"); A(f"v_lshl_add_u32 v{vB}, v46, 4, v{vB}")
    A("s_lshl_b32 s52, s36, 5"); A("s_add_u32 s52, s52, s27"); A("s_lshl_b32 s53, s52, 3"); A(f"s_add_u32 s53, s53, {ST}")
    A("s_lshl_b32 s52, s52, 10"); A("s_lshl_b32 s3, s31, 8"); A("s_add_u32 s52, s52, s3"); A(f"s_add_u32 s52, s52, {OB}")
    def rdp():
        for w in range(4): A(f"ds_read_b128 v[{PF+4*w}:{PF+4*w+3}], v48 offset:{1024*w}")
    g.spin(F_P, 4, extra=rdp)
    PK = 28
    def pack(ct):
        a = OA + 4 * ct
        A(f"v_cvt_pk_bf16_f32 v{PK+2*ct}, v{a}, v{a+1}"); A(f"v_cvt_pk_bf16_f32 v{PK+2*ct+1}, v{a+2}, v{a+3}")
    def ship(i):
        b = PK + 8 * i
        A(f"v_permlane16_swap_b32 v{b}, v{b+2}"); A(f"v_permlane16_swap_b32 v{b+1}, v{b+3}")
        A(f"v_permlane16_swap_b32 v{b+4}, v{b+6}"); A(f"v_permlane16_swap_b32 v{b+5}, v{b+7}")
        for r in range(4): A(f"v_mov_b32_dpp v{b+r}, v{b+4+r} quad_perm:[0,1,2,3] row_mask:0xf bank_mask:0xc")
        A(f"buffer_store_dwordx4 v[{b}:{b+3}], v{vB}, s[40:43], s52 offen offset:{128*i} sc1")
    for ks in range(4):
        A(f"v_mfma_f32_16x16x32_bf16 v[{LA}:{LA+3}], v[{ON}:{ON+3}], v[{PF+4*ks}:{PF+4*ks+3}], " + ("0" if ks == 0 else f"v[{LA}:{LA+3}]"))
    for ct in range(8):
        for ks in range(4):
            d = KF + 4 * (4 * ct + ks); a = OA + 4 * ct
            A(f"v_mfma_f32_16x16x32_bf16 v[{a}:{a+3}], v[{d}:{d+3}], v[{PF+4*ks}:{PF+4*ks+3}], " + ("0" if ks == 0 else f"v[{a}:{a+3}]"))
            if ct == 2 and ks == 0:
                A(f"v_mov_b32 v45, v{LA}"); A("v_lshlrev_b32 v46, 8, v1")
                A("s_cmp_lg_u32 s31, 0"); A("s_cbranch_scc1 L_T_nost")
                A("s_mov_b64 exec, 0xff")
                A("buffer_store_dwordx2 v[44:45], v46, s[40:43], s53 offen sc1")
                A("s_mov_b64 exec, -1")
                A("L_T_nost:")
            if ks == 3 and ct >= 2: pack(ct - 2)
            if ct == 6 and ks == 1: ship(0)
    pack(6); pack(7); ship(1)
    g.stamp(8)
    A(f"v_lshlrev_b32 v{vA}, 12, v5"); A(f"v_lshl_add_u32 v{vA}, v6, 4, v{vA}")
    A(f"v_lshlrev_b32 v{vB}, 5, v5")
    A("s_lshl_b32 s3, s4, 5"); A("s_add_u32 s3, s3, s28"); A("s_lshl_b32 s53, s3, 8"); A(f"s_add_u32 s53, s53, {ST}")
    A("s_lshl_b32 s52, s3, 15"); A("s_lshl_b32 s3, s30, 2"); A("s_add_u32 s3, s3, s31"); A("s_lshl_b32 s3, s3, 7"); A("s_add_u32 s52, s52, s3"); A(f"s_add_u32 s52, s52, {OB}")
    GB = 52; GS = 68
    A("s_mov_b32 s33, 0x40000")
    if o.sleepb0: A(f"s_sleep {o.sleepb0}")
    A("L_T_gb:")
    for k in range(2): A(f"buffer_load_dwordx4 v[{GS+4*k}:{GS+4*k+3}], v{vB}, s[40:43], s53 offen offset:{16*k} sc1")
    for n in range(4): A(f"buffer_load_dwordx4 v[{GB+4*n}:{GB+4*n+3}], v{vA}, s[40:43], s52 offen offset:{1024*n} sc1")
    A("s_waitcnt vmcnt(0)")
    validate(GB, 24, "L_T_gb_ok")
    if o.sleepb: A(f"s_sleep {o.sleepb}")
    A("s_sub_u32 s33, s33, 1"); A("s_cbranch_scc0 L_T_gb")
    A("L_T_gb_ok:")
    g.stamp(9)
    A(f"v_max3_f32 v46, v{GS}, v{GS+2}, v{GS+4}"); A(f"v_max_f32 v46, v46, v{GS+6}")
    A("v_max_f32_dpp v46, v46, v46 row_ror:8 row_mask:0xf bank_mask:0xf")
    A("v_mov_b32 v47, v46"); A("v_permlane16_swap_b32 v46, v47"); A("v_max_f32 v46, v46, v47")
    A("v_mov_b32 v47, v46"); A("v_permlane32_swap_b32 v46, v47"); A("v_max_f32 v46, v46, v47")
    for n in range(4): A(f"v_sub_f32 v{GS+2*n}, v{GS+2*n}, v46")
    for n in range(4): A(f"v_exp_f32 v{GS+2*n}, v{GS+2*n}")
    A(f"v_cvt_pk_bf16_f32 v28, v{GS}, v{GS+2}"); A(f"v_cvt_pk_bf16_f32 v29, v{GS+4}, v{GS+6}")
    for n in range(4): g.frag(76 + 4 * n, 28 + (n >> 1), n & 1, SEL)
    for n in range(4):
        A(f"v_mfma_f32_16x16x32_bf16 v[32:35], v[{76+4*n}:{76+4*n+3}], v[{GB+4*n}:{GB+4*n+3}], " + ("0" if n == 0 else "v[32:35]"))
    A(f"v_mul_f32 v46, v{GS}, v{GS+1}")
    for n in range(1, 4): A(f"v_fmac_f32 v46, v{GS+2*n}, v{GS+2*n+1}")
    A("v_add_f32_dpp v46, v46, v46 row_ror:8 row_mask:0xf bank_mask:0xf")
    A("v_mov_b32 v47, v46"); A("v_permlane16_swap_b32 v46, v47"); A("v_add_f32 v46, v46, v47")
    A("v_mov_b32 v47, v46"); A("v_permlane32_swap_b32 v46, v47"); A("v_add_f32 v46, v46, v47")
    A("v_rcp_f32 v46, v46")
    A("v_and_b32 v47, 16, v1"); A("v_lshl_add_u32 v47, v6, 5, v47"); A("s_lshl_b32 s3, s31, 8"); A(f"s_add_u32 s3, s3, {L_CC}"); A("v_add_u32 v47, s3, v47")
    for r in range(4): A(f"v_mul_f32 v{32+r}, v{32+r}, v46")
    A("s_mov_b32 exec_lo, 0x00ff00ff"); A("s_mov_b32 exec_hi, 0xff00ff00")
    for r in range(4): A(f"ds_add_f32 v47, v{32+r} offset:{4*r}")
    g.setflag(F_CCF, dyn=f"v{vFW}")
    g.stamp(10)
    A("s_cmp_lg_u32 s31, 0"); A("s_cbranch_scc1 L_T_end")
    A("s_cmp_ge_u32 s6, 10"); A("s_cbranch_scc1 L_T_end")
    A("s_mul_i32 s3, s5, 10"); A("s_add_u32 s3, s3, s6")
    A("v_lshrrev_b32 v46, 2, v1"); A(f"v_mul_u32_u24 v{vA}, 2560, v46"); A("v_and_b32 v46, 3, v1"); A(f"v_lshl_add_u32 v{vA}, v46, 4, v{vA}")
    A(f"s_mul_i32 s52, s4, {128*2560}"); A("s_lshl_b32 s53, s3, 6"); A("s_add_u32 s52, s52, s53"); A(f"s_add_u32 s52, s52, {OC}")
    for n in range(1, 8): A(f"s_add_u32 s{52+n}, s{51+n}, {16*2560}")
    A("s_mul_i32 s61, s4, 1280"); A("s_lshl_b32 s3, s3, 5"); A("s_add_u32 s61, s61, s3")
    A("s_mov_b32 s44, s20"); A("s_mov_b32 s45, s21"); A("s_movk_i32 s46, 2560"); A("s_mov_b32 s47, 0x20000")
    g.spin(F_CPUB, 4, sleep=1)
    GC = 52
    A("s_mov_b32 s33, 0x40000")
    A("L_T_gc:")
    for n in range(8): A(f"buffer_load_dwordx4 v[{GC+4*n}:{GC+4*n+3}], v{vA}, s[40:43], s{52+n} offen sc1")
    A("s_waitcnt vmcnt(0)")
    validate(GC, 32, "L_T_gc_ok")
    A("s_sub_u32 s33, s33, 1"); A("s_cbranch_scc0 L_T_gc")
    A("L_T_gc_ok:")
    g.stamp(11)
    for st in (16, 8, 4):
        for k in range(st): A(f"v_add_f32 v{GC+k}, v{GC+k}, v{GC+st+k}")
    for r in range(4): A(f"v_add_f32_dpp v{GC+r}, v{GC+r}, v{GC+r} row_ror:4 row_mask:0xf bank_mask:0xf")
    for r in range(4): A(f"v_add_f32_dpp v{GC+r}, v{GC+r}, v{GC+r} row_ror:8 row_mask:0xf bank_mask:0xf")
    for sw in ("16", "32"):
        for r in range(4): A(f"v_mov_b32 v{GC+4+r}, v{GC+r}")
        for r in range(4): A(f"v_permlane{sw}_swap_b32 v{GC+r}, v{GC+4+r}")
        for r in range(4): A(f"v_add_f32 v{GC+r}, v{GC+r}, v{GC+4+r}")
    A(f"v_cvt_pk_bf16_f32 v{GC}, v{GC}, v{GC+1}"); A(f"v_cvt_pk_bf16_f32 v{GC+1}, v{GC+2}, v{GC+3}")
    A("v_lshlrev_b32 v46, 3, v1")
    A("s_mov_b64 exec, 15")
    A(f"buffer_store_dwordx2 v[{GC}:{GC+1}], v46, s[44:47], s61 offen")
    if o.stamps:
        A("s_waitcnt vmcnt(0)"); g.stamp(12)
        A("s_branch L_stamps")
        A("L_T_end:")
        A("s_mov_b64 s[86:87], 0"); A("s_mov_b64 s[88:89], 0")
        A("L_stamps:")
        A("s_mov_b64 s[90:91], 0")
        A("s_mov_b64 exec, 1")
        A("s_waitcnt lgkmcnt(0)")
        A("v_lshrrev_b32 v2, 6, v0"); A("s_lshl_b32 s3, s2, 3"); A("v_add_u32 v2, s3, v2"); A("v_mul_u32_u24 v2, 112, v2")
        A("s_add_u32 s40, s24, 0x8000000"); A("s_addc_u32 s41, s25, 0"); A("s_mov_b32 s42, 0x1000000"); A("s_mov_b32 s43, 0x20000")
        for i in range(14):
            A(f"v_mov_b32 v4, s{64+2*i}"); A(f"v_mov_b32 v5, s{65+2*i}")
            A(f"buffer_store_dwordx2 v[4:5], v2, s[40:43], 0 offen offset:{8*i}")
            A("s_nop 1")
    else:
        A("L_T_end:")
    A("L_end:")
    A("s_endpgm")
    lines, nn = hz.fix([l for l in g.L if l is not None])
    body = "\n".join(("" if l.endswith(":") else "    ") + l for l in lines)
    pad = f"\n.p2align 8\n.fill {max(0, o.pf)*256}-((.-{NAME}_kernel)>>2), 4, 0xbf800000" if False else ""
    txt = (HDR + f"; @launch grid=(256,1,1) block=(512,1,1) lds={L_END}\n"
        ".amdgcn_target \"amdgcn-amd-amdhsa--gfx950\"\n.text\n"
        f".globl {NAME}_kernel\n.p2align 8\n.type {NAME}_kernel,@function\n{NAME}_kernel:\n" + body + "\n"
        + (f".org {NAME}_kernel+{o.pf*1024}, 0\n" if o.pf else "") +
        ".section .rodata,\"a\"\n.p2align 6\n"
        f".amdhsa_kernel {NAME}_kernel\n  .amdhsa_next_free_vgpr 256\n  .amdhsa_next_free_sgpr 96\n"
        "  .amdhsa_accum_offset 256\n  .amdhsa_group_segment_fixed_size 0\n  .amdhsa_kernarg_size 120\n"
        "  .amdhsa_user_sgpr_count 2\n  .amdhsa_user_sgpr_kernarg_segment_ptr 1\n  .amdhsa_system_sgpr_workgroup_id_x 1\n"
        ".end_amdhsa_kernel\n")
    return txt, nn

def parse(argv):
    ap = argparse.ArgumentParser()
    ap.add_argument("-o", default="k.s")
    ap.add_argument("--stamps", type=int, default=0)
    ap.add_argument("--ld", default="")
    ap.add_argument("--tw", type=int, default=7)
    ap.add_argument("--tw2", type=int, default=6)
    ap.add_argument("--tk", type=int, default=7)
    ap.add_argument("--tk2", type=int, default=8)
    ap.add_argument("--inval", type=int, default=1)
    ap.add_argument("--pf", type=int, default=16)
    ap.add_argument("--sleepa", type=int, default=2)
    ap.add_argument("--sleepb0", type=int, default=0)
    ap.add_argument("--sleepb", type=int, default=2)
    ap.add_argument("--vstart", type=int, default=99)
    return ap.parse_args(argv)
if __name__ == "__main__":
    o = parse(sys.argv[1:])
    txt, nn = gen(o)
    open(o.o, "w").write(txt)
    print("written", o.o, "nops inserted", nn)
```

```python
import sys, argparse
sys.path.insert(0, "gen")
import hz
NAME = "concat_heads__compressed_kv_cla__compressed_kv_cla__decode"
HDR = open("cdna_kernels/%s.s.ref" % NAME).read().split("; Override launch")[0]

QA = 0x0
ST = 0x20000
OC = 0x40000
OB = 0x100000
WS_END = 0x300000
PITCH = 1056
L_KV = 0
L_QI = 128 * PITCH
L_MISC = L_QI + 16 * PITCH
L_FLAG = L_MISC
L_QACC = L_MISC + 256
L_CXACC = L_MISC + 512
L_CC = L_MISC + 768
L_MX = L_MISC + 1792
L_P = L_MISC + 2816
L_END = L_P + 4096
L_OUTP = 0
ZERO_BYTES = 1792
F_PISS, F_KISS, F_CCF = 0, 4, 8
F_Q, F_INV, F_KV, F_QI, F_MX, F_P, F_CX, F_OP, F_ARM, F_CPUB = 12, 13, 14, 15, 16, 17, 18, 19, 20, 21
SCALE = 0x3e0293ee

class G:
    def __init__(s, opt):
        s.L = []; s.o = opt; s.vm = []; s.nlab = 0; s.nst = 0
    def A(s, t): s.L.append(t)
    def lab(s, p):
        s.nlab += 1
        return f"L_{p}_{s.nlab}"
    def vmi(s, tag): s.vm.append(tag)
    def vmwait(s, tag):
        if tag not in s.vm: return
        k = len(s.vm) - 1 - max(i for i, t in enumerate(s.vm) if t == tag)
        s.A(f"s_waitcnt vmcnt({k})")
        s.vm = s.vm[len(s.vm) - k:]
    def vmlimit(s, k):
        if len(s.vm) > k:
            s.A(f"s_waitcnt vmcnt({k})"); s.vm = s.vm[len(s.vm) - k:]
    def stamp(s, i):
        if s.o.stamps: s.A(f"s_memrealtime s[{64+2*i}:{65+2*i}]")
    def setflag(s, idx, add=False, dyn=None):
        s.A("s_mov_b64 exec, 1")
        a = dyn or "v2"
        s.A(f"{'ds_add_u32' if add else 'ds_write_b32'} {a}, v3 offset:{4*idx}")
        s.A("s_mov_b64 exec, -1")
    def spin(s, idx, val, dyn=None, sleep=0, extra=None, tmp="v4"):
        l = s.lab("spin"); d = s.lab("spun")
        s.A("s_mov_b32 s33, 0x100000")
        s.A(f"{l}:")
        s.A(f"ds_read_b32 {tmp}, {dyn or 'v2'} offset:{4*idx}")
        if extra: extra()
        s.A("s_waitcnt lgkmcnt(0)")
        s.A(f"v_cmp_ne_u32 vcc, {val}, {tmp}")
        s.A(f"s_cbranch_vccz {d}")
        if sleep: s.A(f"s_sleep {sleep}")
        s.A("s_sub_u32 s33, s33, 1")
        s.A(f"s_cbranch_scc0 {l}")
        s.A(f"{d}:")
    def srd(s, d, base, off_sreg, size):
        s.A(f"s_add_u32 s{d}, s{base}, {off_sreg}")
        s.A(f"s_addc_u32 s{d+1}, s{base+1}, 0")
        s.A(f"s_sub_u32 s{d+2}, {size}, {off_sreg}")
        s.A(f"s_mov_b32 s{d+3}, 0x20000")
    def selectors(s, sel, tmp):
        A = s.A
        A(f"v_and_b32 v{tmp}, 1, v1")
        A(f"v_cmp_eq_u32 vcc, 1, v{tmp}")
        A(f"v_mov_b32 v{tmp+1}, 0x0c0c0100"); A(f"v_mov_b32 v{tmp+2}, 0x01000c0c")
        A(f"v_cndmask_b32 v{tmp+1}, v{tmp+1}, v{tmp+2}, vcc")
        A(f"v_mov_b32 v{tmp+2}, 0x0c0c0302"); A(f"v_mov_b32 v{tmp+3}, 0x03020c0c")
        A(f"v_cndmask_b32 v{tmp+2}, v{tmp+2}, v{tmp+3}, vcc")
        A(f"v_mov_b32 v{tmp+3}, 0x0c0c0c0c")
        A(f"v_bfe_u32 v{tmp}, v1, 1, 2")
        for r in range(4):
            A(f"v_cmp_eq_u32 vcc, {r}, v{tmp}")
            A(f"v_cndmask_b32 v{sel+r}, v{tmp+3}, v{tmp+1}, vcc")
            A(f"v_cndmask_b32 v{sel+4+r}, v{tmp+3}, v{tmp+2}, vcc")
    def frag(s, dst, src, par, sel):
        for r in range(4): s.A(f"v_perm_b32 v{dst+r}, v{src}, v{src}, v{sel+4*par+r}")

def gen(o):
    g = G(o); A = g.A
    LD = o.ld
    g.stamp(0)
    A("s_cmp_ge_u32 s2, 256"); A("s_cbranch_scc1 L_end")
    A("s_bfe_u32 s4, s2, 0x10002")
    A("s_mul_i32 s3, s4, 48")
    A("s_add_u32 s34, s0, s3"); A("s_addc_u32 s35, s1, 0")
    A("s_load_dwordx4 s[8:11], s[34:35], 0")
    A("s_load_dwordx4 s[12:15], s[34:35], 16")
    A("s_load_dwordx4 s[16:19], s[34:35], 32")
    A("s_load_dwordx4 s[20:23], s[0:1], 96")
    A("s_load_dwordx2 s[24:25], s[0:1], 112")
    A("v_lshrrev_b32 v4, 6, v0")
    A("v_and_b32 v1, 63, v0")
    A("v_readfirstlane_b32 s31, v4")
    A("s_and_b32 s5, s2, 3"); A("s_lshr_b32 s6, s2, 3"); A("s_lshr_b32 s7, s6, 3"); A("s_and_b32 s26, s6, 7")
    A("s_lshl_b32 s27, s5, 3"); A("s_add_u32 s27, s27, s26")
    A("s_lshl_b32 s28, s7, 3"); A("s_lshl_b32 s3, s5, 1"); A("s_add_u32 s28, s28, s3")
    A("s_lshr_b32 s3, s26, 2"); A("s_add_u32 s28, s28, s3")
    if o.hmap:
        A("s_lshl_b32 s63, s5, 2"); A("s_add_u32 s63, s63, s7"); A("s_lshl_b32 s63, s63, 1"); A("s_add_u32 s63, s63, s3")
    else:
        A("s_mov_b32 s63, s28")
    A("s_bfe_u32 s29, s26, 0x10001"); A("s_and_b32 s30, s26, 1")
    A("s_lshl_b32 s32, s5, 5"); A("s_add_u32 s32, s32, s6")
    A(f"v_mov_b32 v2, {L_FLAG}"); A("v_mov_b32 v3, 1")
    A("v_lshrrev_b32 v5, 3, v1")
    A("v_and_b32 v6, 7, v1")
    A("s_cmp_ge_u32 s31, 4"); A("s_cbranch_scc1 L_T")
    SEL = 8; XV = 16; FR = 28; ACC = 36; WQ = 100; UK = 180; UV = 212; WO = 100
    vWQ, vX, vUK, vWO, vFW, vQA = 40, 41, 42, 43, 44, 45
    A("s_lshl_b32 s3, s31, 3"); A(f"v_add_u32 v{vX}, s3, v5"); A(f"v_mul_u32_u24 v{vX}, 20, v{vX}")
    A(f"v_lshlrev_b32 v{vWQ}, 12, v{vX}"); A(f"v_lshl_add_u32 v{vWQ}, v6, 4, v{vWQ}")
    A(f"v_lshlrev_b32 v{vUK}, 16, v5"); A(f"v_lshl_add_u32 v{vUK}, v6, 4, v{vUK}")
    A("s_lshl_b32 s36, s63, 8"); A("s_lshl_b32 s3, s29, 7"); A("s_add_u32 s36, s36, s3")
    A("s_mul_i32 s37, s30, 640"); A("s_sub_u32 s38, 640, s37")
    A("s_lshl_b32 s39, s37, 12"); A("s_lshl_b32 s60, s38, 12")
    A("s_lshl_b32 s3, s30, 2"); A("s_add_u32 s3, s3, s31"); A("s_lshl_b32 s3, s3, 19"); A("s_add_u32 s61, s36, s3")
    A("s_waitcnt lgkmcnt(0)")
    g.stamp(1)
    A("s_mov_b32 s40, s8"); A("s_mov_b32 s41, s9"); A("s_mov_b32 s42, 1280"); A("s_mov_b32 s43, 0x20000")
    g.srd(44, 12, "s36", 5242880)
    for hf in range(2):
        A(f"buffer_load_dwordx4 v[{XV+6*hf}:{XV+6*hf+3}], v{vX}, s[40:43], s{37+hf} offen"); g.vmi("x")
        A(f"buffer_load_dword v{XV+6*hf+4}, v{vX}, s[40:43], s{37+hf} offen offset:16"); g.vmi("x")
    g.srd(48, 14, "s61", 4194304)
    seq = [("wq", n) for n in range(20)] + [("uk", n) for n in range(8)]
    pos = [0]
    def issue_p():
        if pos[0] >= len(seq): return
        k, n = seq[pos[0]]; pos[0] += 1
        if k == "wq":
            so = "s39" if n < 10 else "s60"
            A(f"buffer_load_dwordx4 v[{WQ+4*n}:{WQ+4*n+3}], v{vWQ}, s[44:47], {so} offen {LD}")
            A(f"s_add_u32 {so}, {so}, 8192")
        else:
            if n == 0: A("s_mov_b32 s39, 0")
            A(f"buffer_load_dwordx4 v[{UK+4*n}:{UK+4*n+3}], v{vUK}, s[48:51], s39 offen {LD}")
            A("s_add_u32 s39, s39, 8192")
        g.vmi((k, n))
        if pos[0] == len(seq):
            g.setflag(F_PISS, dyn=f"v{vFW}")
            g.stamp(2)
    A(f"s_lshl_b32 s3, s31, 2"); A(f"v_add_u32 v{vFW}, s3, v2")
    for _ in range(o.tw): issue_p()
    g.selectors(SEL, 46)
    A("s_barrier")
    g.srd(52, 16, "s61", 4194304)
    A("s_lshl_b32 s3, s63, 7"); A("s_lshl_b32 s62, s29, 6"); A("s_add_u32 s3, s3, s62"); A("s_lshl_b32 s62, s31, 4"); A("s_add_u32 s3, s3, s62")
    A("s_mul_i32 s62, s3, 1280")
    g.srd(56, 18, "s62", 5242880)
    A(f"v_lshrrev_b32 v46, 4, v1"); A(f"v_mul_u32_u24 v{vWO}, 5120, v46"); A("v_and_b32 v47, 15, v1"); A(f"v_lshl_add_u32 v{vWO}, v47, 4, v{vWO}")
    A("v_and_b32 v46, 16, v1"); A(f"v_lshl_add_u32 v{vQA}, v6, 5, v46"); A(f"v_add_u32 v{vQA}, {L_QACC}, v{vQA}")
    A("s_mov_b32 s40, s24"); A("s_mov_b32 s41, s25"); A(f"s_mov_b32 s42, {WS_END}")
    for n in range(20):
        g.vmwait(("wq", n))
        issue_p()
        hf, m = divmod(n, 10)
        f = FR + 4 * (n & 1)
        g.frag(f, XV + 6 * hf + (m >> 1), m & 1, SEL)
        A(f"v_mfma_f32_16x16x32_bf16 v[{ACC}:{ACC+3}], v[{f}:{f+3}], v[{WQ+4*n}:{WQ+4*n+3}], " + ("0" if n == 0 else f"v[{ACC}:{ACC+3}]"))
    while pos[0] < len(seq):
        g.vmlimit(o.tw - 1); issue_p()
    A("s_mov_b32 exec_lo, 0x00ff00ff"); A("s_mov_b32 exec_hi, 0xff00ff00")
    for r in range(4): A(f"ds_add_f32 v{vQA}, v{ACC+r} offset:{4*r}")
    g.setflag(F_Q, add=True)
    g.stamp(3)
    A(f"v_lshlrev_b32 v46, 5, v6"); A(f"v_add_u32 v46, {L_QACC}, v46")
    QF = 48
    def rdq():
        A(f"ds_read_b128 v[{QF}:{QF+3}], v46"); A(f"ds_read_b128 v[{QF+4}:{QF+7}], v46 offset:16")
    g.spin(F_Q, 4, extra=rdq)
    QP = 56; PP = 60
    for k in range(4): A(f"v_cvt_pk_bf16_f32 v{QP+k}, v{QF+2*k}, v{QF+2*k+1}")
    g.vmwait(("uk", 7))
    for k in range(4):
        for n in range(8):
            if k == 0: A(f"v_dot2_f32_bf16 v{PP+n}, v{UK+4*n}, v{QP}, 0")
            else: A(f"v_dot2c_f32_bf16 v{PP+n}, v{UK+4*n+k}, v{QP+k}")
    A("s_lshl_b32 s3, s4, 2"); A("s_add_u32 s3, s3, s7"); A("s_lshl_b32 s3, s3, 1"); A("s_add_u32 s3, s3, s29"); A("s_lshl_b32 s3, s3, 3")
    A("s_and_b32 s62, s28, 7"); A("s_add_u32 s3, s3, s62"); A("s_lshl_b32 s3, s3, 10")
    A("s_lshl_b32 s62, s30, 2"); A("s_add_u32 s62, s62, s31"); A("s_lshl_b32 s62, s62, 7"); A("s_add_u32 s62, s62, s3")
    A("v_lshlrev_b32 v46, 1, v1")
    A("v_and_b32 v47, 2, v1"); A("v_cmp_ne_u32 vcc, 0, v47")
    for n in range(4):
        A(f"v_add_f32_dpp v{PP+n}, v{PP+n}, v{PP+n} row_half_mirror row_mask:0xf bank_mask:0x5")
    for n in range(4):
        A(f"v_add_f32_dpp v{PP+n}, v{PP+n+4}, v{PP+n+4} row_half_mirror row_mask:0xf bank_mask:0xa")
    for n in range(4):
        A(f"v_add_f32_dpp v{PP+n}, v{PP+n}, v{PP+n} quad_perm:[2,3,0,1] row_mask:0xf bank_mask:0xf")
    for k in range(2): A(f"v_cndmask_b32 v{PP+k}, v{PP+k}, v{PP+k+2}, vcc")
    for k in range(2): A(f"v_add_f32_dpp v{PP+k}, v{PP+k}, v{PP+k} quad_perm:[1,0,3,2] row_mask:0xf bank_mask:0xf")
    A(f"v_cvt_pk_bf16_f32 v{PP}, v{PP}, v{PP+1}")
    g.spin(F_INV, 4)
    A("s_mov_b32 exec_lo, 0x55555555"); A("s_mov_b32 exec_hi, 0x55555555")
    A(f"buffer_store_dword v{PP}, v46, s[40:43], s62 offen sc1"); g.vmi("qa")
    A("s_mov_b64 exec, -1")
    g.stamp(4)
    A("s_lshl_b32 s3, s30, 1")
    for k in range(4):
        A(f"s_xor_b32 s{44+k}, s3, {k}"); A(f"s_mul_i32 s{44+k}, s{44+k}, 1280")
    g.spin(F_KISS, 1, dyn=f"v{vFW}", sleep=1)
    A("s_mov_b32 s39, 0")
    for n in range(8):
        g.vmlimit(o.tw2 - 1)
        A(f"buffer_load_dwordx4 v[{UV+4*n}:{UV+4*n+3}], v{vUK}, s[52:55], s39 offen {LD}"); g.vmi(("uv", n))
        A("s_add_u32 s39, s39, 8192")
    for k in range(4):
        for cb in range(5):
            g.vmlimit(o.tw2 - 1)
            d = WO + 4 * (5 * k + cb)
            A(f"buffer_load_dwordx4 v[{d}:{d+3}], v{vWO}, s[56:59], s{44+k} offen offset:{256*cb} {LD}"); g.vmi(("wo", k, cb))
    g.stamp(5)
    A(f"s_lshl_b32 s3, s31, 8"); A(f"v_lshl_add_u32 v46, v5, 5, s3"); A(f"v_add_u32 v46, {L_CC}, v46")
    A(f"v_add_u32 v{vQA}, {L_CXACC - L_QACC}, v{vQA}")
    g.spin(F_CCF, 1, dyn=f"v{vFW}", extra=rdq)
    g.stamp(6)
    for k in range(4): A(f"v_cvt_pk_bf16_f32 v{QP+k}, v{QF+2*k}, v{QF+2*k+1}")
    g.vmwait(("uv", 7))
    for n in range(8):
        f = FR + 4 * (n & 1)
        g.frag(f, QP + (n >> 1), n & 1, SEL)
        A(f"v_mfma_f32_16x16x32_bf16 v[{ACC}:{ACC+3}], v[{f}:{f+3}], v[{UV+4*n}:{UV+4*n+3}], " + ("0" if n == 0 else f"v[{ACC}:{ACC+3}]"))
    A("v_lshrrev_b32 v47, 4, v1"); A("s_lshl_b32 s3, s31, 6"); A("v_lshl_add_u32 v46, v47, 4, s3"); A(f"v_add_u32 v46, {L_CXACC}, v46")
    A("s_lshl_b32 s3, s30, 3"); A("v_add_u32 v47, s3, v46"); A("s_xor_b32 s3, s3, 8"); A("v_add_u32 v46, s3, v46")
    A("s_mov_b32 exec_lo, 0x00ff00ff"); A("s_mov_b32 exec_hi, 0xff00ff00")
    for r in range(4): A(f"ds_add_f32 v{vQA}, v{ACC+r} offset:{4*r}")
    g.setflag(F_CX, add=True)
    def rdc():
        A(f"ds_read_b64 v[{QF}:{QF+1}], v47"); A(f"ds_read_b64 v[{QF+2}:{QF+3}], v46")
    g.spin(F_CX, 4, extra=rdc)
    g.stamp(7)
    for k in range(2): A(f"v_cvt_pk_bf16_f32 v{QP+k}, v{QF+2*k}, v{QF+2*k+1}")
    OA = 60; F7 = 80
    for k in range(4): g.frag(F7 + 4 * k, QP + (k >> 1), k & 1, SEL)
    A("v_and_b32 v47, 15, v1"); A("v_and_b32 v46, 16, v1"); A("v_lshl_add_u32 v46, v47, 5, v46"); A("s_mul_i32 s3, s31, 2560"); A(f"v_add_u32 v46, s3, v46")
    A("s_mul_i32 s3, s31, 640"); A("v_lshl_add_u32 v47, v1, 4, s3")
    A("s_lshl_b32 s62, s4, 7"); A("s_add_u32 s62, s62, s32"); A("s_mul_i32 s62, s62, 2560"); A(f"s_add_u32 s62, s62, {OC}")
    for k in range(4):
        for cb in range(5):
            g.vmwait(("wo", k, cb))
            d = WO + 4 * (5 * k + cb); a = OA + 4 * cb
            A(f"v_mfma_f32_16x16x32_bf16 v[{a}:{a+3}], v[{F7+4*k}:{F7+4*k+3}], v[{d}:{d+3}], " + ("0" if k == 0 else f"v[{a}:{a+3}]"))
    g.stamp(8)
    A("s_mov_b32 exec_hi, 0")
    for cb in range(5): A(f"ds_write_b128 v46, v[{OA+4*cb}:{OA+4*cb+3}] offset:{L_OUTP+512*cb}")
    g.setflag(F_OP, add=True)
    def rdo():
        for w in range(4): A(f"ds_read_b128 v[{F7+4*w}:{F7+4*w+3}], v47 offset:{L_OUTP+2560*w}")
    g.spin(F_OP, 4, extra=rdo)
    for r in range(4): A(f"v_add_f32 v{F7+r}, v{F7+r}, v{F7+4+r}")
    for r in range(4): A(f"v_add_f32 v{F7+8+r}, v{F7+8+r}, v{F7+12+r}")
    for r in range(4): A(f"v_add_f32 v{F7+r}, v{F7+r}, v{F7+8+r}")
    A("s_mov_b32 exec_hi, 0xff")
    A(f"buffer_store_dwordx4 v[{F7}:{F7+3}], v47, s[40:43], s62 offen sc1")
    g.setflag(F_CPUB, add=True)
    g.stamp(9)
    if o.stamps:
        A("s_waitcnt vmcnt(0)"); g.stamp(10)
        for i in (11, 12, 13): A(f"s_mov_b64 s[{64+2*i}:{65+2*i}], 0")
        A("s_branch L_stamps")
    else:
        A("s_endpgm")
    g.vm = []
    A("L_T:")
    A("s_sub_u32 s31, s31, 4")
    SEL = 8; vFW = 7; SEN = 16; vL16 = 20; vK = 21; vQ = 22; vT0 = 23; vT1 = 24; vA = 25; vB = 26
    GA = 28
    QR = 52
    SA = 84
    PF = 92
    ON = 108
    LA = 112
    KF = 128
    OA = 52
    A(f"v_lshlrev_b32 v{vL16}, 4, v1")
    A(f"s_lshl_b32 s3, s31, 2"); A(f"v_add_u32 v{vFW}, s3, v2")
    for r in range(4): A(f"v_mov_b32 v{SEN+r}, 0")
    A("s_lshl_b32 s3, s31, 10"); A(f"v_add_u32 v46, s3, v{vL16}"); A(f"v_add_u32 v46, {L_FLAG}, v46")
    A("s_cmp_ge_u32 s31, 2"); A("s_cbranch_scc1 L_T_nz")
    A(f"ds_write_b128 v46, v[{SEN}:{SEN+3}]")
    A("L_T_nz:")
    for r in range(4): A(f"v_mov_b32 v{SEN+r}, -1")
    A("s_waitcnt lgkmcnt(0)")
    A("s_barrier")
    A("s_mov_b32 s40, s24"); A("s_mov_b32 s41, s25"); A(f"s_mov_b32 s42, {WS_END}"); A("s_mov_b32 s43, 0x20000")
    if o.pf:
        A("s_getpc_b64 s[36:37]")
        A("L_pc:")
        A(f"s_sub_u32 s36, s36, L_pc-{NAME}_kernel"); A("s_subb_u32 s37, s37, 0")
        A(f"s_and_b32 s3, s6, {o.pf-1}"); A("s_lshl_b32 s3, s3, 10"); A(f"v_add_u32 v46, s3, v{vL16}")
        A("s_cmp_lg_u32 s31, 3"); A("s_cbranch_scc1 L_T_npf")
        A(f"global_load_dwordx4 v[{GA}:{GA+3}], v46, s[36:37]")
        A("L_T_npf:")
    A("s_lshl_b32 s36, s4, 2"); A("s_add_u32 s36, s36, s7"); A("s_lshl_b32 s36, s36, 3")
    if o.inval:
        A("s_lshl_b32 s3, s31, 1"); A("s_add_u32 s3, s3, s36"); A("s_lshl_b32 s3, s3, 5"); A("s_add_u32 s3, s3, s27")
        A("s_lshl_b32 s38, s3, 3"); A(f"s_add_u32 s38, s38, {ST}")
        A("s_lshl_b32 s37, s3, 10"); A(f"s_add_u32 s37, s37, {OB}")
        A(f"buffer_store_dwordx4 v[{SEN}:{SEN+3}], v{vL16}, s[40:43], s37 offen sc1")
        A("s_add_u32 s37, s37, 32768")
        A(f"buffer_store_dwordx4 v[{SEN}:{SEN+3}], v{vL16}, s[40:43], s37 offen sc1")
        A("s_lshl_b32 s62, s4, 7"); A("s_add_u32 s62, s62, s32"); A("s_mul_i32 s62, s62, 2560"); A("s_mul_i32 s3, s31, 640"); A("s_add_u32 s62, s62, s3"); A(f"s_add_u32 s62, s62, {OC}")
        A("s_mov_b32 exec_hi, 0xff")
        A(f"buffer_store_dwordx4 v[{SEN}:{SEN+3}], v{vL16}, s[40:43], s62 offen sc1")
        A("s_lshl_b32 s3, s36, 1"); A("s_lshl_b32 s62, s29, 3"); A("s_add_u32 s3, s3, s62"); A("s_and_b32 s62, s28, 7"); A("s_add_u32 s3, s3, s62"); A("s_lshl_b32 s3, s3, 10")
        A("s_lshl_b32 s62, s30, 2"); A("s_add_u32 s62, s62, s31"); A("s_lshl_b32 s62, s62, 7"); A("s_add_u32 s62, s62, s3")
        A("s_mov_b64 exec, 0xff")
        A(f"buffer_store_dwordx4 v[{SEN}:{SEN+3}], v{vL16}, s[40:43], s62 offen sc1")
        A("v_lshlrev_b32 v46, 8, v1")
        A("s_mov_b64 exec, 3")
        A(f"buffer_store_dwordx2 v[{SEN}:{SEN+1}], v46, s[40:43], s38 offen sc1")
        A("s_mov_b64 exec, -1")
    g.selectors(SEL, 46)
    A("v_and_b32 v46, 15, v1"); A("v_lshrrev_b32 v47, 4, v1")
    A(f"v_mul_u32_u24 v{vQ}, {PITCH}, v46"); A(f"v_lshl_add_u32 v{vQ}, v47, 4, v{vQ}")
    A(f"s_mul_i32 s3, s31, {32*PITCH}"); A(f"v_add_u32 v{vK}, s3, v{vQ}"); A(f"v_add_u32 v{vQ}, {L_QI}, v{vQ}")
    A("v_lshrrev_b32 v48, 2, v1"); A(f"v_mul_u32_u24 v{vT0}, {PITCH}, v48"); A("v_and_b32 v48, 3, v1"); A(f"v_lshl_add_u32 v{vT0}, v48, 3, v{vT0}")
    A("s_lshl_b32 s3, s31, 8"); A(f"v_add_u32 v{vT0}, s3, v{vT0}"); A(f"v_add_u32 v{vT1}, {64*PITCH}, v{vT0}")
    for r in range(4): A(f"v_mov_b32 v{ON+r}, 0x3f803f80")
    A("s_lshl_b32 s3, s27, 17")
    g.srd(44, 10, "s3", 4194304)
    A("s_mov_b32 s48, s22"); A("s_mov_b32 s49, s23"); A("s_movk_i32 s50, 256"); A("s_mov_b32 s51, 0x20000")
    A("s_waitcnt vmcnt(0)")
    g.setflag(F_INV, add=True)
    g.stamp(1)
    A("s_mov_b32 s60, 0")
    A("s_cmp_lg_u32 s31, 0"); A("s_cbranch_scc1 L_T_arm_skip")
    if not o.arm: A("s_branch L_T_arm1_ok")
    g.spin(F_INV, 4)
    A("s_lshl_b32 s61, s4, 7"); A("s_add_u32 s3, s61, s32"); A("v_mov_b32 v46, s3")
    A("s_mov_b64 exec, 1")
    A("buffer_store_byte v3, v46, s[48:51], 0 offen sc1")
    A("s_mov_b64 exec, -1")
    A("v_and_b32 v47, 31, v1"); A("v_lshlrev_b32 v47, 2, v47")
    A("s_mov_b32 s33, 0x40000")
    A("L_T_arm1:")
    A("buffer_load_dword v48, v47, s[48:51], s61 offen sc1")
    A(f"ds_read_b32 v4, v{vFW} offset:{4*F_PISS}")
    A("s_waitcnt vmcnt(0) lgkmcnt(0)")
    A("v_cmp_ne_u32 vcc, 0x01010101, v48")
    A("s_cbranch_vccz L_T_arm1_ok")
    A("v_cmp_ne_u32 vcc, 0, v4")
    A("s_cbranch_vccnz L_T_arm_skip")
    A("s_sleep 2")
    A("s_sub_u32 s33, s33, 1"); A("s_cbranch_scc0 L_T_arm1")
    A("L_T_arm1_ok:")
    A("s_mov_b32 s60, 1")
    g.setflag(F_ARM)
    A("L_T_arm_skip:")
    g.stamp(2)
    g.spin(F_PISS, 1, dyn=f"v{vFW}", sleep=1)
    g.stamp(3)
    for qi in range(4):
        A(f"s_add_u32 s3, s7, {qi}"); A("s_and_b32 s3, s3, 3"); A("s_lshl_b32 s3, s3, 2"); A("s_add_u32 s3, s3, s31"); A("s_lshl_b32 s3, s3, 3")
        A("s_lshl_b32 s52, s3, 10"); A(f"s_mul_i32 s53, s3, {PITCH}")
        for k in range(8):
            g.vmlimit((o.tk if qi == 0 else o.tk2) - 1)
            A("s_mov_b32 m0, s53")
            A(f"s_add_u32 s53, s53, {PITCH}")
            A(f"buffer_load_dwordx4 v{vL16}, s[44:47], s52 offen {LD} lds"); g.vmi("kv")
            A("s_add_u32 s52, s52, 1024")
    g.setflag(F_KISS, dyn=f"v{vFW}")
    g.stamp(4)
    A("s_cmp_lg_u32 s31, 0"); A("s_cbranch_scc1 L_T_arm2_ok")
    A("s_cmp_lg_u32 s60, 0"); A("s_cbranch_scc1 L_T_arm2_ok")
    A("s_mov_b32 s33, 0x40000")
    A("L_T_arm2:")
    A("buffer_load_dword v48, v47, s[48:51], s61 offen sc1")
    A("s_waitcnt vmcnt(0)")
    A("v_cmp_ne_u32 vcc, 0x01010101, v48")
    A("s_cbranch_vccz L_T_arm2_set")
    A("s_sub_u32 s33, s33, 1"); A("s_cbranch_scc0 L_T_arm2")
    A("L_T_arm2_set:")
    g.setflag(F_ARM)
    A("L_T_arm2_ok:")
    g.spin(F_ARM, 1)
    A("s_lshl_b32 s52, s36, 1"); A("s_lshl_b32 s3, s31, 2"); A("s_add_u32 s52, s52, s3"); A("s_lshl_b32 s52, s52, 10")
    def gatherA():
        for n in range(4): A(f"buffer_load_dwordx4 v[{GA+4*n}:{GA+4*n+3}], v{vL16}, s[40:43], s52 offen offset:{1024*n} sc1")
    gatherA()
    for n in range(4): g.vmi("ga")
    g.vmwait("kv")
    g.setflag(F_KV, add=True)
    A(f"s_mul_i32 s3, s31, {4*PITCH}"); A(f"v_add_u32 v{vA}, s3, v{vL16}"); A(f"v_add_u32 v{vA}, {L_QI}, v{vA}")
    g.spin(F_KV, 4)
    g.stamp(5)
    for kk in range(16):
        for t in range(2):
            d = KF + 4 * (2 * kk + t)
            A(f"ds_read_b128 v[{d}:{d+3}], v{vK} offset:{16*t*PITCH + 64*kk}")
    def validate(first, n, lab_ok):
        A(f"v_max3_u32 v46, v{first}, v{first+1}, v{first+2}")
        A(f"v_max3_u32 v47, v{first+3}, v{first+4}, v{first+5}")
        k = 6; which = 46
        while k + 1 < n:
            A(f"v_max3_u32 v{which}, v{which}, v{first+k}, v{first+k+1}"); k += 2; which = 93 - which
        A("v_max_u32 v46, v46, v47")
        A("v_cmp_eq_u32 vcc, -1, v46")
        A(f"s_cbranch_vccz {lab_ok}")
    A("s_mov_b32 s33, 0x40000")
    A("L_T_ga:")
    A("s_waitcnt vmcnt(0)"); g.vm = []
    validate(GA, 16, "L_T_ga_ok")
    if o.sleepa: A(f"s_sleep {o.sleepa}")
    gatherA()
    A("s_sub_u32 s33, s33, 1"); A("s_cbranch_scc0 L_T_ga")
    A("L_T_ga_ok:")
    g.stamp(6)
    for n in range(4): A(f"ds_write_b128 v{vA}, v[{GA+4*n}:{GA+4*n+3}] offset:{n*PITCH}")
    g.setflag(F_QI, add=True)
    def rdq8():
        for kk in range(8): A(f"ds_read_b128 v[{QR+4*kk}:{QR+4*kk+3}], v{vQ} offset:{64*kk}")
    g.spin(F_QI, 4, extra=rdq8)
    vfr = [(ct, ks) for ct in range(8) for ks in range(4)]
    def rdv(idx, d):
        ct, ks = vfr[idx]
        base = vT0 if ks < 2 else vT1
        for hf in range(2):
            A(f"ds_read_b64_tr_b16 v[{d+2*hf}:{d+2*hf+1}], v{base} offset:{(32*(ks&1)+16*hf)*PITCH + 32*ct}")
    lg = []
    for kk in range(16):
        if kk >= 8:
            k = len(lg) - 1 - lg.index(("q", kk))
            A(f"s_waitcnt lgkmcnt({min(k,15)})"); lg = lg[len(lg) - min(k, 15):]
        q = QR + 4 * (kk & 7)
        for t in range(2):
            d = KF + 4 * (2 * kk + t)
            A(f"v_mfma_f32_16x16x32_bf16 v[{SA+4*t}:{SA+4*t+3}], v[{d}:{d+3}], v[{q}:{q+3}], " + ("0" if kk == 0 else f"v[{SA+4*t}:{SA+4*t+3}]"))
        if kk < 8:
            A(f"ds_read_b128 v[{q}:{q+3}], v{vQ} offset:{64*(kk+8)}"); lg.append(("q", kk + 8))
        if kk >= o.vstart:
            pass
    for idx in range(32): rdv(idx, KF + 4 * idx)
    for r in range(8): A(f"v_add_f32_dpp v{SA+r}, v{SA+r}, v{SA+r} row_ror:8 row_mask:0xf bank_mask:0xf")
    A(f"v_max3_f32 v46, v{SA}, v{SA+1}, v{SA+2}"); A(f"v_max3_f32 v47, v{SA+3}, v{SA+4}, v{SA+5}")
    A(f"v_max3_f32 v46, v46, v{SA+6}, v{SA+7}"); A("v_max_f32 v46, v46, v47")
    A("v_mov_b32 v47, v46"); A("v_permlane16_swap_b32 v46, v47"); A("v_max_f32 v46, v46, v47")
    A("v_mov_b32 v47, v46"); A("v_permlane32_swap_b32 v46, v47"); A("v_max_f32 v46, v46, v47")
    g.stamp(7)
    A(f"s_lshl_b32 s3, s31, 2"); A(f"v_add_u32 v47, s3, v{vL16}")
    A(f"ds_write_b32 v47, v46 offset:{L_MX - 131072}") if False else None
    A(f"v_add_u32 v48, {L_MX}, v{vL16}"); A(f"v_add_u32 v47, {L_MX}, v47")
    A("ds_write_b32 v47, v46")
    g.setflag(F_MX, add=True)
    def rdm(): A(f"ds_read_b128 v[{GA}:{GA+3}], v48")
    g.spin(F_MX, 4, extra=rdm)
    A(f"v_max3_f32 v46, v{GA}, v{GA+1}, v{GA+2}"); A(f"v_max_f32 v46, v46, v{GA+3}")
    A(f"s_mov_b32 s3, {SCALE}")
    A(f"v_mul_f32 v44, s3, v46")
    for r in range(8): A(f"v_fma_f32 v{SA+r}, v{SA+r}, s3, -v44")
    for r in range(8): A(f"v_exp_f32 v{SA+r}, v{SA+r}")
    for k in range(4): A(f"v_cvt_pk_bf16_f32 v{GA+k}, v{SA+2*k}, v{SA+2*k+1}")
    A("s_lshl_b32 s3, s31, 10"); A(f"v_add_u32 v48, {L_P}, v{vL16}"); A(f"v_add_u32 v47, s3, v48")
    A(f"ds_write_b128 v47, v[{GA}:{GA+3}]")
    g.setflag(F_P, add=True)
    A(f"v_lshlrev_b32 v{vB}, 15, v6"); A("v_and_b32 v46, 8, v1"); A(f"v_lshl_add_u32 v{vB}, v46, 3, v{vB}")
    A("v_and_b32 v46, 16, v1"); A(f"v_lshl_add_u32 v{vB}, v46, 1, v{vB}"); A("v_lshrrev_b32 v46, 5, v1"); A(f"v_lshl_add_u32 v{vB}, v46, 4, v{vB}")
    A("s_lshl_b32 s52, s36, 5"); A("s_add_u32 s52, s52, s27"); A("s_lshl_b32 s53, s52, 3"); A(f"s_add_u32 s53, s53, {ST}")
    A("s_lshl_b32 s52, s52, 10"); A("s_lshl_b32 s3, s31, 8"); A("s_add_u32 s52, s52, s3"); A(f"s_add_u32 s52, s52, {OB}")
    def rdp():
        for w in range(4): A(f"ds_read_b128 v[{PF+4*w}:{PF+4*w+3}], v48 offset:{1024*w}")
    g.spin(F_P, 4, extra=rdp)
    PK = 28
    def pack(ct):
        a = OA + 4 * ct
        A(f"v_cvt_pk_bf16_f32 v{PK+2*ct}, v{a}, v{a+1}"); A(f"v_cvt_pk_bf16_f32 v{PK+2*ct+1}, v{a+2}, v{a+3}")
    def ship(i):
        b = PK + 8 * i
        A(f"v_permlane16_swap_b32 v{b}, v{b+2}"); A(f"v_permlane16_swap_b32 v{b+1}, v{b+3}")
        A(f"v_permlane16_swap_b32 v{b+4}, v{b+6}"); A(f"v_permlane16_swap_b32 v{b+5}, v{b+7}")
        for r in range(4): A(f"v_mov_b32_dpp v{b+r}, v{b+4+r} quad_perm:[0,1,2,3] row_mask:0xf bank_mask:0xc")
        A(f"buffer_store_dwordx4 v[{b}:{b+3}], v{vB}, s[40:43], s52 offen offset:{128*i} sc1")
    for ks in range(4):
        A(f"v_mfma_f32_16x16x32_bf16 v[{LA}:{LA+3}], v[{ON}:{ON+3}], v[{PF+4*ks}:{PF+4*ks+3}], " + ("0" if ks == 0 else f"v[{LA}:{LA+3}]"))
    for ct in range(8):
        for ks in range(4):
            d = KF + 4 * (4 * ct + ks); a = OA + 4 * ct
            A(f"v_mfma_f32_16x16x32_bf16 v[{a}:{a+3}], v[{d}:{d+3}], v[{PF+4*ks}:{PF+4*ks+3}], " + ("0" if ks == 0 else f"v[{a}:{a+3}]"))
            if ct == 2 and ks == 0:
                A(f"v_mov_b32 v45, v{LA}"); A("v_lshlrev_b32 v46, 8, v1")
                A("s_cmp_lg_u32 s31, 0"); A("s_cbranch_scc1 L_T_nost")
                A("s_mov_b64 exec, 0xff")
                A("buffer_store_dwordx2 v[44:45], v46, s[40:43], s53 offen sc1")
                A("s_mov_b64 exec, -1")
                A("L_T_nost:")
            if ks == 3 and ct >= 2: pack(ct - 2)
            if ct == 6 and ks == 1: ship(0)
    pack(6); pack(7); ship(1)
    g.stamp(8)
    A(f"v_lshlrev_b32 v{vA}, 12, v5"); A(f"v_lshl_add_u32 v{vA}, v6, 4, v{vA}")
    A(f"v_lshlrev_b32 v{vB}, 5, v5")
    A("s_lshl_b32 s3, s4, 5"); A("s_add_u32 s3, s3, s28"); A("s_lshl_b32 s53, s3, 8"); A(f"s_add_u32 s53, s53, {ST}")
    A("s_lshl_b32 s52, s3, 15"); A("s_lshl_b32 s3, s30, 2"); A("s_add_u32 s3, s3, s31"); A("s_lshl_b32 s3, s3, 7"); A("s_add_u32 s52, s52, s3"); A(f"s_add_u32 s52, s52, {OB}")
    GB = 52; GS = 68
    A("s_mov_b32 s33, 0x40000")
    if o.sleepb0: A(f"s_sleep {o.sleepb0}")
    A("L_T_gb:")
    for k in range(2): A(f"buffer_load_dwordx4 v[{GS+4*k}:{GS+4*k+3}], v{vB}, s[40:43], s53 offen offset:{16*k} sc1")
    for n in range(4): A(f"buffer_load_dwordx4 v[{GB+4*n}:{GB+4*n+3}], v{vA}, s[40:43], s52 offen offset:{1024*n} sc1")
    A("s_waitcnt vmcnt(0)")
    validate(GB, 24, "L_T_gb_ok")
    if o.sleepb: A(f"s_sleep {o.sleepb}")
    A("s_sub_u32 s33, s33, 1"); A("s_cbranch_scc0 L_T_gb")
    A("L_T_gb_ok:")
    g.stamp(9)
    A(f"v_max3_f32 v46, v{GS}, v{GS+2}, v{GS+4}"); A(f"v_max_f32 v46, v46, v{GS+6}")
    A("v_max_f32_dpp v46, v46, v46 row_ror:8 row_mask:0xf bank_mask:0xf")
    A("v_mov_b32 v47, v46"); A("v_permlane16_swap_b32 v46, v47"); A("v_max_f32 v46, v46, v47")
    A("v_mov_b32 v47, v46"); A("v_permlane32_swap_b32 v46, v47"); A("v_max_f32 v46, v46, v47")
    for n in range(4): A(f"v_sub_f32 v{GS+2*n}, v{GS+2*n}, v46")
    for n in range(4): A(f"v_exp_f32 v{GS+2*n}, v{GS+2*n}")
    A(f"v_cvt_pk_bf16_f32 v28, v{GS}, v{GS+2}"); A(f"v_cvt_pk_bf16_f32 v29, v{GS+4}, v{GS+6}")
    for n in range(4): g.frag(76 + 4 * n, 28 + (n >> 1), n & 1, SEL)
    for n in range(4):
        A(f"v_mfma_f32_16x16x32_bf16 v[32:35], v[{76+4*n}:{76+4*n+3}], v[{GB+4*n}:{GB+4*n+3}], " + ("0" if n == 0 else "v[32:35]"))
    A(f"v_mul_f32 v46, v{GS}, v{GS+1}")
    for n in range(1, 4): A(f"v_fmac_f32 v46, v{GS+2*n}, v{GS+2*n+1}")
    A("v_add_f32_dpp v46, v46, v46 row_ror:8 row_mask:0xf bank_mask:0xf")
    A("v_mov_b32 v47, v46"); A("v_permlane16_swap_b32 v46, v47"); A("v_add_f32 v46, v46, v47")
    A("v_mov_b32 v47, v46"); A("v_permlane32_swap_b32 v46, v47"); A("v_add_f32 v46, v46, v47")
    A("v_rcp_f32 v46, v46")
    A("v_and_b32 v47, 16, v1"); A("v_lshl_add_u32 v47, v6, 5, v47"); A("s_lshl_b32 s3, s31, 8"); A(f"s_add_u32 s3, s3, {L_CC}"); A("v_add_u32 v47, s3, v47")
    for r in range(4): A(f"v_mul_f32 v{32+r}, v{32+r}, v46")
    A("s_mov_b32 exec_lo, 0x00ff00ff"); A("s_mov_b32 exec_hi, 0xff00ff00")
    for r in range(4): A(f"ds_add_f32 v47, v{32+r} offset:{4*r}")
    g.setflag(F_CCF, dyn=f"v{vFW}")
    g.stamp(10)
    A("s_cmp_lg_u32 s31, 0"); A("s_cbranch_scc1 L_T_end")
    A("s_cmp_ge_u32 s6, 10"); A("s_cbranch_scc1 L_T_end")
    A("s_mul_i32 s3, s5, 10"); A("s_add_u32 s3, s3, s6")
    A("v_lshrrev_b32 v46, 2, v1"); A(f"v_mul_u32_u24 v{vA}, 2560, v46"); A("v_and_b32 v46, 3, v1"); A(f"v_lshl_add_u32 v{vA}, v46, 4, v{vA}")
    A(f"s_mul_i32 s52, s4, {128*2560}"); A("s_lshl_b32 s53, s3, 6"); A("s_add_u32 s52, s52, s53"); A(f"s_add_u32 s52, s52, {OC}")
    for n in range(1, 8): A(f"s_add_u32 s{52+n}, s{51+n}, {16*2560}")
    A("s_mul_i32 s61, s4, 1280"); A("s_lshl_b32 s3, s3, 5"); A("s_add_u32 s61, s61, s3")
    A("s_mov_b32 s44, s20"); A("s_mov_b32 s45, s21"); A("s_movk_i32 s46, 2560"); A("s_mov_b32 s47, 0x20000")
    g.spin(F_CPUB, 4, sleep=1)
    GC = 52
    A("s_mov_b32 s33, 0x40000")
    A("L_T_gc:")
    for n in range(8): A(f"buffer_load_dwordx4 v[{GC+4*n}:{GC+4*n+3}], v{vA}, s[40:43], s{52+n} offen sc1")
    A("s_waitcnt vmcnt(0)")
    validate(GC, 32, "L_T_gc_ok")
    A("s_sub_u32 s33, s33, 1"); A("s_cbranch_scc0 L_T_gc")
    A("L_T_gc_ok:")
    g.stamp(11)
    for st in (16, 8, 4):
        for k in range(st): A(f"v_add_f32 v{GC+k}, v{GC+k}, v{GC+st+k}")
    for r in range(4): A(f"v_add_f32_dpp v{GC+r}, v{GC+r}, v{GC+r} row_ror:4 row_mask:0xf bank_mask:0xf")
    for r in range(4): A(f"v_add_f32_dpp v{GC+r}, v{GC+r}, v{GC+r} row_ror:8 row_mask:0xf bank_mask:0xf")
    for sw in ("16", "32"):
        for r in range(4): A(f"v_mov_b32 v{GC+4+r}, v{GC+r}")
        for r in range(4): A(f"v_permlane{sw}_swap_b32 v{GC+r}, v{GC+4+r}")
        for r in range(4): A(f"v_add_f32 v{GC+r}, v{GC+r}, v{GC+4+r}")
    A(f"v_cvt_pk_bf16_f32 v{GC}, v{GC}, v{GC+1}"); A(f"v_cvt_pk_bf16_f32 v{GC+1}, v{GC+2}, v{GC+3}")
    A("v_lshlrev_b32 v46, 3, v1")
    A("s_mov_b64 exec, 15")
    A(f"buffer_store_dwordx2 v[{GC}:{GC+1}], v46, s[44:47], s61 offen")
    if o.stamps:
        A("s_waitcnt vmcnt(0)"); g.stamp(12)
        A("s_branch L_stamps")
        A("L_T_end:")
        A("s_mov_b64 s[86:87], 0"); A("s_mov_b64 s[88:89], 0")
        A("L_stamps:")
        A("s_mov_b64 s[90:91], 0")
        A("s_mov_b64 exec, 1")
        A("s_waitcnt lgkmcnt(0)")
        A("v_lshrrev_b32 v2, 6, v0"); A("s_lshl_b32 s3, s2, 3"); A("v_add_u32 v2, s3, v2"); A("v_mul_u32_u24 v2, 112, v2")
        A("s_add_u32 s40, s24, 0x8000000"); A("s_addc_u32 s41, s25, 0"); A("s_mov_b32 s42, 0x1000000"); A("s_mov_b32 s43, 0x20000")
        for i in range(14):
            A(f"v_mov_b32 v4, s{64+2*i}"); A(f"v_mov_b32 v5, s{65+2*i}")
            A(f"buffer_store_dwordx2 v[4:5], v2, s[40:43], 0 offen offset:{8*i}")
            A("s_nop 1")
    else:
        A("L_T_end:")
    A("L_end:")
    A("s_endpgm")
    lines, nn = hz.fix([l for l in g.L if l is not None])
    body = "\n".join(("" if l.endswith(":") else "    ") + l for l in lines)
    pad = f"\n.p2align 8\n.fill {max(0, o.pf)*256}-((.-{NAME}_kernel)>>2), 4, 0xbf800000" if False else ""
    txt = (HDR + f"; @launch grid=(256,1,1) block=(512,1,1) lds={L_END}\n"
        ".amdgcn_target \"amdgcn-amd-amdhsa--gfx950\"\n.text\n"
        f".globl {NAME}_kernel\n.p2align 8\n.type {NAME}_kernel,@function\n{NAME}_kernel:\n" + body + "\n"
        + (f".org {NAME}_kernel+{o.pf*1024}, 0\n" if o.pf else "") +
        ".section .rodata,\"a\"\n.p2align 6\n"
        f".amdhsa_kernel {NAME}_kernel\n  .amdhsa_next_free_vgpr 256\n  .amdhsa_next_free_sgpr 96\n"
        "  .amdhsa_accum_offset 256\n  .amdhsa_group_segment_fixed_size 0\n  .amdhsa_kernarg_size 120\n"
        "  .amdhsa_user_sgpr_count 2\n  .amdhsa_user_sgpr_kernarg_segment_ptr 1\n  .amdhsa_system_sgpr_workgroup_id_x 1\n"
        ".end_amdhsa_kernel\n")
    return txt, nn

def parse(argv):
    ap = argparse.ArgumentParser()
    ap.add_argument("-o", default="k.s")
    ap.add_argument("--stamps", type=int, default=0)
    ap.add_argument("--ld", default="")
    ap.add_argument("--tw", type=int, default=7)
    ap.add_argument("--tw2", type=int, default=6)
    ap.add_argument("--tk", type=int, default=7)
    ap.add_argument("--tk2", type=int, default=8)
    ap.add_argument("--inval", type=int, default=1)
    ap.add_argument("--hmap", type=int, default=1)
    ap.add_argument("--arm", type=int, default=1)
    ap.add_argument("--pf", type=int, default=16)
    ap.add_argument("--sleepa", type=int, default=2)
    ap.add_argument("--sleepb0", type=int, default=0)
    ap.add_argument("--sleepb", type=int, default=2)
    ap.add_argument("--vstart", type=int, default=99)
    return ap.parse_args(argv)
if __name__ == "__main__":
    o = parse(sys.argv[1:])
    txt, nn = gen(o)
    open(o.o, "w").write(txt)
    print("written", o.o, "nops inserted", nn)
```

```python
import sys, argparse
sys.path.insert(0, "gen")
import hz
NAME = "concat_heads__compressed_kv_cla__compressed_kv_cla__decode"
HDR = open("cdna_kernels/%s.s.ref" % NAME).read().split("; Override launch")[0]

QA = 0x0
ST = 0x10000 + 0x10000
FLA = 0x30000
FLB = 0x38000
OC = 0x40000
OB = 0x100000
WS_END = 0x300000
PITCH = 1056
L_KV = 0
L_QI = 128 * PITCH
L_MISC = L_QI + 16 * PITCH
L_QACC = L_MISC
L_CXACC = L_MISC + 1024
L_CC = L_MISC + 2048
L_MX = L_MISC + 3072
L_P = L_MISC + 4096
L_END = L_P + 4096
L_OUTP = 0
SCALE = 0x3e0293ee
NST = 12

class G:
    def __init__(s, opt):
        s.L = []; s.o = opt; s.vm = []; s.nlab = 0
    def A(s, t): s.L.append(t)
    def vmi(s, tag): s.vm.append(tag)
    def vmwait(s, tag):
        if tag not in s.vm: return
        k = len(s.vm) - 1 - max(i for i, t in enumerate(s.vm) if t == tag)
        s.A(f"s_waitcnt vmcnt({k})")
        s.vm = s.vm[len(s.vm) - k:]
    def vmlimit(s, k):
        if len(s.vm) > k:
            s.A(f"s_waitcnt vmcnt({k})"); s.vm = s.vm[len(s.vm) - k:]
    def stamp(s, i):
        if s.o.stamps: s.A(f"s_memrealtime s[{72+2*i}:{73+2*i}]")
    def srd(s, d, base, off_sreg, size):
        s.A(f"s_add_u32 s{d}, s{base}, {off_sreg}")
        s.A(f"s_addc_u32 s{d+1}, s{base+1}, 0")
        s.A(f"s_sub_u32 s{d+2}, {size}, {off_sreg}")
        s.A(f"s_mov_b32 s{d+3}, 0x20000")
    def selectors(s, sel, tmp):
        A = s.A
        A(f"v_and_b32 v{tmp}, 1, v1")
        A(f"v_cmp_eq_u32 vcc, 1, v{tmp}")
        A(f"v_mov_b32 v{tmp+1}, 0x0c0c0100"); A(f"v_mov_b32 v{tmp+2}, 0x01000c0c")
        A(f"v_cndmask_b32 v{tmp+1}, v{tmp+1}, v{tmp+2}, vcc")
        A(f"v_mov_b32 v{tmp+2}, 0x0c0c0302"); A(f"v_mov_b32 v{tmp+3}, 0x03020c0c")
        A(f"v_cndmask_b32 v{tmp+2}, v{tmp+2}, v{tmp+3}, vcc")
        A(f"v_mov_b32 v{tmp+3}, 0x0c0c0c0c")
        A(f"v_bfe_u32 v{tmp}, v1, 1, 2")
        for r in range(4):
            A(f"v_cmp_eq_u32 vcc, {r}, v{tmp}")
            A(f"v_cndmask_b32 v{sel+r}, v{tmp+3}, v{tmp+1}, vcc")
            A(f"v_cndmask_b32 v{sel+4+r}, v{tmp+3}, v{tmp+2}, vcc")
    def frag(s, dst, src, par, sel):
        for r in range(4): s.A(f"v_perm_b32 v{dst+r}, v{src}, v{src}, v{sel+4*par+r}")
    def fold(s, d, t, n=4):
        for r in range(n): s.A(f"v_mov_b32 v{t+r}, v{d+r}")
        for r in range(n): s.A(f"v_permlane32_swap_b32 v{d+r}, v{t+r}")
        for r in range(n): s.A(f"v_add_f32_dpp v{d+r}, v{t+r}, v{d+r} row_ror:8 row_mask:0xf bank_mask:0xf")
    def mfma(s, d, a, b, first):
        s.A(f"v_mfma_f32_16x16x32_bf16 v[{d}:{d+3}], v[{a}:{a+3}], v[{b}:{b+3}], " + ("0" if first else f"v[{d}:{d+3}]"))
    def validate(s, first, n, lab_ok):
        A = s.A
        A(f"v_max3_u32 v46, v{first}, v{first+1}, v{first+2}")
        A(f"v_max3_u32 v47, v{first+3}, v{first+4}, v{first+5}")
        k = 6; which = 46
        while k + 1 < n:
            A(f"v_max3_u32 v{which}, v{which}, v{first+k}, v{first+k+1}"); k += 2; which = 93 - which
        A("v_max_u32 v46, v46, v47")
        A("v_cmp_eq_u32 vcc, -1, v46")
        A(f"s_cbranch_vccz {lab_ok}")
    def armcheck(s, tag, fl, mode, again=True):
        A = s.A
        if not s.o.arm: return
        A(f"s_lshl_b32 s52, s4, 14"); A(f"s_add_u32 s52, s52, {fl}"); A("s_lshl_b32 s67, s4, 7")
        if mode == "A":
            A("s_lshl_b32 s3, s29, 6"); A("v_add_u32 v37, s3, v1")
        elif mode == "T":
            A("v_and_b32 v37, 31, v1"); A("s_or_b32 s3, s5, 1"); A("s_and_b32 s3, s3, 3"); A("s_lshr_b32 s54, s5, 1"); A("s_lshl_b32 s3, s54, 1"); A("s_add_u32 s3, s3, 1")
            A("v_lshl_add_u32 v37, v37, 2, s3")
        else:
            A("v_lshlrev_b32 v37, 1, v1")
        A("v_lshrrev_b32 v36, 5, v37"); A("v_lshlrev_b32 v36, 3, v36"); A("v_lshlrev_b32 v37, 7, v37")
        A("s_mov_b32 s33, 0x40000")
        A(f"L_{tag}_arm:")
        A(f"buffer_load_dwordx2 v[32:33], v36, s[48:51], s67 offen sc1")
        A(f"buffer_load_dwordx2 v[28:29], v37, s[40:43], s52 offen sc1")
        A("s_waitcnt vmcnt(0)")
        A("v_cmp_ne_u64 vcc, v[28:29], v[32:33]"); A("v_cmp_eq_u32 s[70:71], 0, v32")
        A("s_nop 0")
        A("s_or_b64 vcc, vcc, s[70:71]")
        A(f"s_cbranch_vccz L_{tag}_arm_ok")
        A(f"s_sleep {s.o.sleepf}")
        A("s_sub_u32 s33, s33, 1"); A(f"s_cbranch_scc0 L_{tag}_arm")
        A(f"L_{tag}_arm_ok:")
    def fin(s):
        if s.o.stamps: s.A("s_branch L_stamps")
        else: s.A("s_endpgm")

def gen(o):
    g = G(o); A = g.A
    LD = o.ld
    if o.stamps:
        for i in range(1, NST): A(f"s_mov_b64 s[{72+2*i}:{73+2*i}], 0")
    g.stamp(0)
    A("s_cmp_ge_u32 s2, 256"); A("s_cbranch_scc1 L_end")
    A("s_bfe_u32 s4, s2, 0x10002")
    A("s_mul_i32 s3, s4, 48")
    A("s_add_u32 s34, s0, s3"); A("s_addc_u32 s35, s1, 0")
    A("s_load_dwordx4 s[8:11], s[34:35], 0")
    A("s_load_dwordx4 s[12:15], s[34:35], 16")
    A("s_load_dwordx4 s[16:19], s[34:35], 32")
    A("s_load_dwordx4 s[20:23], s[0:1], 96")
    A("s_load_dwordx2 s[24:25], s[0:1], 112")
    A("v_lshrrev_b32 v4, 6, v0")
    A("v_and_b32 v1, 63, v0")
    A("v_readfirstlane_b32 s31, v4")
    A("s_and_b32 s5, s2, 3"); A("s_lshr_b32 s6, s2, 3")
    A("s_lshl_b32 s28, s5, 3"); A("s_lshr_b32 s3, s6, 2"); A("s_add_u32 s28, s28, s3")
    A("s_bfe_u32 s29, s6, 0x10001"); A("s_and_b32 s30, s6, 1")
    A("v_lshrrev_b32 v5, 3, v1"); A("v_and_b32 v6, 7, v1")
    A("s_lshl_b32 s36, s28, 8"); A("s_lshl_b32 s3, s29, 7"); A("s_add_u32 s36, s36, s3")
    A("s_lshl_b32 s26, s4, 5"); A("s_add_u32 s26, s26, s28")
    A("s_cmp_ge_u32 s31, 4"); A("s_cbranch_scc1 L_S")
    SEL = 8; XV = 16; FR = 28; ACC = 36; WQ = 100; UK = 180; WO = 100
    vWQ, vX, vUK, vWO, vQA, vL16 = 40, 41, 42, 43, 45, 7
    A("s_lshl_b32 s3, s31, 3"); A(f"v_add_u32 v{vX}, s3, v5"); A(f"v_mul_u32_u24 v{vX}, 20, v{vX}")
    A(f"v_lshlrev_b32 v{vWQ}, 12, v{vX}"); A(f"v_lshl_add_u32 v{vWQ}, v6, 4, v{vWQ}")
    A(f"v_lshlrev_b32 v{vUK}, 16, v5"); A(f"v_lshl_add_u32 v{vUK}, v6, 4, v{vUK}")
    A("s_mul_i32 s37, s30, 640"); A("s_sub_u32 s38, 640, s37")
    A("s_lshl_b32 s39, s37, 12"); A("s_lshl_b32 s60, s38, 12")
    A("s_lshl_b32 s27, s30, 2"); A("s_add_u32 s27, s27, s31"); A("s_lshl_b32 s3, s27, 19"); A("s_add_u32 s61, s36, s3")
    A("s_waitcnt lgkmcnt(0)")
    g.stamp(1)
    A("s_mov_b32 s40, s8"); A("s_mov_b32 s41, s9"); A("s_mov_b32 s42, 1280"); A("s_mov_b32 s43, 0x20000")
    g.srd(44, 12, "s36", 5242880)
    for hf in range(2):
        A(f"buffer_load_dwordx4 v[{XV+6*hf}:{XV+6*hf+3}], v{vX}, s[40:43], s{37+hf} offen"); g.vmi("x")
        A(f"buffer_load_dword v{XV+6*hf+4}, v{vX}, s[40:43], s{37+hf} offen offset:16"); g.vmi("x")
    g.srd(48, 14, "s61", 4194304)
    seq = [("wq", n) for n in range(20)] + [("uk", n) for n in range(8)]
    pos = [0]
    def issue_p():
        if pos[0] >= len(seq): return
        k, n = seq[pos[0]]; pos[0] += 1
        if k == "wq":
            so = "s39" if n < 10 else "s60"
            A(f"buffer_load_dwordx4 v[{WQ+4*n}:{WQ+4*n+3}], v{vWQ}, s[44:47], {so} offen {LD}")
            A(f"s_add_u32 {so}, {so}, 8192")
        else:
            if n == 0: A("s_mov_b32 s39, 0")
            A(f"buffer_load_dwordx4 v[{UK+4*n}:{UK+4*n+3}], v{vUK}, s[48:51], s39 offen {LD}")
            A("s_add_u32 s39, s39, 8192")
        g.vmi((k, n))
        if pos[0] == len(seq): g.stamp(2)
    for _ in range(o.tw): issue_p()
    g.selectors(SEL, 46)
    A("v_and_b32 v46, 16, v1"); A(f"v_lshl_add_u32 v{vQA}, v6, 5, v46"); A("s_lshl_b32 s3, s31, 8"); A(f"s_add_u32 s3, s3, {L_QACC}"); A(f"v_add_u32 v{vQA}, s3, v{vQA}")
    A(f"v_lshlrev_b32 v{vL16}, 4, v1")
    A("s_mov_b32 s40, s24"); A("s_mov_b32 s41, s25"); A(f"s_mov_b32 s42, {WS_END}")
    A("s_lshl_b32 s62, s26, 1"); A("s_add_u32 s62, s62, s29"); A("s_lshl_b32 s62, s62, 3"); A("s_add_u32 s62, s62, s27"); A("s_lshl_b32 s62, s62, 7")
    A("s_lshl_b32 s3, s28, 17")
    g.srd(52, 10, "s3", 4194304)
    A("s_lshl_b32 s3, s28, 7"); A("s_lshl_b32 s63, s29, 6"); A("s_add_u32 s3, s3, s63"); A("s_lshl_b32 s63, s31, 4"); A("s_add_u32 s3, s3, s63")
    A("s_mul_i32 s63, s3, 1280")
    g.srd(56, 18, "s63", 5242880)
    A(f"v_lshrrev_b32 v46, 4, v1"); A(f"v_mul_u32_u24 v{vWO}, 5120, v46"); A("v_and_b32 v47, 15, v1"); A(f"v_lshl_add_u32 v{vWO}, v47, 4, v{vWO}")
    A("s_lshl_b32 s64, s29, 2"); A("s_add_u32 s64, s64, s31"); A("s_xor_b32 s65, s64, 4"); A("s_lshl_b32 s64, s64, 14"); A("s_lshl_b32 s65, s65, 14")
    A(f"s_mul_i32 s66, s31, {32*PITCH}")
    for n in range(20):
        g.vmwait(("wq", n))
        issue_p()
        hf, m = divmod(n, 10)
        f = FR + 4 * (n & 1)
        g.frag(f, XV + 6 * hf + (m >> 1), m & 1, SEL)
        g.mfma(ACC, f, WQ + 4 * n, n == 0)
    while pos[0] < len(seq):
        g.vmlimit(o.tw - 1); issue_p()
    A(f"v_lshlrev_b32 v46, 5, v6"); A(f"v_add_u32 v46, {L_QACC}, v46")
    g.fold(ACC, FR)
    A("s_mov_b64 exec, 0x00ff00ff")
    A(f"ds_write_b128 v{vQA}, v[{ACC}:{ACC+3}]")
    A("s_mov_b64 exec, -1")
    A("s_cmp_eq_u32 s30, 0"); A("s_cbranch_scc1 L_PU")
    vm_save = list(g.vm)
    QF = 48; QP = 56; PP = 60
    def p_tail(nxt, depth):
        def step():
            g.vmlimit(depth - 1); nxt()
        step()
        A("s_waitcnt lgkmcnt(0)")
        A("s_barrier")
        g.stamp(3)
        for w in range(4):
            A(f"ds_read_b128 v[{68+8*w}:{71+8*w}], v46 offset:{256*w}"); A(f"ds_read_b128 v[{72+8*w}:{75+8*w}], v46 offset:{256*w+16}")
        A("v_lshlrev_b32 v46, 1, v1")
        A("v_and_b32 v47, 2, v1"); A("v_cmp_ne_u32 vcc, 0, v47")
        step()
        A("s_waitcnt lgkmcnt(0)")
        for k in range(8): A(f"v_add_f32 v{68+k}, v{68+k}, v{76+k}")
        for k in range(8): A(f"v_add_f32 v{84+k}, v{84+k}, v{92+k}")
        for k in range(8): A(f"v_add_f32 v{QF+k}, v{68+k}, v{84+k}")
        for k in range(4): A(f"v_cvt_pk_bf16_f32 v{QP+k}, v{QF+2*k}, v{QF+2*k+1}")
        while ("uk", 7) in g.vm: step()
        for k in range(4):
            for n in range(8):
                if k == 0: A(f"v_dot2_f32_bf16 v{PP+n}, v{UK+4*n}, v{QP}, 0")
                else: A(f"v_dot2c_f32_bf16 v{PP+n}, v{UK+4*n+k}, v{QP+k}")
        for n in range(4): A(f"v_add_f32_dpp v{PP+n}, v{PP+n}, v{PP+n} row_half_mirror row_mask:0xf bank_mask:0x5")
        for n in range(4): A(f"v_add_f32_dpp v{PP+n}, v{PP+n+4}, v{PP+n+4} row_half_mirror row_mask:0xf bank_mask:0xa")
        for n in range(4): A(f"v_add_f32_dpp v{PP+n}, v{PP+n}, v{PP+n} quad_perm:[2,3,0,1] row_mask:0xf bank_mask:0xf")
        for k in range(2): A(f"v_cndmask_b32 v{PP+k}, v{PP+k}, v{PP+k+2}, vcc")
        for k in range(2): A(f"v_add_f32_dpp v{PP+k}, v{PP+k}, v{PP+k} quad_perm:[1,0,3,2] row_mask:0xf bank_mask:0xf")
        A(f"v_cvt_pk_bf16_f32 v{PP}, v{PP}, v{PP+1}")
        A("s_mov_b32 exec_lo, 0x55555555"); A("s_mov_b32 exec_hi, 0x55555555")
        A(f"buffer_store_dword v{PP}, v46, s[40:43], s62 offen sc1"); g.vmi("qa")
        A("s_mov_b64 exec, -1")
        g.stamp(4)
    kp = [0]
    def nxt_kv():
        k = kp[0]
        if k >= 32: return
        kp[0] += 1
        so = "s64" if k < 16 else "s65"
        A("s_mov_b32 m0, s66"); A(f"s_add_u32 s66, s66, {PITCH}")
        A(f"buffer_load_dwordx4 v{vL16}, s[52:55], {so} offen {LD} lds"); g.vmi("kv")
        A(f"s_add_u32 {so}, {so}, 1024")
    p_tail(nxt_kv, o.tk)
    vK = 21; vQ = 22; vT0 = 23; vT1 = 24; vB = 26
    GA = 28; QR = 48; SA = 112; PF = 92; ON = 108; LA = 120; KF = 128; OA = 48
    def t_addr():
        A("v_and_b32 v46, 15, v1"); A("v_lshrrev_b32 v47, 4, v1")
        A(f"v_mul_u32_u24 v{vQ}, {PITCH}, v46"); A(f"v_lshl_add_u32 v{vQ}, v47, 4, v{vQ}")
        A(f"s_mul_i32 s3, s31, {32*PITCH}"); A(f"v_add_u32 v{vK}, s3, v{vQ}"); A(f"v_add_u32 v{vQ}, {L_QI}, v{vQ}")
        A("v_lshrrev_b32 v44, 2, v1"); A(f"v_mul_u32_u24 v{vT0}, {PITCH}, v44"); A("v_and_b32 v44, 3, v1"); A(f"v_lshl_add_u32 v{vT0}, v44, 3, v{vT0}")
        A("s_lshl_b32 s3, s31, 8"); A(f"v_add_u32 v{vT0}, s3, v{vT0}"); A(f"v_add_u32 v{vT1}, {64*PITCH}, v{vT0}")
        A(f"v_lshlrev_b32 v{vB}, 15, v46"); A("v_and_b32 v44, 16, v1"); A(f"v_lshl_add_u32 v{vB}, v44, 1, v{vB}")
        A("v_lshrrev_b32 v44, 5, v1"); A(f"v_lshl_add_u32 v{vB}, v44, 4, v{vB}")
        A("s_lshl_b32 s60, s4, 1"); A("s_add_u32 s60, s60, s29"); A("s_lshl_b32 s60, s60, 9"); A("s_add_u32 s60, s60, s28")
        A("s_lshl_b32 s61, s4, 1"); A("s_add_u32 s61, s61, s29"); A("s_lshl_b32 s61, s61, 5"); A("s_add_u32 s61, s61, s28"); A("s_lshl_b32 s61, s61, 2"); A("s_add_u32 s61, s61, s31")
        A("s_lshl_b32 s61, s61, 7"); A(f"s_add_u32 s61, s61, {ST}")
        A("s_lshl_b32 s60, s60, 10"); A("s_lshl_b32 s3, s31, 8"); A("s_add_u32 s60, s60, s3"); A(f"s_add_u32 s60, s60, {OB}")
        A(f"v_add_u32 v27, {L_MX}, v{vL16}"); A("s_lshl_b32 s3, s31, 2"); A("v_add_u32 v25, s3, v27")
        A(f"v_add_u32 v20, {L_P}, v{vL16}"); A("s_lshl_b32 s3, s31, 10"); A("v_add_u32 v19, s3, v20")
        A("v_lshlrev_b32 v18, 3, v1")
    done_addr = False
    while kp[0] < 32:
        if kp[0] == 32 - o.early: A("s_barrier")
        g.vmlimit((o.tk if kp[0] < 16 else o.tk2) - 1); nxt_kv()
        if not done_addr: t_addr(); done_addr = True
    if not o.early: A("s_barrier")
    g.stamp(5)
    A("s_waitcnt vmcnt(0)"); g.vm = []
    g.stamp(6)
    for kk in range(16):
        for t in range(2):
            d = KF + 4 * (2 * kk + t)
            A(f"ds_read_b128 v[{d}:{d+3}], v{vK} offset:{16*t*PITCH + 64*kk}")
    A("s_barrier")
    g.stamp(7)
    vfr = [(ct, ks) for ct in range(8) for ks in range(4)]
    lg = []
    def lgw(tag):
        if tag not in lg: return
        k = len(lg) - 1 - lg.index(tag)
        A(f"s_waitcnt lgkmcnt({min(k,15)})"); del lg[:len(lg) - min(k, 15)]
    vi = [0]
    def rdv():
        idx = vi[0]
        if idx >= 32: return
        vi[0] += 1
        ct, ks = vfr[idx]; d = KF + 4 * idx
        base = vT0 if ks < 2 else vT1
        for hf in range(2):
            A(f"ds_read_b64_tr_b16 v[{d+2*hf}:{d+2*hf+1}], v{base} offset:{(32*(ks&1)+16*hf)*PITCH + 32*ct}"); lg.append(("v", idx))
    def rdq(kk):
        A(f"ds_read_b128 v[{QR+4*kk}:{QR+4*kk+3}], v{vQ} offset:{64*kk}"); lg.append(("q", kk))
    for kk in range(8): rdq(kk)
    for kk in range(16):
        lgw(("q", kk))
        for t in range(2): g.mfma(SA + 4 * t, KF + 4 * (2 * kk + t), QR + 4 * kk, kk == 0)
        if kk < 8: rdq(kk + 8)
        elif kk >= 8: rdv(); rdv()
    for r in range(4): A(f"v_mov_b32 v{ON+r}, 0x3f803f80")
    rdv(); rdv()
    A(f"v_max3_f32 v46, v{SA}, v{SA+1}, v{SA+2}"); A(f"v_max3_f32 v47, v{SA+3}, v{SA+4}, v{SA+5}")
    A(f"v_max3_f32 v46, v46, v{SA+6}, v{SA+7}"); A("v_max_f32 v46, v46, v47")
    A("v_mov_b32 v47, v46"); A("v_permlane16_swap_b32 v46, v47"); A("v_max_f32 v46, v46, v47")
    A("v_mov_b32 v47, v46"); A("v_permlane32_swap_b32 v46, v47"); A("v_max_f32 v46, v46, v47")
    A("ds_write_b32 v25, v46")
    A("s_waitcnt lgkmcnt(0)"); lg.clear()
    A("s_barrier")
    A(f"ds_read_b128 v[{GA}:{GA+3}], v27"); lg.append("mx")
    for _ in range(6): rdv()
    lgw("mx")
    A(f"v_max3_f32 v46, v{GA}, v{GA+1}, v{GA+2}"); A(f"v_max_f32 v46, v46, v{GA+3}")
    A(f"s_mov_b32 s3, {SCALE}")
    A(f"v_mul_f32 v44, s3, v46")
    for r in range(8): A(f"v_fma_f32 v{SA+r}, v{SA+r}, s3, -v44")
    for r in range(8): A(f"v_exp_f32 v{SA+r}, v{SA+r}")
    for k in range(4): A(f"v_cvt_pk_bf16_f32 v{GA+k}, v{SA+2*k}, v{SA+2*k+1}")
    A(f"ds_write_b128 v19, v[{GA}:{GA+3}]")
    A("s_waitcnt lgkmcnt(0)"); lg.clear()
    A("s_barrier")
    g.stamp(8)
    for w in range(4): A(f"ds_read_b128 v[{PF+4*w}:{PF+4*w+3}], v20 offset:{1024*w}"); lg.append(("p", w))
    while vi[0] < 32: rdv()
    PK = 28
    def pack(ct):
        a = OA + 4 * ct
        A(f"v_cvt_pk_bf16_f32 v{PK+2*ct}, v{a}, v{a+1}"); A(f"v_cvt_pk_bf16_f32 v{PK+2*ct+1}, v{a+2}, v{a+3}")
    def ship(p):
        b = PK + 4 * p
        A(f"v_permlane16_swap_b32 v{b}, v{b+2}"); A(f"v_permlane16_swap_b32 v{b+1}, v{b+3}")
        A(f"buffer_store_dwordx4 v[{b}:{b+3}], v{vB}, s[40:43], s60 offen offset:{64*p} sc1")
    for ct in range(8):
        for ks in range(4):
            lgw(("p", ks)); lgw(("v", 4 * ct + ks))
            g.mfma(OA + 4 * ct, KF + 4 * (4 * ct + ks), PF + 4 * ks, ks == 0)
            if ct == 0 and ks == 3:
                for k2 in range(4): g.mfma(LA, ON, PF + 4 * k2, k2 == 0)
            if ct == 3 and ks == 1: A(f"v_mov_b32 v45, v{LA}")
            if ks == 3 and ct >= 2: pack(ct - 2)
            if ks == 1 and ct in (4, 6): ship((ct - 4) // 2)
    pack(6); ship(2); pack(7); ship(3)
    A("s_mov_b64 exec, 0xffff")
    A("buffer_store_dwordx2 v[44:45], v18, s[40:43], s61 offen sc1")
    A("s_mov_b64 exec, -1")
    g.stamp(9)
    A("s_cmp_lg_u32 s31, 0"); A("s_cbranch_scc1 L_fin")
    A("s_cmp_ge_u32 s6, 20"); A("s_cbranch_scc1 L_fin")
    A("s_mul_i32 s3, s5, 10"); A("s_lshr_b32 s52, s6, 1"); A("s_add_u32 s3, s3, s52")
    A("v_lshrrev_b32 v46, 2, v1"); A(f"v_mul_u32_u24 v25, 2560, v46"); A("v_and_b32 v46, 3, v1"); A(f"v_lshl_add_u32 v25, v46, 4, v25")
    A(f"s_mul_i32 s52, s4, {64*2560}"); A("s_lshl_b32 s53, s3, 6"); A("s_add_u32 s52, s52, s53"); A(f"s_add_u32 s52, s52, {OC}")
    for n in range(1, 4): A(f"s_add_u32 s{52+n}, s{51+n}, {16*2560}")
    A("s_mul_i32 s61, s4, 1280"); A("s_lshl_b32 s3, s3, 5"); A("s_add_u32 s61, s61, s3")
    A("s_mov_b32 s44, s20"); A("s_mov_b32 s45, s21"); A("s_movk_i32 s46, 2560"); A("s_mov_b32 s47, 0x20000")
    A("s_mov_b32 s48, s22"); A("s_mov_b32 s49, s23"); A("s_movk_i32 s50, 256"); A("s_mov_b32 s51, 0x20000")
    A("s_mov_b32 s60, s52")
    g.armcheck("R", FLB, "U")
    A("s_mov_b32 s52, s60"); A(f"s_add_u32 s54, s53, {16*2560}"); A(f"s_add_u32 s55, s54, {16*2560}")
    if o.sleepc0: A(f"s_sleep {o.sleepc0}")
    GC = 52
    A("s_mov_b32 s33, 0x40000")
    A("L_T_gc:")
    for n in range(4): A(f"buffer_load_dwordx4 v[{GC+4*n}:{GC+4*n+3}], v25, s[40:43], s{52+n} offen sc1")
    A("s_waitcnt vmcnt(0)")
    g.validate(GC, 16, "L_T_gc_ok")
    if o.sleepc: A(f"s_sleep {o.sleepc}")
    A("s_sub_u32 s33, s33, 1"); A("s_cbranch_scc0 L_T_gc")
    A("L_T_gc_ok:")
    g.stamp(10)
    for st in (8, 4):
        for k in range(st): A(f"v_add_f32 v{GC+k}, v{GC+k}, v{GC+st+k}")
    for r in range(4): A(f"v_add_f32_dpp v{GC+r}, v{GC+r}, v{GC+r} row_ror:4 row_mask:0xf bank_mask:0xf")
    for r in range(4): A(f"v_add_f32_dpp v{GC+r}, v{GC+r}, v{GC+r} row_ror:8 row_mask:0xf bank_mask:0xf")
    for sw in ("16", "32"):
        for r in range(4): A(f"v_mov_b32 v{GC+4+r}, v{GC+r}")
        for r in range(4): A(f"v_permlane{sw}_swap_b32 v{GC+r}, v{GC+4+r}")
        for r in range(4): A(f"v_add_f32 v{GC+r}, v{GC+r}, v{GC+4+r}")
    A(f"v_cvt_pk_bf16_f32 v{GC}, v{GC}, v{GC+1}"); A(f"v_cvt_pk_bf16_f32 v{GC+1}, v{GC+2}, v{GC+3}")
    A("v_lshlrev_b32 v46, 3, v1")
    A("s_mov_b64 exec, 15")
    A(f"buffer_store_dwordx2 v[{GC}:{GC+1}], v46, s[44:47], s61 offen")
    if o.stamps: A("s_waitcnt vmcnt(0)"); g.stamp(11)
    A("L_fin:")
    g.fin()
    A("L_PU:")
    g.vm = list(vm_save)
    op = [0]
    def nxt_wo():
        i = op[0]
        if i >= 20: return
        op[0] += 1
        k, cb = divmod(i, 5)
        if cb == 0: A(f"s_movk_i32 s64, {1280*k}")
        d = WO + 4 * i
        A(f"buffer_load_dwordx4 v[{d}:{d+3}], v{vWO}, s[56:59], s64 offen offset:{256*cb} {LD}"); g.vmi(("wo", i))
    p_tail(nxt_wo, o.to1)
    A("v_lshrrev_b32 v47, 4, v1"); A("s_lshl_b32 s3, s31, 6"); A("v_lshl_add_u32 v44, v47, 4, s3"); A(f"v_add_u32 v44, {L_CXACC}, v44")
    A("v_and_b32 v47, 15, v1"); A("v_and_b32 v46, 16, v1"); A("v_lshl_add_u32 v46, v47, 5, v46"); A("s_mul_i32 s3, s31, 2560"); A(f"v_add_u32 v46, s3, v46")
    A("s_mul_i32 s3, s31, 640"); A(f"v_add_u32 v47, s3, v{vL16}")
    A("s_lshl_b32 s62, s26, 1"); A("s_add_u32 s62, s62, s29"); A("s_mul_i32 s62, s62, 2560"); A(f"s_add_u32 s62, s62, {OC}")
    for _ in range(o.du // 100): A("s_sleep 100")
    if o.du % 100: A(f"s_sleep {o.du % 100}")
    while op[0] < 20:
        g.vmlimit((o.to1 if op[0] < o.nslow else o.to2) - 1); nxt_wo()
    g.stamp(5)
    A("s_barrier")
    g.stamp(7)
    for w in range(4): A(f"ds_read_b128 v[{80+4*w}:{83+4*w}], v44 offset:{256*w}")
    A("s_waitcnt lgkmcnt(0)")
    for k in range(4): A(f"v_add_f32 v{80+k}, v{80+k}, v{84+k}")
    for k in range(4): A(f"v_add_f32 v{88+k}, v{88+k}, v{92+k}")
    for k in range(4): A(f"v_add_f32 v{QF+k}, v{80+k}, v{88+k}")
    for k in range(2): A(f"v_cvt_pk_bf16_f32 v{QP+k}, v{QF+2*k}, v{QF+2*k+1}")
    OA7 = 60; F7 = 80
    for k in range(4):
        g.frag(F7 + 4 * k, QP + (k >> 1), k & 1, SEL)
        for cb in range(5):
            g.vmwait(("wo", 5 * k + cb))
            g.mfma(OA7 + 4 * cb, F7 + 4 * k, WO + 4 * (5 * k + cb), k == 0)
    g.stamp(8)
    A("s_mov_b32 exec_hi, 0")
    for cb in range(5): A(f"ds_write_b128 v46, v[{OA7+4*cb}:{OA7+4*cb+3}] offset:{L_OUTP+512*cb}")
    A("s_mov_b32 exec_hi, 0xff")
    A("s_waitcnt lgkmcnt(0)")
    A("s_barrier")
    for w in range(4): A(f"ds_read_b128 v[{F7+4*w}:{F7+4*w+3}], v47 offset:{L_OUTP+2560*w}")
    A("s_waitcnt lgkmcnt(0)")
    for r in range(4): A(f"v_add_f32 v{F7+r}, v{F7+r}, v{F7+4+r}")
    for r in range(4): A(f"v_add_f32 v{F7+8+r}, v{F7+8+r}, v{F7+12+r}")
    for r in range(4): A(f"v_add_f32 v{F7+r}, v{F7+r}, v{F7+8+r}")
    A(f"buffer_store_dwordx4 v[{F7}:{F7+3}], v47, s[40:43], s62 offen sc1")
    g.stamp(9)
    if o.stamps: A("s_waitcnt vmcnt(0)"); g.stamp(10)
    g.fin()
    g.vm = []
    A("L_S:")
    A("s_sub_u32 s31, s31, 4")
    SEN = 16; vA = 25; vB = 26
    A(f"v_lshlrev_b32 v{vL16}, 4, v1")
    for r in range(4): A(f"v_mov_b32 v{SEN+r}, -1")
    A("s_waitcnt lgkmcnt(0)")
    g.stamp(1)
    A("s_mov_b32 s40, s24"); A("s_mov_b32 s41, s25"); A(f"s_mov_b32 s42, {WS_END}"); A("s_mov_b32 s43, 0x20000")
    A("s_mov_b32 s48, s22"); A("s_mov_b32 s49, s23"); A("s_movk_i32 s50, 256"); A("s_mov_b32 s51, 0x20000")
    A("s_lshl_b32 s67, s4, 7")
    A("s_lshl_b32 s62, s26, 1"); A("s_add_u32 s62, s62, s29")
    A("s_and_b32 s3, s2, 7"); A("s_lshl_b32 s3, s3, 5"); A("s_add_u32 s3, s3, s6"); A("s_lshl_b32 s68, s3, 7")
    A("v_mov_b32 v44, 0")
    A("s_cmp_lg_u32 s31, 0"); A("s_cbranch_scc1 L_S_w123")
    A("s_lshl_b32 s52, s5, 3"); A("s_add_u32 s52, s52, s67")
    A("s_lshl_b32 s3, s62, 1"); A("s_add_u32 s3, s3, s30"); A("s_lshl_b32 s3, s3, 9")
    A("s_mov_b32 exec_hi, 0")
    A(f"buffer_store_dwordx4 v[{SEN}:{SEN+3}], v{vL16}, s[40:43], s3 offen sc1")
    A("s_mov_b64 exec, 1")
    A("s_cmp_lg_u32 s6, 0"); A("s_cbranch_scc1 L_S_nolead")
    A("s_memrealtime s[54:55]"); A("s_waitcnt lgkmcnt(0)"); A("s_or_b32 s54, s54, 1")
    A("v_mov_b32 v46, s54"); A("v_mov_b32 v47, s55")
    A("buffer_store_dwordx2 v[46:47], v44, s[48:51], s52 offen sc1")
    A("s_branch L_S_np_ok")
    A("L_S_nolead:")
    if not o.arm: A("s_branch L_S_np_ok")
    A("s_mov_b32 s33, 0x40000")
    A("L_S_np:")
    A(f"s_sleep {o.sleepn}")
    A("buffer_load_dwordx2 v[46:47], v44, s[48:51], s52 offen sc1")
    A("s_waitcnt vmcnt(0)")
    A("v_cmp_ne_u32 vcc, 0, v46"); A("s_cbranch_vccnz L_S_np_ok")
    A("s_sub_u32 s33, s33, 1"); A("s_cbranch_scc0 L_S_np")
    A("L_S_np_ok:")
    A(f"s_add_u32 s3, s68, {FLA}")
    A("s_waitcnt vmcnt(0)")
    A("buffer_store_dwordx2 v[46:47], v44, s[40:43], s3 offen sc1")
    A("v_mov_b32 v34, v46"); A("v_mov_b32 v35, v47")
    A("s_mov_b64 exec, -1")
    g.stamp(2)
    A("s_branch L_S_join")
    A("L_S_w123:")
    if o.pf:
        A("s_cmp_lg_u32 s31, 2"); A("s_cbranch_scc1 L_S_npf")
        A("s_getpc_b64 s[34:35]")
        A("L_pc:")
        A(f"s_sub_u32 s34, s34, L_pc-{NAME}_kernel"); A("s_subb_u32 s35, s35, 0")
        A(f"s_and_b32 s3, s6, {o.pf-1}"); A("s_lshl_b32 s3, s3, 10"); A(f"v_add_u32 v46, s3, v{vL16}")
        A(f"global_load_dwordx4 v[200:203], v46, s[34:35]")
        A("L_S_npf:")
    if o.hp:
        A("s_cmp_lg_u32 s31, 1"); A("s_cbranch_scc1 L_S_nhp")
        A("s_lshr_b32 s3, s6, 4"); A("s_lshl_b32 s3, s3, 10"); A("s_lshl_b32 s52, s5, 11"); A("s_add_u32 s3, s3, s52"); A("s_add_u32 s3, s3, 384")
        A("s_and_b32 s52, s6, 15"); A("s_lshl_b32 s52, s52, 18"); A("s_add_u32 s3, s3, s52")
        g.srd(44, 14, "s3", 4194304)
        A("v_lshlrev_b32 v46, 13, v5"); A("v_lshl_add_u32 v46, v6, 4, v46")
        A("s_mov_b32 s52, 0")
        for n in range(o.hp):
            A(f"buffer_load_dwordx4 v[{200+4*n}:{203+4*n}], v46, s[44:47], s52 offen {LD}"); A("s_add_u32 s52, s52, 65536")
        A("L_S_nhp:")
    A("L_S_join:")
    g.selectors(8, 46)
    A("s_cmp_eq_u32 s30, 0"); A("s_cbranch_scc1 L_SU")
    def flagB():
        A(f"s_add_u32 s3, s68, {FLB}")
        A("s_mov_b64 exec, 1")
        A("buffer_store_dwordx2 v[34:35], v44, s[40:43], s3 offen sc1")
        A("s_mov_b64 exec, -1")
    A("s_lshl_b32 s60, s4, 1"); A("s_add_u32 s60, s60, s29"); A("s_lshl_b32 s60, s60, 2"); A("s_add_u32 s60, s60, s31"); A("s_lshl_b32 s60, s60, 7"); A("s_add_u32 s60, s60, s28")
    A("s_lshl_b32 s61, s4, 1"); A("s_add_u32 s61, s61, s29"); A("s_lshl_b32 s61, s61, 5"); A("s_add_u32 s61, s61, s28"); A("s_lshl_b32 s61, s61, 2"); A("s_add_u32 s61, s61, s31")
    A("s_lshl_b32 s61, s61, 7"); A(f"s_add_u32 s61, s61, {ST}")
    A("s_lshl_b32 s60, s60, 10"); A(f"s_add_u32 s60, s60, {OB}")
    A("s_barrier")
    g.stamp(3)
    if o.inval:
        for n in range(4):
            A(f"buffer_store_dwordx4 v[{SEN}:{SEN+3}], v{vL16}, s[40:43], s60 offen sc1")
            if n < 3: A("s_add_u32 s60, s60, 32768")
        A("s_mov_b64 exec, 0xff")
        A(f"buffer_store_dwordx4 v[{SEN}:{SEN+3}], v{vL16}, s[40:43], s61 offen sc1")
        A("s_mov_b64 exec, -1")
    A("s_cmp_lg_u32 s31, 0"); A("s_cbranch_scc1 L_T_noarm")
    g.armcheck("T", FLA, "A")
    A("L_T_noarm:")
    A("s_waitcnt vmcnt(0)")
    g.stamp(4)
    A("s_lshl_b32 s52, s4, 1"); A("s_add_u32 s52, s52, s29"); A("s_lshl_b32 s52, s52, 2"); A("s_add_u32 s52, s52, s31"); A("s_lshl_b32 s52, s52, 13")
    A("s_add_u32 s53, s52, 4096")
    A(f"s_mul_i32 s3, s31, {4*PITCH}"); A(f"v_add_u32 v{vA}, s3, v{vL16}"); A(f"v_add_u32 v{vA}, {L_QI}, v{vA}")
    A("v_mov_b32 v20, 0x05040100"); A("v_mov_b32 v21, 0x07060302"); A("v_mov_b32 v22, 0x3f803f80")
    A("s_barrier")
    A("s_cmp_lg_u32 s31, 0"); A("s_cbranch_scc1 L_T_nofl")
    flagB()
    A("L_T_nofl:")
    GA = 48
    A("s_mov_b32 s33, 0x40000")
    A("L_T_ga:")
    for n in range(8): A(f"buffer_load_dwordx4 v[{GA+4*n}:{GA+4*n+3}], v{vL16}, s[40:43], s{52+(n>>2)} offen offset:{1024*(n&3)} sc1")
    A("s_waitcnt vmcnt(0)")
    g.validate(GA, 32, "L_T_ga_ok")
    if o.sleepa: A(f"s_sleep {o.sleepa}")
    A("s_sub_u32 s33, s33, 1"); A("s_cbranch_scc0 L_T_ga")
    A("L_T_ga_ok:")
    g.stamp(5)
    for hh in range(4):
        a = GA + 8 * hh; b = a + 4; t = 80 + 8 * (hh & 1)
        for k in range(4):
            A(f"v_perm_b32 v{t+2*k}, v{b+k}, v{a+k}, v20"); A(f"v_perm_b32 v{t+2*k+1}, v{b+k}, v{a+k}, v21")
        for k in range(8): A(f"v_dot2_f32_bf16 v{t+k}, v{t+k}, v22, 0")
        for k in range(4): A(f"v_cvt_pk_bf16_f32 v{a+k}, v{t+2*k}, v{t+2*k+1}")
        A(f"ds_write_b128 v{vA}, v[{a}:{a+3}] offset:{hh*PITCH}")
    A("s_waitcnt lgkmcnt(0)")
    g.stamp(6)
    A("s_barrier")
    g.fin()
    A("L_SU:")
    UV = 128; SEL = 8
    A("s_lshl_b32 s3, s31, 20"); A("s_add_u32 s61, s36, s3")
    g.srd(44, 16, "s61", 4194304)
    A("v_lshlrev_b32 v42, 17, v5"); A("v_lshl_add_u32 v42, v6, 4, v42")
    A(f"v_lshlrev_b32 v{vA}, 12, v5"); A(f"v_lshl_add_u32 v{vA}, v6, 4, v{vA}")
    A(f"v_lshlrev_b32 v{vB}, 11, v5")
    A("s_lshr_b32 s59, s26, 4"); A("s_lshl_b32 s59, s59, 7"); A("s_add_u32 s59, s59, s31"); A("s_lshl_b32 s59, s59, 4"); A("s_and_b32 s3, s28, 15"); A("s_add_u32 s59, s59, s3")
    A("s_lshl_b32 s59, s59, 3"); A(f"s_add_u32 s59, s59, {ST}")
    A("s_lshl_b32 s58, s26, 15"); A("s_lshl_b32 s3, s31, 8"); A("s_add_u32 s58, s58, s3"); A(f"s_add_u32 s58, s58, {OB}")
    A("v_and_b32 v46, 16, v1"); A("v_lshl_add_u32 v20, v6, 5, v46"); A("s_lshl_b32 s3, s31, 8"); A(f"s_add_u32 s54, s3, {L_CXACC}"); A("v_add_u32 v21, s54, v20")
    A(f"s_add_u32 s3, s3, {L_CC}"); A("v_lshrrev_b32 v20, 1, v20"); A("v_add_u32 v20, s3, v20"); A("v_lshl_add_u32 v22, v5, 5, s3")
    A("s_barrier")
    g.stamp(3)
    A("s_cmp_lg_u32 s31, 0"); A("s_cbranch_scc1 L_U_noinv")
    A("s_mul_i32 s62, s62, 2560"); A(f"s_add_u32 s62, s62, {OC}")
    A(f"buffer_store_dwordx4 v[{SEN}:{SEN+3}], v{vL16}, s[40:43], s62 offen sc1")
    A(f"buffer_store_dwordx4 v[{SEN}:{SEN+3}], v{vL16}, s[40:43], s62 offen offset:1024 sc1")
    A("s_mov_b32 exec_hi, 0")
    A(f"buffer_store_dwordx4 v[{SEN}:{SEN+3}], v{vL16}, s[40:43], s62 offen offset:2048 sc1")
    A("s_mov_b32 exec_hi, -1")
    A("L_U_noinv:")
    for _ in range(o.dv // 100): A("s_sleep 100")
    if o.dv % 100: A(f"s_sleep {o.dv % 100}")
    A("s_mov_b32 s39, 0")
    for n in range(16):
        g.vmlimit((o.tv1 if n < o.nslow else o.tv2) - 1)
        if n == 8:
            A("s_cmp_lg_u32 s31, 0"); A("s_cbranch_scc1 L_U_nofl")
            flagB()
            A("L_U_nofl:")
        A(f"buffer_load_dwordx4 v[{UV+4*n}:{UV+4*n+3}], v42, s[44:47], s39 offen {LD}"); g.vmi(("uv", n))
        A("s_add_u32 s39, s39, 8192")
    g.stamp(4)
    GB = 48; GS = 80
    g.armcheck("U", FLB, "T"); g.vm = []
    g.stamp(5)
    if o.cheapb:
        A("s_mov_b32 s33, 0x40000")
        A("L_U_gs:")
        for k in range(4): A(f"buffer_load_dwordx2 v[{GS+2*k}:{GS+2*k+1}], v{vB}, s[40:43], s59 offen offset:{512*k} sc1")
        A("s_waitcnt vmcnt(0)")
        g.validate(GS, 8, "L_U_gs_ok")
        if o.sleepb: A(f"s_sleep {o.sleepb}")
        A("s_sub_u32 s33, s33, 1"); A("s_cbranch_scc0 L_U_gs")
        A("L_U_gs_ok:")
        g.stamp(9)
    A("s_mov_b32 s33, 0x40000")
    A("L_U_gb:")
    for cb in range(2):
        for n in range(4): A(f"buffer_load_dwordx4 v[{GB+16*cb+4*n}:{GB+16*cb+4*n+3}], v{vA}, s[40:43], s58 offen offset:{1024*n+128*cb} sc1")
    A("s_waitcnt vmcnt(0)")
    g.validate(GB, 32, "L_U_gb_ok")
    if o.sleepb: A(f"s_sleep {o.sleepb}")
    A("s_sub_u32 s33, s33, 1"); A("s_cbranch_scc0 L_U_gb")
    A("L_U_gb_ok:")
    g.stamp(6)
    A(f"v_max3_f32 v46, v{GS}, v{GS+2}, v{GS+4}"); A(f"v_max_f32 v46, v46, v{GS+6}")
    A("v_max_f32_dpp v46, v46, v46 row_ror:8 row_mask:0xf bank_mask:0xf")
    A("v_mov_b32 v47, v46"); A("v_permlane16_swap_b32 v46, v47"); A("v_max_f32 v46, v46, v47")
    A("v_mov_b32 v47, v46"); A("v_permlane32_swap_b32 v46, v47"); A("v_max_f32 v46, v46, v47")
    for n in range(4): A(f"v_sub_f32 v{GS+2*n}, v{GS+2*n}, v46")
    for n in range(4): A(f"v_exp_f32 v{GS+2*n}, v{GS+2*n}")
    A(f"v_cvt_pk_bf16_f32 v28, v{GS}, v{GS+2}"); A(f"v_cvt_pk_bf16_f32 v29, v{GS+4}, v{GS+6}")
    for n in range(4):
        g.frag(88 + 4 * n, 28 + (n >> 1), n & 1, SEL)
        for cb in range(2): g.mfma(32 + 4 * cb, 88 + 4 * n, GB + 16 * cb + 4 * n, n == 0)
    A(f"v_mul_f32 v46, v{GS}, v{GS+1}")
    for n in range(1, 4): A(f"v_fmac_f32 v46, v{GS+2*n}, v{GS+2*n+1}")
    A("v_add_f32_dpp v46, v46, v46 row_ror:8 row_mask:0xf bank_mask:0xf")
    A("v_mov_b32 v47, v46"); A("v_permlane16_swap_b32 v46, v47"); A("v_add_f32 v46, v46, v47")
    g.fold(32, 88, 8)
    for k in range(4): A(f"v_cvt_pk_bf16_f32 v{32+k}, v{32+2*k}, v{33+2*k}")
    A("s_mov_b64 exec, 0x00ff00ff")
    A("ds_write_b64 v20, v[32:33]"); A("ds_write_b64 v20, v[34:35] offset:128")
    A("s_mov_b64 exec, -1")
    for k in range(2): A(f"ds_read_b128 v[{64+4*k}:{67+4*k}], v22 offset:{16*k}")
    A("v_mov_b32 v47, v46"); A("v_permlane32_swap_b32 v46, v47"); A("v_add_f32 v46, v46, v47")
    A("v_rcp_f32 v46, v46")
    A("s_waitcnt lgkmcnt(0)")
    g.stamp(7)
    for n in range(16):
        f = 72 + 4 * (n & 1)
        g.frag(f, 64 + (n >> 1), n & 1, SEL)
        g.mfma(32, f, UV + 4 * n, n == 0)
    g.fold(32, 88)
    for r in range(4): A(f"v_mul_f32 v{32+r}, v{32+r}, v46")
    A("s_mov_b64 exec, 0x00ff00ff")
    A("ds_write_b128 v21, v[32:35]")
    A("s_mov_b64 exec, -1")
    A("s_waitcnt lgkmcnt(0)")
    g.stamp(8)
    A("s_barrier")
    if o.stamps:
        A("L_stamps:")
        A("s_mov_b64 exec, 1")
        A("s_waitcnt lgkmcnt(0)")
        A("v_lshrrev_b32 v2, 6, v0"); A("s_lshl_b32 s3, s2, 3"); A("v_add_u32 v2, s3, v2"); A(f"v_mul_u32_u24 v2, {NST*8}, v2")
        A("s_add_u32 s40, s24, 0x8000000"); A("s_addc_u32 s41, s25, 0"); A("s_mov_b32 s42, 0x1000000"); A("s_mov_b32 s43, 0x20000")
        for i in range(NST):
            A(f"v_mov_b32 v4, s{72+2*i}"); A(f"v_mov_b32 v5, s{73+2*i}")
            A(f"buffer_store_dwordx2 v[4:5], v2, s[40:43], 0 offen offset:{8*i}")
            A("s_nop 1")
    A("L_end:")
    A("s_endpgm")
    lines, nn = hz.fix([l for l in g.L if l is not None])
    body = "\n".join(("" if l.endswith(":") else "    ") + l for l in lines)
    txt = (HDR + f"; @launch grid=(256,1,1) block=(512,1,1) lds={L_END}\n"
        ".amdgcn_target \"amdgcn-amd-amdhsa--gfx950\"\n.text\n"
        f".globl {NAME}_kernel\n.p2align 8\n.type {NAME}_kernel,@function\n{NAME}_kernel:\n" + body + "\n"
        + (f".org {NAME}_kernel+{o.pf*1024}, 0\n" if o.pf else "") +
        ".section .rodata,\"a\"\n.p2align 6\n"
        f".amdhsa_kernel {NAME}_kernel\n  .amdhsa_next_free_vgpr 256\n  .amdhsa_next_free_sgpr 96\n"
        "  .amdhsa_accum_offset 256\n  .amdhsa_group_segment_fixed_size 0\n  .amdhsa_kernarg_size 120\n"
        "  .amdhsa_user_sgpr_count 2\n  .amdhsa_user_sgpr_kernarg_segment_ptr 1\n  .amdhsa_system_sgpr_workgroup_id_x 1\n"
        ".end_amdhsa_kernel\n")
    return txt, nn

def parse(argv):
    ap = argparse.ArgumentParser()
    ap.add_argument("-o", default="k2.s")
    for k, d in dict(stamps=0, tw=7, tk=7, tk2=8, to1=3, to2=4, tv1=3, tv2=4, nslow=6, pf=16, hp=4, dinv=0,
                     sleepa0=20, sleepa=2, sleepb=4, cheapb=1, sleepc0=20, sleepc=2, sleepn=24, du=0, dv=0, early=0, arm=1, inval=1, sleepf=16).items():
        ap.add_argument("--" + k, type=int, default=d)
    ap.add_argument("--ld", default="")
    return ap.parse_args(argv)
if __name__ == "__main__":
    o = parse(sys.argv[1:])
    txt, nn = gen(o)
    open(o.o, "w").write(txt)
    print("written", o.o, "nops inserted", nn)
```

```python
import sys, argparse
sys.path.insert(0, "gen")
import hz
NAME = "concat_heads__compressed_kv_cla__compressed_kv_cla__decode"
HDR = open("cdna_kernels/%s.s.ref" % NAME).read().split("; Override launch")[0]

QA = 0x0
ST = 0x10000 + 0x10000
FLA = 0x30000
FLB = 0x38000
OC = 0x40000
OB = 0x100000
WS_END = 0x300000
PITCH = 1056
L_KV = 0
L_QI = 128 * PITCH
L_MISC = L_QI + 16 * PITCH
L_QACC = L_MISC
L_CXACC = L_MISC + 1024
L_CC = L_MISC + 2048
L_MX = L_MISC + 3072
L_P = L_MISC + 4096
L_END = L_P + 4096
L_OUTP = 0
SCALE = 0x3e0293ee
NST = 12

class G:
    def __init__(s, opt):
        s.L = []; s.o = opt; s.vm = []; s.nlab = 0
    def A(s, t): s.L.append(t)
    def vmi(s, tag): s.vm.append(tag)
    def vmwait(s, tag):
        if tag not in s.vm: return
        k = len(s.vm) - 1 - max(i for i, t in enumerate(s.vm) if t == tag)
        s.A(f"s_waitcnt vmcnt({k})")
        s.vm = s.vm[len(s.vm) - k:]
    def vmlimit(s, k):
        if len(s.vm) > k:
            s.A(f"s_waitcnt vmcnt({k})"); s.vm = s.vm[len(s.vm) - k:]
    def stamp(s, i):
        if s.o.stamps: s.A(f"s_memrealtime s[{72+2*i}:{73+2*i}]")
    def srd(s, d, base, off_sreg, size):
        s.A(f"s_add_u32 s{d}, s{base}, {off_sreg}")
        s.A(f"s_addc_u32 s{d+1}, s{base+1}, 0")
        s.A(f"s_sub_u32 s{d+2}, {size}, {off_sreg}")
        s.A(f"s_mov_b32 s{d+3}, 0x20000")
    def selectors(s, sel, tmp):
        A = s.A
        A(f"v_and_b32 v{tmp}, 1, v1")
        A(f"v_cmp_eq_u32 vcc, 1, v{tmp}")
        A(f"v_mov_b32 v{tmp+1}, 0x0c0c0100"); A(f"v_mov_b32 v{tmp+2}, 0x01000c0c")
        A(f"v_cndmask_b32 v{tmp+1}, v{tmp+1}, v{tmp+2}, vcc")
        A(f"v_mov_b32 v{tmp+2}, 0x0c0c0302"); A(f"v_mov_b32 v{tmp+3}, 0x03020c0c")
        A(f"v_cndmask_b32 v{tmp+2}, v{tmp+2}, v{tmp+3}, vcc")
        A(f"v_mov_b32 v{tmp+3}, 0x0c0c0c0c")
        A(f"v_bfe_u32 v{tmp}, v1, 1, 2")
        for r in range(4):
            A(f"v_cmp_eq_u32 vcc, {r}, v{tmp}")
            A(f"v_cndmask_b32 v{sel+r}, v{tmp+3}, v{tmp+1}, vcc")
            A(f"v_cndmask_b32 v{sel+4+r}, v{tmp+3}, v{tmp+2}, vcc")
    def frag(s, dst, src, par, sel):
        for r in range(4): s.A(f"v_perm_b32 v{dst+r}, v{src}, v{src}, v{sel+4*par+r}")
    def fold(s, d, t, n=4):
        for r in range(n): s.A(f"v_mov_b32 v{t+r}, v{d+r}")
        for r in range(n): s.A(f"v_permlane32_swap_b32 v{d+r}, v{t+r}")
        for r in range(n): s.A(f"v_add_f32_dpp v{d+r}, v{t+r}, v{d+r} row_ror:8 row_mask:0xf bank_mask:0xf")
    def mfma(s, d, a, b, first):
        s.A(f"v_mfma_f32_16x16x32_bf16 v[{d}:{d+3}], v[{a}:{a+3}], v[{b}:{b+3}], " + ("0" if first else f"v[{d}:{d+3}]"))
    def validate(s, first, n, lab_ok):
        A = s.A
        A(f"v_max3_u32 v46, v{first}, v{first+1}, v{first+2}")
        A(f"v_max3_u32 v47, v{first+3}, v{first+4}, v{first+5}")
        k = 6; which = 46
        while k + 1 < n:
            A(f"v_max3_u32 v{which}, v{which}, v{first+k}, v{first+k+1}"); k += 2; which = 93 - which
        A("v_max_u32 v46, v46, v47")
        A("v_cmp_eq_u32 vcc, -1, v46")
        A(f"s_cbranch_vccz {lab_ok}")
    def armcheck(s, tag, fl, mode, again=True):
        A = s.A
        if not s.o.arm: return
        A(f"s_lshl_b32 s52, s4, 14"); A(f"s_add_u32 s52, s52, {fl}"); A("s_lshl_b32 s67, s4, 7")
        if mode == "A":
            A("s_lshl_b32 s3, s29, 6"); A("v_add_u32 v37, s3, v1")
        elif mode == "T":
            A("v_and_b32 v37, 31, v1"); A("s_or_b32 s3, s5, 1"); A("s_and_b32 s3, s3, 3"); A("s_lshr_b32 s54, s5, 1"); A("s_lshl_b32 s3, s54, 1"); A("s_add_u32 s3, s3, 1")
            A("v_lshl_add_u32 v37, v37, 2, s3")
        else:
            A("v_lshlrev_b32 v37, 1, v1")
        A("v_lshrrev_b32 v36, 5, v37"); A("v_lshlrev_b32 v36, 3, v36"); A("v_lshlrev_b32 v37, 7, v37")
        A("s_mov_b32 s33, 0x40000")
        A(f"L_{tag}_arm:")
        A(f"buffer_load_dwordx2 v[32:33], v36, s[48:51], s67 offen sc1")
        A(f"buffer_load_dwordx2 v[28:29], v37, s[40:43], s52 offen sc1")
        A("s_waitcnt vmcnt(0)")
        A("v_cmp_ne_u64 vcc, v[28:29], v[32:33]"); A("v_cmp_eq_u32 s[70:71], 0, v32")
        A("s_nop 0")
        A("s_or_b64 vcc, vcc, s[70:71]")
        A(f"s_cbranch_vccz L_{tag}_arm_ok")
        A(f"s_sleep {s.o.sleepf}")
        A("s_sub_u32 s33, s33, 1"); A(f"s_cbranch_scc0 L_{tag}_arm")
        A(f"L_{tag}_arm_ok:")
    def fin(s):
        if s.o.stamps: s.A("s_branch L_stamps")
        else: s.A("s_endpgm")

def gen(o):
    g = G(o); A = g.A
    LD = o.ld
    if o.stamps:
        for i in range(1, NST): A(f"s_mov_b64 s[{72+2*i}:{73+2*i}], 0")
    g.stamp(0)
    A("s_cmp_ge_u32 s2, 256"); A("s_cbranch_scc1 L_end")
    A("s_bfe_u32 s4, s2, 0x10002")
    A("s_mul_i32 s3, s4, 48")
    A("s_add_u32 s34, s0, s3"); A("s_addc_u32 s35, s1, 0")
    A("s_load_dwordx4 s[8:11], s[34:35], 0")
    A("s_load_dwordx4 s[12:15], s[34:35], 16")
    A("s_load_dwordx4 s[16:19], s[34:35], 32")
    A("s_load_dwordx4 s[20:23], s[0:1], 96")
    A("s_load_dwordx2 s[24:25], s[0:1], 112")
    A("v_lshrrev_b32 v4, 6, v0")
    A("v_and_b32 v1, 63, v0")
    A("v_readfirstlane_b32 s31, v4")
    A("s_and_b32 s5, s2, 3"); A("s_lshr_b32 s6, s2, 3")
    A("s_lshl_b32 s28, s5, 3"); A("s_lshr_b32 s3, s6, 2"); A("s_add_u32 s28, s28, s3")
    A("s_bfe_u32 s29, s6, 0x10001"); A("s_and_b32 s30, s6, 1")
    A("v_lshrrev_b32 v5, 3, v1"); A("v_and_b32 v6, 7, v1")
    A("s_lshl_b32 s36, s28, 8"); A("s_lshl_b32 s3, s29, 7"); A("s_add_u32 s36, s36, s3")
    A("s_lshl_b32 s26, s4, 5"); A("s_add_u32 s26, s26, s28")
    A("s_cmp_ge_u32 s31, 4"); A("s_cbranch_scc1 L_S")
    SEL = 8; XV = 16; FR = 28; ACC = 36; WQ = 100; UK = 180; WO = 100
    vWQ, vX, vUK, vWO, vQA, vL16 = 40, 41, 42, 43, 45, 7
    A("s_lshl_b32 s3, s31, 3"); A(f"v_add_u32 v{vX}, s3, v5"); A(f"v_mul_u32_u24 v{vX}, 20, v{vX}")
    A(f"v_lshlrev_b32 v{vWQ}, 12, v{vX}"); A(f"v_lshl_add_u32 v{vWQ}, v6, 4, v{vWQ}")
    A(f"v_lshlrev_b32 v{vUK}, 16, v5"); A(f"v_lshl_add_u32 v{vUK}, v6, 4, v{vUK}")
    A("s_mul_i32 s37, s30, 640"); A("s_sub_u32 s38, 640, s37")
    A("s_lshl_b32 s39, s37, 12"); A("s_lshl_b32 s60, s38, 12")
    A("s_lshl_b32 s27, s30, 2"); A("s_add_u32 s27, s27, s31"); A("s_lshl_b32 s3, s27, 19"); A("s_add_u32 s61, s36, s3")
    A("s_waitcnt lgkmcnt(0)")
    g.stamp(1)
    A("s_mov_b32 s40, s8"); A("s_mov_b32 s41, s9"); A("s_mov_b32 s42, 1280"); A("s_mov_b32 s43, 0x20000")
    g.srd(44, 12, "s36", 5242880)
    for hf in range(2):
        A(f"buffer_load_dwordx4 v[{XV+6*hf}:{XV+6*hf+3}], v{vX}, s[40:43], s{37+hf} offen"); g.vmi("x")
        A(f"buffer_load_dword v{XV+6*hf+4}, v{vX}, s[40:43], s{37+hf} offen offset:16"); g.vmi("x")
    g.srd(48, 14, "s61", 4194304)
    seq = [("wq", n) for n in range(20)] + [("uk", n) for n in range(8)]
    pos = [0]
    def issue_p():
        if pos[0] >= len(seq): return
        k, n = seq[pos[0]]; pos[0] += 1
        if k == "wq":
            so = "s39" if n < 10 else "s60"
            A(f"buffer_load_dwordx4 v[{WQ+4*n}:{WQ+4*n+3}], v{vWQ}, s[44:47], {so} offen {LD}")
            A(f"s_add_u32 {so}, {so}, 8192")
        else:
            if n == 0: A("s_mov_b32 s39, 0")
            A(f"buffer_load_dwordx4 v[{UK+4*n}:{UK+4*n+3}], v{vUK}, s[48:51], s39 offen {LD}")
            A("s_add_u32 s39, s39, 8192")
        g.vmi((k, n))
        if pos[0] == len(seq): g.stamp(2)
    for _ in range(o.tw): issue_p()
    g.selectors(SEL, 46)
    A("v_and_b32 v46, 16, v1"); A(f"v_lshl_add_u32 v{vQA}, v6, 5, v46"); A("s_lshl_b32 s3, s31, 8"); A(f"s_add_u32 s3, s3, {L_QACC}"); A(f"v_add_u32 v{vQA}, s3, v{vQA}")
    A(f"v_lshlrev_b32 v{vL16}, 4, v1")
    A("s_mov_b32 s40, s24"); A("s_mov_b32 s41, s25"); A(f"s_mov_b32 s42, {WS_END}")
    A("s_lshl_b32 s62, s26, 1"); A("s_add_u32 s62, s62, s29"); A("s_lshl_b32 s62, s62, 3"); A("s_add_u32 s62, s62, s27"); A("s_lshl_b32 s62, s62, 7")
    A("s_lshl_b32 s3, s28, 17")
    g.srd(52, 10, "s3", 4194304)
    A("s_lshl_b32 s3, s28, 7"); A("s_lshl_b32 s63, s29, 6"); A("s_add_u32 s3, s3, s63"); A("s_lshl_b32 s63, s31, 4"); A("s_add_u32 s3, s3, s63")
    A("s_mul_i32 s63, s3, 1280")
    g.srd(56, 18, "s63", 5242880)
    A(f"v_lshrrev_b32 v46, 4, v1"); A(f"v_mul_u32_u24 v{vWO}, 5120, v46"); A("v_and_b32 v47, 15, v1"); A(f"v_lshl_add_u32 v{vWO}, v47, 4, v{vWO}")
    A("s_lshl_b32 s64, s29, 2"); A("s_add_u32 s64, s64, s31"); A("s_xor_b32 s65, s64, 4"); A("s_lshl_b32 s64, s64, 14"); A("s_lshl_b32 s65, s65, 14")
    A(f"s_mul_i32 s66, s31, {32*PITCH}")
    for n in range(20):
        g.vmwait(("wq", n))
        issue_p()
        hf, m = divmod(n, 10)
        f = FR + 4 * (n & 1)
        g.frag(f, XV + 6 * hf + (m >> 1), m & 1, SEL)
        g.mfma(ACC, f, WQ + 4 * n, n == 0)
    while pos[0] < len(seq):
        g.vmlimit(o.tw - 1); issue_p()
    A(f"v_lshlrev_b32 v46, 5, v6"); A(f"v_add_u32 v46, {L_QACC}, v46")
    g.fold(ACC, FR)
    A("s_mov_b64 exec, 0x00ff00ff")
    A(f"ds_write_b128 v{vQA}, v[{ACC}:{ACC+3}]")
    A("s_mov_b64 exec, -1")
    A("s_cmp_eq_u32 s30, 0"); A("s_cbranch_scc1 L_PU")
    vm_save = list(g.vm)
    QF = 48; QP = 56; PP = 60
    def p_tail(nxt, depth):
        def step():
            g.vmlimit(depth - 1); nxt()
        step()
        A("s_waitcnt lgkmcnt(0)")
        A("s_barrier")
        g.stamp(3)
        for w in range(4):
            A(f"ds_read_b128 v[{68+8*w}:{71+8*w}], v46 offset:{256*w}"); A(f"ds_read_b128 v[{72+8*w}:{75+8*w}], v46 offset:{256*w+16}")
        A("v_lshlrev_b32 v46, 1, v1")
        A("v_and_b32 v47, 2, v1"); A("v_cmp_ne_u32 vcc, 0, v47")
        step()
        A("s_waitcnt lgkmcnt(0)")
        for k in range(8): A(f"v_add_f32 v{68+k}, v{68+k}, v{76+k}")
        for k in range(8): A(f"v_add_f32 v{84+k}, v{84+k}, v{92+k}")
        for k in range(8): A(f"v_add_f32 v{QF+k}, v{68+k}, v{84+k}")
        for k in range(4): A(f"v_cvt_pk_bf16_f32 v{QP+k}, v{QF+2*k}, v{QF+2*k+1}")
        while ("uk", 7) in g.vm: step()
        for k in range(4):
            for n in range(8):
                if k == 0: A(f"v_dot2_f32_bf16 v{PP+n}, v{UK+4*n}, v{QP}, 0")
                else: A(f"v_dot2c_f32_bf16 v{PP+n}, v{UK+4*n+k}, v{QP+k}")
        for n in range(4): A(f"v_add_f32_dpp v{PP+n}, v{PP+n}, v{PP+n} row_half_mirror row_mask:0xf bank_mask:0x5")
        for n in range(4): A(f"v_add_f32_dpp v{PP+n}, v{PP+n+4}, v{PP+n+4} row_half_mirror row_mask:0xf bank_mask:0xa")
        for n in range(4): A(f"v_add_f32_dpp v{PP+n}, v{PP+n}, v{PP+n} quad_perm:[2,3,0,1] row_mask:0xf bank_mask:0xf")
        for k in range(2): A(f"v_cndmask_b32 v{PP+k}, v{PP+k}, v{PP+k+2}, vcc")
        for k in range(2): A(f"v_add_f32_dpp v{PP+k}, v{PP+k}, v{PP+k} quad_perm:[1,0,3,2] row_mask:0xf bank_mask:0xf")
        A(f"v_cvt_pk_bf16_f32 v{PP}, v{PP}, v{PP+1}")
        A("s_mov_b32 exec_lo, 0x55555555"); A("s_mov_b32 exec_hi, 0x55555555")
        A(f"buffer_store_dword v{PP}, v46, s[40:43], s62 offen sc1"); g.vmi("qa")
        A("s_mov_b64 exec, -1")
        g.stamp(4)
    kp = [0]
    def nxt_kv():
        k = kp[0]
        if k >= 32: return
        kp[0] += 1
        so = "s64" if k < 16 else "s65"
        A("s_mov_b32 m0, s66"); A(f"s_add_u32 s66, s66, {PITCH}")
        A(f"buffer_load_dwordx4 v{vL16}, s[52:55], {so} offen {LD} lds"); g.vmi("kv")
        A(f"s_add_u32 {so}, {so}, 1024")
    p_tail(nxt_kv, o.tk)
    vK = 21; vQ = 22; vT0 = 23; vT1 = 24; vB = 26
    GA = 28; QR = 48; SA = 112; PF = 92; ON = 108; LA = 120; KF = 128; OA = 48
    def t_addr():
        A("v_and_b32 v46, 15, v1"); A("v_lshrrev_b32 v47, 4, v1")
        A(f"v_mul_u32_u24 v{vQ}, {PITCH}, v46"); A(f"v_lshl_add_u32 v{vQ}, v47, 4, v{vQ}")
        A(f"s_mul_i32 s3, s31, {32*PITCH}"); A(f"v_add_u32 v{vK}, s3, v{vQ}"); A(f"v_add_u32 v{vQ}, {L_QI}, v{vQ}")
        A("v_lshrrev_b32 v44, 2, v1"); A(f"v_mul_u32_u24 v{vT0}, {PITCH}, v44"); A("v_and_b32 v44, 3, v1"); A(f"v_lshl_add_u32 v{vT0}, v44, 3, v{vT0}")
        A("s_lshl_b32 s3, s31, 8"); A(f"v_add_u32 v{vT0}, s3, v{vT0}"); A(f"v_add_u32 v{vT1}, {64*PITCH}, v{vT0}")
        A(f"v_lshlrev_b32 v{vB}, 15, v46"); A("v_and_b32 v44, 16, v1"); A(f"v_lshl_add_u32 v{vB}, v44, 1, v{vB}")
        A("v_lshrrev_b32 v44, 5, v1"); A(f"v_lshl_add_u32 v{vB}, v44, 4, v{vB}")
        A("s_lshl_b32 s60, s4, 1"); A("s_add_u32 s60, s60, s29"); A("s_lshl_b32 s60, s60, 9"); A("s_add_u32 s60, s60, s28")
        A("s_lshl_b32 s61, s4, 1"); A("s_add_u32 s61, s61, s29"); A("s_lshl_b32 s61, s61, 5"); A("s_add_u32 s61, s61, s28"); A("s_lshl_b32 s61, s61, 2"); A("s_add_u32 s61, s61, s31")
        A("s_lshl_b32 s61, s61, 7"); A(f"s_add_u32 s61, s61, {ST}")
        A("s_lshl_b32 s60, s60, 10"); A("s_lshl_b32 s3, s31, 8"); A("s_add_u32 s60, s60, s3"); A(f"s_add_u32 s60, s60, {OB}")
        A(f"v_add_u32 v27, {L_MX}, v{vL16}"); A("s_lshl_b32 s3, s31, 2"); A("v_add_u32 v25, s3, v27")
        A(f"v_add_u32 v20, {L_P}, v{vL16}"); A("s_lshl_b32 s3, s31, 10"); A("v_add_u32 v19, s3, v20")
        A("v_lshlrev_b32 v18, 3, v1")
    done_addr = False
    while kp[0] < 32:
        if kp[0] == 32 - o.early: A("s_barrier")
        g.vmlimit((o.tk if kp[0] < 16 else o.tk2) - 1); nxt_kv()
        if not done_addr: t_addr(); done_addr = True
    if not o.early: A("s_barrier")
    g.stamp(5)
    A("s_waitcnt vmcnt(0)"); g.vm = []
    g.stamp(6)
    for kk in range(16):
        for t in range(2):
            d = KF + 4 * (2 * kk + t)
            A(f"ds_read_b128 v[{d}:{d+3}], v{vK} offset:{16*t*PITCH + 64*kk}")
    A("s_barrier")
    g.stamp(7)
    vfr = [(ct, ks) for ct in range(8) for ks in range(4)]
    lg = []
    def lgw(tag):
        if tag not in lg: return
        k = len(lg) - 1 - lg.index(tag)
        A(f"s_waitcnt lgkmcnt({min(k,15)})"); del lg[:len(lg) - min(k, 15)]
    vi = [0]
    def rdv():
        idx = vi[0]
        if idx >= 32: return
        vi[0] += 1
        ct, ks = vfr[idx]; d = KF + 4 * idx
        base = vT0 if ks < 2 else vT1
        for hf in range(2):
            A(f"ds_read_b64_tr_b16 v[{d+2*hf}:{d+2*hf+1}], v{base} offset:{(32*(ks&1)+16*hf)*PITCH + 32*ct}"); lg.append(("v", idx))
    def rdq(kk):
        A(f"ds_read_b128 v[{QR+4*kk}:{QR+4*kk+3}], v{vQ} offset:{64*kk}"); lg.append(("q", kk))
    for kk in range(8): rdq(kk)
    for kk in range(16):
        lgw(("q", kk))
        for t in range(2): g.mfma(SA + 4 * t, KF + 4 * (2 * kk + t), QR + 4 * kk, kk == 0)
        if kk < 8: rdq(kk + 8)
        elif kk >= 8: rdv(); rdv()
    for r in range(4): A(f"v_mov_b32 v{ON+r}, 0x3f803f80")
    rdv(); rdv()
    A(f"v_max3_f32 v46, v{SA}, v{SA+1}, v{SA+2}"); A(f"v_max3_f32 v47, v{SA+3}, v{SA+4}, v{SA+5}")
    A(f"v_max3_f32 v46, v46, v{SA+6}, v{SA+7}"); A("v_max_f32 v46, v46, v47")
    A("v_mov_b32 v47, v46"); A("v_permlane16_swap_b32 v46, v47"); A("v_max_f32 v46, v46, v47")
    A("v_mov_b32 v47, v46"); A("v_permlane32_swap_b32 v46, v47"); A("v_max_f32 v46, v46, v47")
    A("ds_write_b32 v25, v46")
    A("s_waitcnt lgkmcnt(0)"); lg.clear()
    A("s_barrier")
    A(f"ds_read_b128 v[{GA}:{GA+3}], v27"); lg.append("mx")
    for _ in range(6): rdv()
    lgw("mx")
    A(f"v_max3_f32 v46, v{GA}, v{GA+1}, v{GA+2}"); A(f"v_max_f32 v46, v46, v{GA+3}")
    A(f"s_mov_b32 s3, {SCALE}")
    A(f"v_mul_f32 v44, s3, v46")
    for r in range(8): A(f"v_fma_f32 v{SA+r}, v{SA+r}, s3, -v44")
    for r in range(8): A(f"v_exp_f32 v{SA+r}, v{SA+r}")
    for k in range(4): A(f"v_cvt_pk_bf16_f32 v{GA+k}, v{SA+2*k}, v{SA+2*k+1}")
    A(f"ds_write_b128 v19, v[{GA}:{GA+3}]")
    A("s_waitcnt lgkmcnt(0)"); lg.clear()
    A("s_barrier")
    g.stamp(8)
    for w in range(4): A(f"ds_read_b128 v[{PF+4*w}:{PF+4*w+3}], v20 offset:{1024*w}"); lg.append(("p", w))
    while vi[0] < 32: rdv()
    PK = 28
    def pack(ct):
        a = OA + 4 * ct
        A(f"v_cvt_pk_bf16_f32 v{PK+2*ct}, v{a}, v{a+1}"); A(f"v_cvt_pk_bf16_f32 v{PK+2*ct+1}, v{a+2}, v{a+3}")
    def ship(p):
        b = PK + 4 * p
        A(f"v_permlane16_swap_b32 v{b}, v{b+2}"); A(f"v_permlane16_swap_b32 v{b+1}, v{b+3}")
        A(f"buffer_store_dwordx4 v[{b}:{b+3}], v{vB}, s[40:43], s60 offen offset:{64*p} sc1")
    for ct in range(8):
        for ks in range(4):
            lgw(("p", ks)); lgw(("v", 4 * ct + ks))
            g.mfma(OA + 4 * ct, KF + 4 * (4 * ct + ks), PF + 4 * ks, ks == 0)
            if ct == 0 and ks == 3:
                for k2 in range(4): g.mfma(LA, ON, PF + 4 * k2, k2 == 0)
            if ct == 3 and ks == 1: A(f"v_mov_b32 v45, v{LA}")
            if ks == 3 and ct >= 2: pack(ct - 2)
            if ks == 1 and ct in (4, 6): ship((ct - 4) // 2)
    pack(6); ship(2); pack(7); ship(3)
    A("s_mov_b64 exec, 0xffff")
    A("buffer_store_dwordx2 v[44:45], v18, s[40:43], s61 offen sc1")
    A("s_mov_b64 exec, -1")
    g.stamp(9)
    A("s_cmp_lg_u32 s31, 0"); A("s_cbranch_scc1 L_fin")
    A("s_cmp_ge_u32 s6, 20"); A("s_cbranch_scc1 L_fin")
    A("s_mul_i32 s3, s5, 10"); A("s_lshr_b32 s52, s6, 1"); A("s_add_u32 s3, s3, s52")
    A("v_lshrrev_b32 v46, 2, v1"); A(f"v_mul_u32_u24 v25, 2560, v46"); A("v_and_b32 v46, 3, v1"); A(f"v_lshl_add_u32 v25, v46, 4, v25")
    A(f"s_mul_i32 s52, s4, {64*2560}"); A("s_lshl_b32 s53, s3, 6"); A("s_add_u32 s52, s52, s53"); A(f"s_add_u32 s52, s52, {OC}")
    for n in range(1, 4): A(f"s_add_u32 s{52+n}, s{51+n}, {16*2560}")
    A("s_mul_i32 s61, s4, 1280"); A("s_lshl_b32 s3, s3, 5"); A("s_add_u32 s61, s61, s3")
    A("s_mov_b32 s44, s20"); A("s_mov_b32 s45, s21"); A("s_movk_i32 s46, 2560"); A("s_mov_b32 s47, 0x20000")
    A("s_mov_b32 s48, s22"); A("s_mov_b32 s49, s23"); A("s_movk_i32 s50, 256"); A("s_mov_b32 s51, 0x20000")
    A("s_mov_b32 s60, s52")
    g.armcheck("R", FLB, "U")
    A("s_mov_b32 s52, s60"); A(f"s_add_u32 s54, s53, {16*2560}"); A(f"s_add_u32 s55, s54, {16*2560}")
    if o.sleepc0: A(f"s_sleep {o.sleepc0}")
    GC = 52
    A("s_mov_b32 s33, 0x40000")
    A("L_T_gc:")
    for n in range(4): A(f"buffer_load_dwordx4 v[{GC+4*n}:{GC+4*n+3}], v25, s[40:43], s{52+n} offen sc1")
    A("s_waitcnt vmcnt(0)")
    g.validate(GC, 16, "L_T_gc_ok")
    if o.sleepc: A(f"s_sleep {o.sleepc}")
    A("s_sub_u32 s33, s33, 1"); A("s_cbranch_scc0 L_T_gc")
    A("L_T_gc_ok:")
    g.stamp(10)
    for st in (8, 4):
        for k in range(st): A(f"v_add_f32 v{GC+k}, v{GC+k}, v{GC+st+k}")
    for r in range(4): A(f"v_add_f32_dpp v{GC+r}, v{GC+r}, v{GC+r} row_ror:4 row_mask:0xf bank_mask:0xf")
    for r in range(4): A(f"v_add_f32_dpp v{GC+r}, v{GC+r}, v{GC+r} row_ror:8 row_mask:0xf bank_mask:0xf")
    for sw in ("16", "32"):
        for r in range(4): A(f"v_mov_b32 v{GC+4+r}, v{GC+r}")
        for r in range(4): A(f"v_permlane{sw}_swap_b32 v{GC+r}, v{GC+4+r}")
        for r in range(4): A(f"v_add_f32 v{GC+r}, v{GC+r}, v{GC+4+r}")
    A(f"v_cvt_pk_bf16_f32 v{GC}, v{GC}, v{GC+1}"); A(f"v_cvt_pk_bf16_f32 v{GC+1}, v{GC+2}, v{GC+3}")
    A("v_lshlrev_b32 v46, 3, v1")
    A("s_mov_b64 exec, 15")
    A(f"buffer_store_dwordx2 v[{GC}:{GC+1}], v46, s[44:47], s61 offen")
    if o.stamps: A("s_waitcnt vmcnt(0)"); g.stamp(11)
    if o.dbgend:
        A("s_cmp_lg_u32 s6, 1"); A("s_cbranch_scc1 L_fin")
        A("s_waitcnt vmcnt(0)"); A("s_memrealtime s[54:55]"); A("s_waitcnt lgkmcnt(0)")
        A("v_mov_b32 v46, s54"); A("v_mov_b32 v44, 0"); A("s_and_b32 s3, s2, 7"); A("s_lshl_b32 s3, s3, 2"); A("s_add_u32 s3, s3, 32")
        A("s_mov_b64 exec, 1")
        A("buffer_store_dword v46, v44, s[48:51], s3 offen")
    A("L_fin:")
    g.fin()
    A("L_PU:")
    g.vm = list(vm_save)
    op = [0]
    def nxt_wo():
        i = op[0]
        if i >= 20: return
        op[0] += 1
        k, cb = divmod(i, 5)
        if cb == 0: A(f"s_movk_i32 s64, {1280*k}")
        d = WO + 4 * i
        A(f"buffer_load_dwordx4 v[{d}:{d+3}], v{vWO}, s[56:59], s64 offen offset:{256*cb} {LD}"); g.vmi(("wo", i))
    p_tail(nxt_wo, o.to1)
    A("v_lshrrev_b32 v47, 4, v1"); A("s_lshl_b32 s3, s31, 6"); A("v_lshl_add_u32 v44, v47, 4, s3"); A(f"v_add_u32 v44, {L_CXACC}, v44")
    A("v_and_b32 v47, 15, v1"); A("v_and_b32 v46, 16, v1"); A("v_lshl_add_u32 v46, v47, 5, v46"); A("s_mul_i32 s3, s31, 2560"); A(f"v_add_u32 v46, s3, v46")
    A("s_mul_i32 s3, s31, 640"); A(f"v_add_u32 v47, s3, v{vL16}")
    A("s_lshl_b32 s62, s26, 1"); A("s_add_u32 s62, s62, s29"); A("s_mul_i32 s62, s62, 2560"); A(f"s_add_u32 s62, s62, {OC}")
    for _ in range(o.du // 100): A("s_sleep 100")
    if o.du % 100: A(f"s_sleep {o.du % 100}")
    while op[0] < 20:
        g.vmlimit((o.to1 if op[0] < o.nslow else o.to2) - 1); nxt_wo()
    g.stamp(5)
    A("s_barrier")
    g.stamp(7)
    for w in range(4): A(f"ds_read_b128 v[{80+4*w}:{83+4*w}], v44 offset:{256*w}")
    A("s_waitcnt lgkmcnt(0)")
    for k in range(4): A(f"v_add_f32 v{80+k}, v{80+k}, v{84+k}")
    for k in range(4): A(f"v_add_f32 v{88+k}, v{88+k}, v{92+k}")
    for k in range(4): A(f"v_add_f32 v{QF+k}, v{80+k}, v{88+k}")
    for k in range(2): A(f"v_cvt_pk_bf16_f32 v{QP+k}, v{QF+2*k}, v{QF+2*k+1}")
    OA7 = 60; F7 = 80
    for k in range(4):
        g.frag(F7 + 4 * k, QP + (k >> 1), k & 1, SEL)
        for cb in range(5):
            g.vmwait(("wo", 5 * k + cb))
            g.mfma(OA7 + 4 * cb, F7 + 4 * k, WO + 4 * (5 * k + cb), k == 0)
    g.stamp(8)
    A("s_mov_b32 exec_hi, 0")
    for cb in range(5): A(f"ds_write_b128 v46, v[{OA7+4*cb}:{OA7+4*cb+3}] offset:{L_OUTP+512*cb}")
    A("s_mov_b32 exec_hi, 0xff")
    A("s_waitcnt lgkmcnt(0)")
    A("s_barrier")
    for w in range(4): A(f"ds_read_b128 v[{F7+4*w}:{F7+4*w+3}], v47 offset:{L_OUTP+2560*w}")
    A("s_waitcnt lgkmcnt(0)")
    for r in range(4): A(f"v_add_f32 v{F7+r}, v{F7+r}, v{F7+4+r}")
    for r in range(4): A(f"v_add_f32 v{F7+8+r}, v{F7+8+r}, v{F7+12+r}")
    for r in range(4): A(f"v_add_f32 v{F7+r}, v{F7+r}, v{F7+8+r}")
    A(f"buffer_store_dwordx4 v[{F7}:{F7+3}], v47, s[40:43], s62 offen sc1")
    g.stamp(9)
    if o.stamps: A("s_waitcnt vmcnt(0)"); g.stamp(10)
    g.fin()
    g.vm = []
    A("L_S:")
    A("s_sub_u32 s31, s31, 4")
    SEN = 16; vA = 25; vB = 26
    A(f"v_lshlrev_b32 v{vL16}, 4, v1")
    for r in range(4): A(f"v_mov_b32 v{SEN+r}, -1")
    A("s_waitcnt lgkmcnt(0)")
    g.stamp(1)
    A("s_mov_b32 s40, s24"); A("s_mov_b32 s41, s25"); A(f"s_mov_b32 s42, {WS_END}"); A("s_mov_b32 s43, 0x20000")
    A("s_mov_b32 s48, s22"); A("s_mov_b32 s49, s23"); A("s_movk_i32 s50, 256"); A("s_mov_b32 s51, 0x20000")
    A("s_lshl_b32 s67, s4, 7")
    A("s_lshl_b32 s62, s26, 1"); A("s_add_u32 s62, s62, s29")
    A("s_and_b32 s3, s2, 7"); A("s_lshl_b32 s3, s3, 5"); A("s_add_u32 s3, s3, s6"); A("s_lshl_b32 s68, s3, 7")
    A("v_mov_b32 v44, 0")
    A("s_cmp_lg_u32 s31, 0"); A("s_cbranch_scc1 L_S_w123")
    A("s_lshl_b32 s52, s5, 3"); A("s_add_u32 s52, s52, s67")
    A("s_lshl_b32 s3, s62, 1"); A("s_add_u32 s3, s3, s30"); A("s_lshl_b32 s3, s3, 9")
    A("s_mov_b32 exec_hi, 0")
    A(f"buffer_store_dwordx4 v[{SEN}:{SEN+3}], v{vL16}, s[40:43], s3 offen sc1")
    A("s_mov_b64 exec, 1")
    A("s_cmp_lg_u32 s6, 0"); A("s_cbranch_scc1 L_S_nolead")
    A("s_memrealtime s[54:55]"); A("s_waitcnt lgkmcnt(0)"); A("s_or_b32 s54, s54, 1")
    A("v_mov_b32 v46, s54"); A("v_mov_b32 v47, s55")
    A("buffer_store_dwordx2 v[46:47], v44, s[48:51], s52 offen sc1")
    A("s_branch L_S_np_ok")
    A("L_S_nolead:")
    if not o.arm: A("s_branch L_S_np_ok")
    A("s_mov_b32 s33, 0x40000")
    A("L_S_np:")
    A(f"s_sleep {o.sleepn}")
    A("buffer_load_dwordx2 v[46:47], v44, s[48:51], s52 offen sc1")
    A("s_waitcnt vmcnt(0)")
    A("v_cmp_ne_u32 vcc, 0, v46"); A("s_cbranch_vccnz L_S_np_ok")
    A("s_sub_u32 s33, s33, 1"); A("s_cbranch_scc0 L_S_np")
    A("L_S_np_ok:")
    A(f"s_add_u32 s3, s68, {FLA}")
    A("s_waitcnt vmcnt(0)")
    A("buffer_store_dwordx2 v[46:47], v44, s[40:43], s3 offen sc1")
    A("v_mov_b32 v34, v46"); A("v_mov_b32 v35, v47")
    A("s_mov_b64 exec, -1")
    g.stamp(2)
    A("s_branch L_S_join")
    A("L_S_w123:")
    if o.pf:
        A("s_cmp_lg_u32 s31, 2"); A("s_cbranch_scc1 L_S_npf")
        A("s_getpc_b64 s[34:35]")
        A("L_pc:")
        A(f"s_sub_u32 s34, s34, L_pc-{NAME}_kernel"); A("s_subb_u32 s35, s35, 0")
        A(f"s_and_b32 s3, s6, {o.pf-1}"); A("s_lshl_b32 s3, s3, 10"); A(f"v_add_u32 v46, s3, v{vL16}")
        A(f"global_load_dwordx4 v[200:203], v46, s[34:35]")
        A("L_S_npf:")
    if o.hp:
        A("s_cmp_lg_u32 s31, 1"); A("s_cbranch_scc1 L_S_nhp")
        A("s_lshr_b32 s3, s6, 4"); A("s_lshl_b32 s3, s3, 10"); A("s_lshl_b32 s52, s5, 11"); A("s_add_u32 s3, s3, s52"); A("s_add_u32 s3, s3, 384")
        A("s_and_b32 s52, s6, 15"); A("s_lshl_b32 s52, s52, 18"); A("s_add_u32 s3, s3, s52")
        g.srd(44, 14, "s3", 4194304)
        A("v_lshlrev_b32 v46, 13, v5"); A("v_lshl_add_u32 v46, v6, 4, v46")
        A("s_mov_b32 s52, 0")
        for n in range(o.hp):
            A(f"buffer_load_dwordx4 v[{200+4*n}:{203+4*n}], v46, s[44:47], s52 offen {LD}"); A("s_add_u32 s52, s52, 65536")
        A("L_S_nhp:")
    A("L_S_join:")
    g.selectors(8, 46)
    A("s_cmp_eq_u32 s30, 0"); A("s_cbranch_scc1 L_SU")
    def flagB():
        A(f"s_add_u32 s3, s68, {FLB}")
        A("s_mov_b64 exec, 1")
        A("buffer_store_dwordx2 v[34:35], v44, s[40:43], s3 offen sc1")
        A("s_mov_b64 exec, -1")
    A("s_lshl_b32 s60, s4, 1"); A("s_add_u32 s60, s60, s29"); A("s_lshl_b32 s60, s60, 2"); A("s_add_u32 s60, s60, s31"); A("s_lshl_b32 s60, s60, 7"); A("s_add_u32 s60, s60, s28")
    A("s_lshl_b32 s61, s4, 1"); A("s_add_u32 s61, s61, s29"); A("s_lshl_b32 s61, s61, 5"); A("s_add_u32 s61, s61, s28"); A("s_lshl_b32 s61, s61, 2"); A("s_add_u32 s61, s61, s31")
    A("s_lshl_b32 s61, s61, 7"); A(f"s_add_u32 s61, s61, {ST}")
    A("s_lshl_b32 s60, s60, 10"); A(f"s_add_u32 s60, s60, {OB}")
    A("s_barrier")
    g.stamp(3)
    if o.inval:
        for n in range(4):
            A(f"buffer_store_dwordx4 v[{SEN}:{SEN+3}], v{vL16}, s[40:43], s60 offen sc1")
            if n < 3: A("s_add_u32 s60, s60, 32768")
        A("s_mov_b64 exec, 0xff")
        A(f"buffer_store_dwordx4 v[{SEN}:{SEN+3}], v{vL16}, s[40:43], s61 offen sc1")
        A("s_mov_b64 exec, -1")
    A("s_cmp_lg_u32 s31, 0"); A("s_cbranch_scc1 L_T_noarm")
    g.armcheck("T", FLA, "A")
    A("L_T_noarm:")
    A("s_waitcnt vmcnt(0)")
    g.stamp(4)
    A("s_lshl_b32 s52, s4, 1"); A("s_add_u32 s52, s52, s29"); A("s_lshl_b32 s52, s52, 2"); A("s_add_u32 s52, s52, s31"); A("s_lshl_b32 s52, s52, 13")
    A("s_add_u32 s53, s52, 4096")
    A(f"s_mul_i32 s3, s31, {4*PITCH}"); A(f"v_add_u32 v{vA}, s3, v{vL16}"); A(f"v_add_u32 v{vA}, {L_QI}, v{vA}")
    A("v_mov_b32 v20, 0x05040100"); A("v_mov_b32 v21, 0x07060302"); A("v_mov_b32 v22, 0x3f803f80")
    A("s_barrier")
    A("s_cmp_lg_u32 s31, 0"); A("s_cbranch_scc1 L_T_nofl")
    flagB()
    A("L_T_nofl:")
    GA = 48
    A("s_mov_b32 s33, 0x40000")
    A("L_T_ga:")
    for n in range(8): A(f"buffer_load_dwordx4 v[{GA+4*n}:{GA+4*n+3}], v{vL16}, s[40:43], s{52+(n>>2)} offen offset:{1024*(n&3)} sc1")
    A("s_waitcnt vmcnt(0)")
    g.validate(GA, 32, "L_T_ga_ok")
    if o.sleepa: A(f"s_sleep {o.sleepa}")
    A("s_sub_u32 s33, s33, 1"); A("s_cbranch_scc0 L_T_ga")
    A("L_T_ga_ok:")
    g.stamp(5)
    for hh in range(4):
        a = GA + 8 * hh; b = a + 4; t = 80 + 8 * (hh & 1)
        for k in range(4):
            A(f"v_perm_b32 v{t+2*k}, v{b+k}, v{a+k}, v20"); A(f"v_perm_b32 v{t+2*k+1}, v{b+k}, v{a+k}, v21")
        for k in range(8): A(f"v_dot2_f32_bf16 v{t+k}, v{t+k}, v22, 0")
        for k in range(4): A(f"v_cvt_pk_bf16_f32 v{a+k}, v{t+2*k}, v{t+2*k+1}")
        A(f"ds_write_b128 v{vA}, v[{a}:{a+3}] offset:{hh*PITCH}")
    A("s_waitcnt lgkmcnt(0)")
    g.stamp(6)
    A("s_barrier")
    g.fin()
    A("L_SU:")
    UV = 128; SEL = 8
    A("s_lshl_b32 s3, s31, 20"); A("s_add_u32 s61, s36, s3")
    g.srd(44, 16, "s61", 4194304)
    A("v_lshlrev_b32 v42, 17, v5"); A("v_lshl_add_u32 v42, v6, 4, v42")
    A(f"v_lshlrev_b32 v{vA}, 12, v5"); A(f"v_lshl_add_u32 v{vA}, v6, 4, v{vA}")
    A(f"v_lshlrev_b32 v{vB}, 11, v5")
    A("s_lshr_b32 s59, s26, 4"); A("s_lshl_b32 s59, s59, 7"); A("s_add_u32 s59, s59, s31"); A("s_lshl_b32 s59, s59, 4"); A("s_and_b32 s3, s28, 15"); A("s_add_u32 s59, s59, s3")
    A("s_lshl_b32 s59, s59, 3"); A(f"s_add_u32 s59, s59, {ST}")
    A("s_lshl_b32 s58, s26, 15"); A("s_lshl_b32 s3, s31, 8"); A("s_add_u32 s58, s58, s3"); A(f"s_add_u32 s58, s58, {OB}")
    A("v_and_b32 v46, 16, v1"); A("v_lshl_add_u32 v20, v6, 5, v46"); A("s_lshl_b32 s3, s31, 8"); A(f"s_add_u32 s54, s3, {L_CXACC}"); A("v_add_u32 v21, s54, v20")
    A(f"s_add_u32 s3, s3, {L_CC}"); A("v_lshrrev_b32 v20, 1, v20"); A("v_add_u32 v20, s3, v20"); A("v_lshl_add_u32 v22, v5, 5, s3")
    A("s_barrier")
    g.stamp(3)
    A("s_cmp_lg_u32 s31, 0"); A("s_cbranch_scc1 L_U_noinv")
    A("s_mul_i32 s62, s62, 2560"); A(f"s_add_u32 s62, s62, {OC}")
    A(f"buffer_store_dwordx4 v[{SEN}:{SEN+3}], v{vL16}, s[40:43], s62 offen sc1")
    A(f"buffer_store_dwordx4 v[{SEN}:{SEN+3}], v{vL16}, s[40:43], s62 offen offset:1024 sc1")
    A("s_mov_b32 exec_hi, 0")
    A(f"buffer_store_dwordx4 v[{SEN}:{SEN+3}], v{vL16}, s[40:43], s62 offen offset:2048 sc1")
    A("s_mov_b32 exec_hi, -1")
    A("L_U_noinv:")
    for _ in range(o.dv // 100): A("s_sleep 100")
    if o.dv % 100: A(f"s_sleep {o.dv % 100}")
    A("s_mov_b32 s39, 0")
    for n in range(16):
        g.vmlimit((o.tv1 if n < o.nslow else o.tv2) - 1)
        if n == 8:
            A("s_cmp_lg_u32 s31, 0"); A("s_cbranch_scc1 L_U_nofl")
            flagB()
            A("L_U_nofl:")
        A(f"buffer_load_dwordx4 v[{UV+4*n}:{UV+4*n+3}], v42, s[44:47], s39 offen {LD}"); g.vmi(("uv", n))
        A("s_add_u32 s39, s39, 8192")
    g.stamp(4)
    GB = 48; GS = 80
    g.armcheck("U", FLB, "T"); g.vm = []
    g.stamp(5)
    if o.cheapb:
        A("s_mov_b32 s33, 0x40000")
        A("L_U_gs:")
        for k in range(4): A(f"buffer_load_dwordx2 v[{GS+2*k}:{GS+2*k+1}], v{vB}, s[40:43], s59 offen offset:{512*k} sc1")
        A("s_waitcnt vmcnt(0)")
        g.validate(GS, 8, "L_U_gs_ok")
        if o.sleepb: A(f"s_sleep {o.sleepb}")
        A("s_sub_u32 s33, s33, 1"); A("s_cbranch_scc0 L_U_gs")
        A("L_U_gs_ok:")
        g.stamp(9)
    A("s_mov_b32 s33, 0x40000")
    A("L_U_gb:")
    for cb in range(2):
        for n in range(4): A(f"buffer_load_dwordx4 v[{GB+16*cb+4*n}:{GB+16*cb+4*n+3}], v{vA}, s[40:43], s58 offen offset:{1024*n+128*cb} sc1")
    A("s_waitcnt vmcnt(0)")
    g.validate(GB, 32, "L_U_gb_ok")
    if o.sleepb: A(f"s_sleep {o.sleepb}")
    A("s_sub_u32 s33, s33, 1"); A("s_cbranch_scc0 L_U_gb")
    A("L_U_gb_ok:")
    g.stamp(6)
    A(f"v_max3_f32 v46, v{GS}, v{GS+2}, v{GS+4}"); A(f"v_max_f32 v46, v46, v{GS+6}")
    A("v_max_f32_dpp v46, v46, v46 row_ror:8 row_mask:0xf bank_mask:0xf")
    A("v_mov_b32 v47, v46"); A("v_permlane16_swap_b32 v46, v47"); A("v_max_f32 v46, v46, v47")
    A("v_mov_b32 v47, v46"); A("v_permlane32_swap_b32 v46, v47"); A("v_max_f32 v46, v46, v47")
    for n in range(4): A(f"v_sub_f32 v{GS+2*n}, v{GS+2*n}, v46")
    for n in range(4): A(f"v_exp_f32 v{GS+2*n}, v{GS+2*n}")
    A(f"v_cvt_pk_bf16_f32 v28, v{GS}, v{GS+2}"); A(f"v_cvt_pk_bf16_f32 v29, v{GS+4}, v{GS+6}")
    for n in range(4):
        g.frag(88 + 4 * n, 28 + (n >> 1), n & 1, SEL)
        for cb in range(2): g.mfma(32 + 4 * cb, 88 + 4 * n, GB + 16 * cb + 4 * n, n == 0)
    A(f"v_mul_f32 v46, v{GS}, v{GS+1}")
    for n in range(1, 4): A(f"v_fmac_f32 v46, v{GS+2*n}, v{GS+2*n+1}")
    A("v_add_f32_dpp v46, v46, v46 row_ror:8 row_mask:0xf bank_mask:0xf")
    A("v_mov_b32 v47, v46"); A("v_permlane16_swap_b32 v46, v47"); A("v_add_f32 v46, v46, v47")
    g.fold(32, 88, 8)
    for k in range(4): A(f"v_cvt_pk_bf16_f32 v{32+k}, v{32+2*k}, v{33+2*k}")
    A("s_mov_b64 exec, 0x00ff00ff")
    A("ds_write_b64 v20, v[32:33]"); A("ds_write_b64 v20, v[34:35] offset:128")
    A("s_mov_b64 exec, -1")
    for k in range(2): A(f"ds_read_b128 v[{64+4*k}:{67+4*k}], v22 offset:{16*k}")
    A("v_mov_b32 v47, v46"); A("v_permlane32_swap_b32 v46, v47"); A("v_add_f32 v46, v46, v47")
    A("v_rcp_f32 v46, v46")
    A("s_waitcnt lgkmcnt(0)")
    g.stamp(7)
    for n in range(16):
        f = 72 + 4 * (n & 1)
        g.frag(f, 64 + (n >> 1), n & 1, SEL)
        g.mfma(32, f, UV + 4 * n, n == 0)
    g.fold(32, 88)
    for r in range(4): A(f"v_mul_f32 v{32+r}, v{32+r}, v46")
    A("s_mov_b64 exec, 0x00ff00ff")
    A("ds_write_b128 v21, v[32:35]")
    A("s_mov_b64 exec, -1")
    A("s_waitcnt lgkmcnt(0)")
    g.stamp(8)
    A("s_barrier")
    if o.stamps:
        A("L_stamps:")
        A("s_mov_b64 exec, 1")
        A("s_waitcnt lgkmcnt(0)")
        A("v_lshrrev_b32 v2, 6, v0"); A("s_lshl_b32 s3, s2, 3"); A("v_add_u32 v2, s3, v2"); A(f"v_mul_u32_u24 v2, {NST*8}, v2")
        A("s_add_u32 s40, s24, 0x8000000"); A("s_addc_u32 s41, s25, 0"); A("s_mov_b32 s42, 0x1000000"); A("s_mov_b32 s43, 0x20000")
        for i in range(NST):
            A(f"v_mov_b32 v4, s{72+2*i}"); A(f"v_mov_b32 v5, s{73+2*i}")
            A(f"buffer_store_dwordx2 v[4:5], v2, s[40:43], 0 offen offset:{8*i}")
            A("s_nop 1")
    A("L_end:")
    A("s_endpgm")
    lines, nn = hz.fix([l for l in g.L if l is not None])
    body = "\n".join(("" if l.endswith(":") else "    ") + l for l in lines)
    txt = (HDR + f"; @launch grid=(256,1,1) block=(512,1,1) lds={L_END}\n"
        ".amdgcn_target \"amdgcn-amd-amdhsa--gfx950\"\n.text\n"
        f".globl {NAME}_kernel\n.p2align 8\n.type {NAME}_kernel,@function\n{NAME}_kernel:\n" + body + "\n"
        + (f".org {NAME}_kernel+{o.pf*1024}, 0\n" if o.pf else "") +
        ".section .rodata,\"a\"\n.p2align 6\n"
        f".amdhsa_kernel {NAME}_kernel\n  .amdhsa_next_free_vgpr 256\n  .amdhsa_next_free_sgpr 96\n"
        "  .amdhsa_accum_offset 256\n  .amdhsa_group_segment_fixed_size 0\n  .amdhsa_kernarg_size 120\n"
        "  .amdhsa_user_sgpr_count 2\n  .amdhsa_user_sgpr_kernarg_segment_ptr 1\n  .amdhsa_system_sgpr_workgroup_id_x 1\n"
        ".end_amdhsa_kernel\n")
    return txt, nn

def parse(argv):
    ap = argparse.ArgumentParser()
    ap.add_argument("-o", default="k2.s")
    for k, d in dict(stamps=0, tw=7, tk=7, tk2=8, to1=3, to2=4, tv1=3, tv2=4, nslow=6, pf=16, hp=4, dinv=0,
                     sleepa0=20, sleepa=2, sleepb=4, cheapb=1, sleepc0=20, sleepc=2, sleepn=24, dbgend=0, du=0, dv=0, early=0, arm=1, inval=1, sleepf=16).items():
        ap.add_argument("--" + k, type=int, default=d)
    ap.add_argument("--ld", default="")
    return ap.parse_args(argv)
if __name__ == "__main__":
    o = parse(sys.argv[1:])
    txt, nn = gen(o)
    open(o.o, "w").write(txt)
    print("written", o.o, "nops inserted", nn)
```

```python
import sys, argparse
sys.path.insert(0, "gen")
import hz
NAME = "concat_heads__compressed_kv_cla__compressed_kv_cla__decode"
HDR = open("cdna_kernels/%s.s.ref" % NAME).read().split("; Override launch")[0]

QA = 0x0
ST = 0x20000
FLA = 0x40000
OC = 0x50000
OB = 0x100000
WS_END = 0x300000
PITCH = 1056
L_KV = 0
L_QI = 128 * PITCH
L_MISC = L_QI + 16 * PITCH
L_QACC = L_MISC
L_CXACC = L_MISC + 1024
L_CC = L_MISC + 2048
L_NON = L_MISC + 3072 - 16
L_MX = L_MISC + 3072
L_P = L_MISC + 4096
L_END = L_P + 4096
L_OUTP = 0
SCALE = 0x3e0293ee
NST = 12

class G:
    def __init__(s, opt):
        s.L = []; s.o = opt; s.vm = []; s.nlab = 0
    def A(s, t): s.L.append(t)
    def vmi(s, tag): s.vm.append(tag)
    def vmwait(s, tag):
        if tag not in s.vm: return
        k = len(s.vm) - 1 - max(i for i, t in enumerate(s.vm) if t == tag)
        s.A(f"s_waitcnt vmcnt({k})")
        s.vm = s.vm[len(s.vm) - k:]
    def vmlimit(s, k):
        if len(s.vm) > k:
            s.A(f"s_waitcnt vmcnt({k})"); s.vm = s.vm[len(s.vm) - k:]
    def stamp(s, i):
        if s.o.stamps: s.A(f"s_memrealtime s[{72+2*i}:{73+2*i}]")
    def srd(s, d, base, off_sreg, size):
        s.A(f"s_add_u32 s{d}, s{base}, {off_sreg}")
        s.A(f"s_addc_u32 s{d+1}, s{base+1}, 0")
        s.A(f"s_sub_u32 s{d+2}, {size}, {off_sreg}")
        s.A(f"s_mov_b32 s{d+3}, 0x20000")
    def selectors(s, sel, tmp):
        A = s.A
        A(f"v_and_b32 v{tmp}, 1, v1")
        A(f"v_cmp_eq_u32 vcc, 1, v{tmp}")
        A(f"v_mov_b32 v{tmp+1}, 0x0c0c0100"); A(f"v_mov_b32 v{tmp+2}, 0x01000c0c")
        A(f"v_cndmask_b32 v{tmp+1}, v{tmp+1}, v{tmp+2}, vcc")
        A(f"v_mov_b32 v{tmp+2}, 0x0c0c0302"); A(f"v_mov_b32 v{tmp+3}, 0x03020c0c")
        A(f"v_cndmask_b32 v{tmp+2}, v{tmp+2}, v{tmp+3}, vcc")
        A(f"v_mov_b32 v{tmp+3}, 0x0c0c0c0c")
        A(f"v_bfe_u32 v{tmp}, v1, 1, 2")
        for r in range(4):
            A(f"v_cmp_eq_u32 vcc, {r}, v{tmp}")
            A(f"v_cndmask_b32 v{sel+r}, v{tmp+3}, v{tmp+1}, vcc")
            A(f"v_cndmask_b32 v{sel+4+r}, v{tmp+3}, v{tmp+2}, vcc")
    def frag(s, dst, src, par, sel):
        for r in range(4): s.A(f"v_perm_b32 v{dst+r}, v{src}, v{src}, v{sel+4*par+r}")
    def fold(s, d, t, n=4):
        for r in range(n): s.A(f"v_mov_b32 v{t+r}, v{d+r}")
        for r in range(n): s.A(f"v_permlane32_swap_b32 v{d+r}, v{t+r}")
        for r in range(n): s.A(f"v_add_f32_dpp v{d+r}, v{t+r}, v{d+r} row_ror:8 row_mask:0xf bank_mask:0xf")
    def mfma(s, d, a, b, first):
        s.A(f"v_mfma_f32_16x16x32_bf16 v[{d}:{d+3}], v[{a}:{a+3}], v[{b}:{b+3}], " + ("0" if first else f"v[{d}:{d+3}]"))
    def validate(s, first, n, lab_ok):
        A = s.A
        A(f"v_max3_u32 v46, v{first}, v{first+1}, v{first+2}")
        A(f"v_max3_u32 v47, v{first+3}, v{first+4}, v{first+5}")
        k = 6; which = 46
        while k + 1 < n:
            A(f"v_max3_u32 v{which}, v{which}, v{first+k}, v{first+k+1}"); k += 2; which = 93 - which
        A("v_max_u32 v46, v46, v47")
        A("v_cmp_eq_u32 vcc, -1, v46")
        A(f"s_cbranch_vccz {lab_ok}")
    def armcheck(s, tag, fl, mode, again=True):
        A = s.A
        if not s.o.arm: return
        A(f"s_lshl_b32 s52, s4, 14"); A(f"s_add_u32 s52, s52, {fl}"); A("s_lshl_b32 s67, s4, 7")
        if mode == "A":
            A("s_lshl_b32 s3, s29, 6"); A("v_add_u32 v37, s3, v1")
        elif mode == "T":
            A("v_and_b32 v37, 31, v1"); A("s_or_b32 s3, s5, 1"); A("s_and_b32 s3, s3, 3"); A("s_lshr_b32 s54, s5, 1"); A("s_lshl_b32 s3, s54, 1"); A("s_add_u32 s3, s3, 1")
            A("v_lshl_add_u32 v37, v37, 2, s3")
        else:
            A("v_lshlrev_b32 v37, 1, v1")
        A("v_lshrrev_b32 v36, 5, v37"); A("v_lshlrev_b32 v36, 3, v36"); A("v_lshlrev_b32 v37, 7, v37")
        A("s_mov_b32 s33, 0x40000")
        A(f"L_{tag}_arm:")
        A(f"buffer_load_dwordx2 v[32:33], v36, s[48:51], s67 offen sc1")
        A(f"buffer_load_dwordx2 v[28:29], v37, s[40:43], s52 offen sc1")
        A("s_waitcnt vmcnt(0)")
        A("v_cmp_ne_u64 vcc, v[28:29], v[32:33]"); A("v_cmp_eq_u32 s[70:71], 0, v32")
        A("s_nop 0")
        A("s_or_b64 vcc, vcc, s[70:71]")
        A(f"s_cbranch_vccz L_{tag}_arm_ok")
        A(f"s_sleep {s.o.sleepf}")
        A("s_sub_u32 s33, s33, 1"); A(f"s_cbranch_scc0 L_{tag}_arm")
        A(f"L_{tag}_arm_ok:")
    def fin(s):
        if s.o.stamps: s.A("s_branch L_stamps")
        else: s.A("s_endpgm")

def gen(o):
    g = G(o); A = g.A
    LD = o.ld
    if o.stamps:
        for i in range(1, NST): A(f"s_mov_b64 s[{72+2*i}:{73+2*i}], 0")
    g.stamp(0)
    A("s_cmp_ge_u32 s2, 256"); A("s_cbranch_scc1 L_end")
    A("s_bfe_u32 s4, s2, 0x10002")
    A("s_mul_i32 s3, s4, 48")
    A("s_add_u32 s34, s0, s3"); A("s_addc_u32 s35, s1, 0")
    A("s_load_dwordx4 s[8:11], s[34:35], 0")
    A("s_load_dwordx4 s[12:15], s[34:35], 16")
    A("s_load_dwordx4 s[16:19], s[34:35], 32")
    A("s_load_dwordx4 s[20:23], s[0:1], 96")
    A("s_load_dwordx2 s[24:25], s[0:1], 112")
    A("v_lshrrev_b32 v4, 6, v0")
    A("v_and_b32 v1, 63, v0")
    A("v_readfirstlane_b32 s31, v4")
    A("s_and_b32 s5, s2, 3"); A("s_lshr_b32 s6, s2, 3")
    A("s_lshl_b32 s28, s5, 3"); A("s_lshr_b32 s3, s6, 2"); A("s_add_u32 s28, s28, s3")
    A("s_bfe_u32 s29, s6, 0x10001"); A("s_and_b32 s30, s6, 1")
    A("v_lshrrev_b32 v5, 3, v1"); A("v_and_b32 v6, 7, v1")
    A("s_lshl_b32 s36, s28, 8"); A("s_lshl_b32 s3, s29, 7"); A("s_add_u32 s36, s36, s3")
    A("s_lshl_b32 s26, s4, 5"); A("s_add_u32 s26, s26, s28")
    A("s_cmp_ge_u32 s31, 4"); A("s_cbranch_scc1 L_S")
    SEL = 8; XV = 16; FR = 28; ACC = 36; WQ = 100; UK = 180; WO = 100
    vWQ, vX, vUK, vWO, vQA, vL16 = 40, 41, 42, 43, 45, 7
    A("s_lshl_b32 s3, s31, 3"); A(f"v_add_u32 v{vX}, s3, v5"); A(f"v_mul_u32_u24 v{vX}, 20, v{vX}")
    A(f"v_lshlrev_b32 v{vWQ}, 12, v{vX}"); A(f"v_lshl_add_u32 v{vWQ}, v6, 4, v{vWQ}")
    A(f"v_lshlrev_b32 v{vUK}, 16, v5"); A(f"v_lshl_add_u32 v{vUK}, v6, 4, v{vUK}")
    A("s_mul_i32 s37, s30, 640"); A("s_sub_u32 s38, 640, s37")
    A("s_lshl_b32 s39, s37, 12"); A("s_lshl_b32 s60, s38, 12")
    A("s_lshl_b32 s27, s30, 2"); A("s_add_u32 s27, s27, s31"); A("s_lshl_b32 s3, s27, 19"); A("s_add_u32 s61, s36, s3")
    A("s_waitcnt lgkmcnt(0)")
    g.stamp(1)
    A("s_mov_b32 s40, s8"); A("s_mov_b32 s41, s9"); A("s_mov_b32 s42, 1280"); A("s_mov_b32 s43, 0x20000")
    g.srd(44, 12, "s36", 5242880)
    for hf in range(2):
        A(f"buffer_load_dwordx4 v[{XV+6*hf}:{XV+6*hf+3}], v{vX}, s[40:43], s{37+hf} offen"); g.vmi("x")
        A(f"buffer_load_dword v{XV+6*hf+4}, v{vX}, s[40:43], s{37+hf} offen offset:16"); g.vmi("x")
    g.srd(48, 14, "s61", 4194304)
    seq = [("wq", n) for n in range(20)] + [("uk", n) for n in range(8)]
    pos = [0]
    def issue_p():
        if pos[0] >= len(seq): return
        k, n = seq[pos[0]]; pos[0] += 1
        if k == "wq":
            so = "s39" if n < 10 else "s60"
            A(f"buffer_load_dwordx4 v[{WQ+4*n}:{WQ+4*n+3}], v{vWQ}, s[44:47], {so} offen {o.ldq if n < 10 else o.ldq2}")
            A(f"s_add_u32 {so}, {so}, 8192")
        else:
            if n == 0: A("s_mov_b32 s39, 0")
            A(f"buffer_load_dwordx4 v[{UK+4*n}:{UK+4*n+3}], v{vUK}, s[48:51], s39 offen {o.lduk}")
            A("s_add_u32 s39, s39, 8192")
        g.vmi((k, n))
        if pos[0] == len(seq): g.stamp(2)
    for _ in range(o.tw): issue_p()
    g.selectors(SEL, 46)
    A("v_and_b32 v46, 16, v1"); A(f"v_lshl_add_u32 v{vQA}, v6, 5, v46"); A("s_lshl_b32 s3, s31, 8"); A(f"s_add_u32 s3, s3, {L_QACC}"); A(f"v_add_u32 v{vQA}, s3, v{vQA}")
    A(f"v_lshlrev_b32 v{vL16}, 4, v1")
    A("s_mov_b32 s40, s24"); A("s_mov_b32 s41, s25"); A(f"s_mov_b32 s42, {WS_END}")
    A("s_lshl_b32 s62, s26, 1"); A("s_add_u32 s62, s62, s29"); A("s_lshl_b32 s62, s62, 3"); A("s_add_u32 s62, s62, s27"); A("s_lshl_b32 s62, s62, 7")
    A("s_lshl_b32 s3, s28, 17")
    g.srd(52, 10, "s3", 4194304)
    A("s_lshl_b32 s3, s28, 7"); A("s_lshl_b32 s63, s29, 6"); A("s_add_u32 s3, s3, s63"); A("s_lshl_b32 s63, s31, 4"); A("s_add_u32 s3, s3, s63")
    A("s_mul_i32 s63, s3, 1280")
    g.srd(56, 18, "s63", 5242880)
    A(f"v_lshrrev_b32 v46, 4, v1"); A(f"v_mul_u32_u24 v{vWO}, 5120, v46"); A("v_and_b32 v47, 15, v1"); A(f"v_lshl_add_u32 v{vWO}, v47, 4, v{vWO}")
    A("s_lshl_b32 s64, s29, 2"); A("s_add_u32 s64, s64, s31"); A("s_xor_b32 s65, s64, 4"); A("s_lshl_b32 s64, s64, 14"); A("s_lshl_b32 s65, s65, 14")
    A(f"s_mul_i32 s66, s31, {32*PITCH}")
    for n in range(20):
        g.vmwait(("wq", n))
        issue_p()
        hf, m = divmod(n, 10)
        f = FR + 4 * (n & 1)
        g.frag(f, XV + 6 * hf + (m >> 1), m & 1, SEL)
        g.mfma(ACC, f, WQ + 4 * n, n == 0)
    while pos[0] < len(seq):
        g.vmlimit(o.tw - 1); issue_p()
    A(f"v_lshlrev_b32 v46, 5, v6"); A(f"v_add_u32 v46, {L_QACC}, v46")
    g.fold(ACC, FR)
    A("s_mov_b64 exec, 0x00ff00ff")
    A(f"ds_write_b128 v{vQA}, v[{ACC}:{ACC+3}]")
    A("s_mov_b64 exec, -1")
    A("s_cmp_eq_u32 s30, 0"); A("s_cbranch_scc1 L_PU")
    vm_save = list(g.vm)
    QF = 48; QP = 56; PP = 60
    def p_tail(nxt, depth):
        def step():
            g.vmlimit(depth - 1); nxt()
        step()
        A("s_waitcnt lgkmcnt(0)")
        A("s_barrier")
        g.stamp(3)
        for w in range(4):
            A(f"ds_read_b128 v[{68+8*w}:{71+8*w}], v46 offset:{256*w}"); A(f"ds_read_b128 v[{72+8*w}:{75+8*w}], v46 offset:{256*w+16}")
        A("v_lshlrev_b32 v46, 1, v1")
        A("v_and_b32 v47, 2, v1"); A("v_cmp_ne_u32 vcc, 0, v47")
        step()
        A("s_waitcnt lgkmcnt(0)")
        for k in range(8): A(f"v_add_f32 v{68+k}, v{68+k}, v{76+k}")
        for k in range(8): A(f"v_add_f32 v{84+k}, v{84+k}, v{92+k}")
        for k in range(8): A(f"v_add_f32 v{QF+k}, v{68+k}, v{84+k}")
        for k in range(4): A(f"v_cvt_pk_bf16_f32 v{QP+k}, v{QF+2*k}, v{QF+2*k+1}")
        while ("uk", 7) in g.vm: step()
        for k in range(4):
            for n in range(8):
                if k == 0: A(f"v_dot2_f32_bf16 v{PP+n}, v{UK+4*n}, v{QP}, 0")
                else: A(f"v_dot2c_f32_bf16 v{PP+n}, v{UK+4*n+k}, v{QP+k}")
        for n in range(4): A(f"v_add_f32_dpp v{PP+n}, v{PP+n}, v{PP+n} row_half_mirror row_mask:0xf bank_mask:0x5")
        for n in range(4): A(f"v_add_f32_dpp v{PP+n}, v{PP+n+4}, v{PP+n+4} row_half_mirror row_mask:0xf bank_mask:0xa")
        for n in range(4): A(f"v_add_f32_dpp v{PP+n}, v{PP+n}, v{PP+n} quad_perm:[2,3,0,1] row_mask:0xf bank_mask:0xf")
        for k in range(2): A(f"v_cndmask_b32 v{PP+k}, v{PP+k}, v{PP+k+2}, vcc")
        for k in range(2): A(f"v_add_f32_dpp v{PP+k}, v{PP+k}, v{PP+k} quad_perm:[1,0,3,2] row_mask:0xf bank_mask:0xf")
        A(f"v_cvt_pk_bf16_f32 v{PP}, v{PP}, v{PP+1}")
        A("s_mov_b32 exec_lo, 0x55555555"); A("s_mov_b32 exec_hi, 0x55555555")
        A(f"buffer_store_dword v{PP}, v46, s[40:43], s62 offen sc1"); g.vmi("qa")
        A("s_mov_b64 exec, -1")
        g.stamp(4)
    kp = [0]
    def nxt_kv():
        k = kp[0]
        if k >= 32: return
        kp[0] += 1
        so = "s64" if k < 16 else "s65"
        A("s_mov_b32 m0, s66"); A(f"s_add_u32 s66, s66, {PITCH}")
        A(f"buffer_load_dwordx4 v{vL16}, s[52:55], {so} offen {o.ldkv if k < 16 else o.ldkv2} lds"); g.vmi("kv")
        A(f"s_add_u32 {so}, {so}, 1024")
    p_tail(nxt_kv, o.tk)
    vK = 21; vQ = 22; vT0 = 23; vT1 = 24; vB = 26
    GA = 28; QR = 48; SA = 112; PF = 92; ON = 108; LA = 120; KF = 128; OA = 48
    def t_addr():
        A("v_and_b32 v46, 15, v1"); A("v_lshrrev_b32 v47, 4, v1")
        A(f"v_mul_u32_u24 v{vQ}, {PITCH}, v46"); A(f"v_lshl_add_u32 v{vQ}, v47, 4, v{vQ}")
        A(f"s_mul_i32 s3, s31, {32*PITCH}"); A(f"v_add_u32 v{vK}, s3, v{vQ}"); A(f"v_add_u32 v{vQ}, {L_QI}, v{vQ}")
        A("v_lshrrev_b32 v44, 2, v1"); A(f"v_mul_u32_u24 v{vT0}, {PITCH}, v44"); A("v_and_b32 v44, 3, v1"); A(f"v_lshl_add_u32 v{vT0}, v44, 3, v{vT0}")
        A("s_lshl_b32 s3, s31, 8"); A(f"v_add_u32 v{vT0}, s3, v{vT0}"); A(f"v_add_u32 v{vT1}, {64*PITCH}, v{vT0}")
        A(f"v_lshlrev_b32 v{vB}, 15, v46"); A("v_and_b32 v44, 16, v1"); A(f"v_lshl_add_u32 v{vB}, v44, 1, v{vB}")
        A("v_lshrrev_b32 v44, 5, v1"); A(f"v_lshl_add_u32 v{vB}, v44, 4, v{vB}")
        A("s_lshl_b32 s60, s4, 1"); A("s_add_u32 s60, s60, s29"); A("s_lshl_b32 s60, s60, 9"); A("s_add_u32 s60, s60, s28")
        A("s_lshl_b32 s61, s4, 1"); A("s_add_u32 s61, s61, s29"); A("s_lshl_b32 s61, s61, 5"); A("s_add_u32 s61, s61, s28"); A("s_lshl_b32 s61, s61, 2"); A("s_add_u32 s61, s61, s31")
        A("s_lshl_b32 s61, s61, 8"); A(f"s_add_u32 s61, s61, {ST}")
        A("s_lshl_b32 s60, s60, 10"); A("s_lshl_b32 s3, s31, 8"); A("s_add_u32 s60, s60, s3"); A(f"s_add_u32 s60, s60, {OB}")
        A(f"v_add_u32 v27, {L_MX}, v{vL16}"); A("s_lshl_b32 s3, s31, 2"); A("v_add_u32 v25, s3, v27")
        A(f"v_add_u32 v20, {L_P}, v{vL16}"); A("s_lshl_b32 s3, s31, 10"); A("v_add_u32 v19, s3, v20")
        A(f"v_mov_b32 v18, {L_NON}"); A("ds_read_b64 v[16:17], v18")
    done_addr = False
    while kp[0] < 32:
        if kp[0] == 32 - o.early: A("s_barrier")
        g.vmlimit((o.tk if kp[0] < 16 else o.tk2) - 1); nxt_kv()
        if not done_addr: t_addr(); done_addr = True
    if not o.early: A("s_barrier")
    g.stamp(5)
    A("s_waitcnt vmcnt(0)"); g.vm = []
    g.stamp(6)
    for kk in range(16):
        for t in range(2):
            d = KF + 4 * (2 * kk + t)
            A(f"ds_read_b128 v[{d}:{d+3}], v{vK} offset:{16*t*PITCH + 64*kk}")
    A("s_barrier")
    g.stamp(7)
    vfr = [(ct, ks) for ct in range(8) for ks in range(4)]
    lg = []
    def lgw(tag):
        if tag not in lg: return
        k = len(lg) - 1 - lg.index(tag)
        A(f"s_waitcnt lgkmcnt({min(k,15)})"); del lg[:len(lg) - min(k, 15)]
    vi = [0]
    def rdv():
        idx = vi[0]
        if idx >= 32: return
        vi[0] += 1
        ct, ks = vfr[idx]; d = KF + 4 * idx
        base = vT0 if ks < 2 else vT1
        for hf in range(2):
            A(f"ds_read_b64_tr_b16 v[{d+2*hf}:{d+2*hf+1}], v{base} offset:{(32*(ks&1)+16*hf)*PITCH + 32*ct}"); lg.append(("v", idx))
    def rdq(kk):
        A(f"ds_read_b128 v[{QR+4*kk}:{QR+4*kk+3}], v{vQ} offset:{64*kk}"); lg.append(("q", kk))
    for kk in range(8): rdq(kk)
    for kk in range(16):
        lgw(("q", kk))
        for t in range(2): g.mfma(SA + 4 * t, KF + 4 * (2 * kk + t), QR + 4 * kk, kk == 0)
        if kk < 8: rdq(kk + 8)
        elif kk >= 8: rdv(); rdv()
    for r in range(4): A(f"v_mov_b32 v{ON+r}, 0x3f803f80")
    rdv(); rdv()
    A(f"v_max3_f32 v46, v{SA}, v{SA+1}, v{SA+2}"); A(f"v_max3_f32 v47, v{SA+3}, v{SA+4}, v{SA+5}")
    A(f"v_max3_f32 v46, v46, v{SA+6}, v{SA+7}"); A("v_max_f32 v46, v46, v47")
    A("v_mov_b32 v47, v46"); A("v_permlane16_swap_b32 v46, v47"); A("v_max_f32 v46, v46, v47")
    A("v_mov_b32 v47, v46"); A("v_permlane32_swap_b32 v46, v47"); A("v_max_f32 v46, v46, v47")
    A("ds_write_b32 v25, v46")
    A("s_waitcnt lgkmcnt(0)"); lg.clear()
    A("s_barrier")
    A(f"ds_read_b128 v[{GA}:{GA+3}], v27"); lg.append("mx")
    for _ in range(6): rdv()
    lgw("mx")
    A(f"v_max3_f32 v46, v{GA}, v{GA+1}, v{GA+2}"); A(f"v_max_f32 v46, v46, v{GA+3}")
    A(f"s_mov_b32 s3, {SCALE}")
    A(f"v_mul_f32 v44, s3, v46")
    for r in range(8): A(f"v_fma_f32 v{SA+r}, v{SA+r}, s3, -v44")
    for r in range(8): A(f"v_exp_f32 v{SA+r}, v{SA+r}")
    for k in range(4): A(f"v_cvt_pk_bf16_f32 v{GA+k}, v{SA+2*k}, v{SA+2*k+1}")
    A(f"ds_write_b128 v19, v[{GA}:{GA+3}]")
    A("s_waitcnt lgkmcnt(0)"); lg.clear()
    A("s_barrier")
    g.stamp(8)
    for w in range(4): A(f"ds_read_b128 v[{PF+4*w}:{PF+4*w+3}], v20 offset:{1024*w}"); lg.append(("p", w))
    while vi[0] < 32: rdv()
    PK = 28
    def pack(ct):
        a = OA + 4 * ct
        A(f"v_cvt_pk_bf16_f32 v{PK+2*ct}, v{a}, v{a+1}"); A(f"v_cvt_pk_bf16_f32 v{PK+2*ct+1}, v{a+2}, v{a+3}")
    def ship(p):
        b = PK + 4 * p
        A(f"v_permlane16_swap_b32 v{b}, v{b+2}"); A(f"v_permlane16_swap_b32 v{b+1}, v{b+3}")
        A(f"buffer_store_dwordx4 v[{b}:{b+3}], v{vB}, s[40:43], s60 offen offset:{64*p} sc1")
    for ct in range(8):
        for ks in range(4):
            lgw(("p", ks)); lgw(("v", 4 * ct + ks))
            g.mfma(OA + 4 * ct, KF + 4 * (4 * ct + ks), PF + 4 * ks, ks == 0)
            if ks == 3 and ct >= 2: pack(ct - 2)
            if ks == 1 and ct in (4, 6): ship((ct - 4) // 2)
    for k2 in range(4): g.mfma(LA, ON, PF + 4 * k2, k2 == 0)
    ship(2); pack(6); pack(7); ship(3)
    A("v_mov_b32 v46, v16"); A("v_mov_b32 v47, v17"); A(f"v_mov_b32 v45, v{LA}")
    A("s_mov_b64 exec, 0xffff")
    A(f"buffer_store_dwordx4 v[44:47], v{vL16}, s[40:43], s61 offen sc1")
    A("s_mov_b64 exec, -1")
    g.stamp(9)
    A("s_cmp_lg_u32 s31, 0"); A("s_cbranch_scc1 L_fin")
    A("s_cmp_ge_u32 s6, 20"); A("s_cbranch_scc1 L_fin")
    A("s_mul_i32 s3, s5, 10"); A("s_lshr_b32 s52, s6, 1"); A("s_add_u32 s3, s3, s52")
    A(f"v_mul_u32_u24 v25, 5120, v5"); A(f"v_lshl_add_u32 v25, v6, 4, v25")
    A(f"s_mul_i32 s52, s4, {64*5120}"); A("s_lshl_b32 s53, s3, 7"); A("s_add_u32 s52, s52, s53"); A(f"s_add_u32 s52, s52, {OC}")
    for n in range(1, 8): A(f"s_add_u32 s{52+n}, s{51+n}, {8*5120}")
    A("s_mul_i32 s61, s4, 1280"); A("s_lshl_b32 s3, s3, 5"); A("s_add_u32 s61, s61, s3")
    A("s_mov_b32 s44, s20"); A("s_mov_b32 s45, s21"); A("s_movk_i32 s46, 2560"); A("s_mov_b32 s47, 0x20000")
    A("s_mov_b32 s48, s22"); A("s_mov_b32 s49, s23"); A("s_movk_i32 s50, 256"); A("s_mov_b32 s51, 0x20000")
    A("s_lshl_b32 s67, s4, 7"); A("v_mov_b32 v26, 0")
    A("s_mov_b32 s33, 0x40000")
    A("L_R_non:")
    A("buffer_load_dwordx4 v[28:31], v26, s[48:51], s67 offen sc1"); A("buffer_load_dwordx4 v[32:35], v26, s[48:51], s67 offen offset:16 sc1")
    A("s_waitcnt vmcnt(0)")
    A("v_min_u32 v46, v28, v30"); A("v_min3_u32 v46, v46, v32, v34"); A("v_cmp_eq_u32 vcc, 0, v46")
    A("s_cbranch_vccz L_R_non_ok")
    A("s_sleep 8")
    A("s_sub_u32 s33, s33, 1"); A("s_cbranch_scc0 L_R_non")
    A("L_R_non_ok:")
    if o.sleepc0: A(f"s_sleep {o.sleepc0}")
    GC = 52
    A("s_mov_b32 s33, 0x40000")
    A("L_T_gc:")
    for n in range(8): A(f"buffer_load_dwordx4 v[{GC+4*n}:{GC+4*n+3}], v25, s[40:43], s{52+n} offen sc1")
    for n in range(8):
        A(f"s_waitcnt vmcnt({7-n})")
        d = "vcc" if n == 0 else "s[62:63]"
        A(f"v_cmp_ne_u64 {d}, v[{GC+4*n+2}:{GC+4*n+3}], v[{28+2*(n>>1)}:{29+2*(n>>1)}]")
        if n: A("s_or_b64 vcc, vcc, s[62:63]")
    A("s_cbranch_vccz L_T_gc_ok")
    if o.sleepc: A(f"s_sleep {o.sleepc}")
    A("s_sub_u32 s33, s33, 1"); A("s_cbranch_scc0 L_T_gc")
    A("L_T_gc_ok:")
    g.stamp(10)
    for st in (16, 8, 4):
        for k in range(0, st, 4):
            for r in range(2): A(f"v_add_f32 v{GC+k+r}, v{GC+k+r}, v{GC+st+k+r}")
    for r in range(2): A(f"v_add_f32_dpp v{GC+r}, v{GC+r}, v{GC+r} row_ror:8 row_mask:0xf bank_mask:0xf")
    for sw in ("16", "32"):
        for r in range(2): A(f"v_mov_b32 v{GC+4+r}, v{GC+r}")
        for r in range(2): A(f"v_permlane{sw}_swap_b32 v{GC+r}, v{GC+4+r}")
        for r in range(2): A(f"v_add_f32 v{GC+r}, v{GC+r}, v{GC+4+r}")
    A(f"v_cvt_pk_bf16_f32 v{GC}, v{GC}, v{GC+1}")
    A("v_lshlrev_b32 v46, 2, v1")
    A("s_mov_b64 exec, 0xff")
    A(f"buffer_store_dword v{GC}, v46, s[44:47], s61 offen")
    if o.stamps: A("s_waitcnt vmcnt(0)"); g.stamp(11)
    if o.dbgend:
        A("s_cmp_lg_u32 s6, 1"); A("s_cbranch_scc1 L_fin")
        A("s_waitcnt vmcnt(0)"); A("s_memrealtime s[54:55]"); A("s_waitcnt lgkmcnt(0)")
        A("v_mov_b32 v46, s54"); A("v_mov_b32 v44, 0"); A("s_and_b32 s3, s2, 7"); A("s_lshl_b32 s3, s3, 2"); A("s_add_u32 s3, s3, 32")
        A("s_mov_b64 exec, 1")
        A("buffer_store_dword v46, v44, s[48:51], s3 offen")
    A("L_fin:")
    g.fin()
    A("L_PU:")
    g.vm = list(vm_save)
    op = [0]
    def nxt_wo():
        i = op[0]
        if i >= 20: return
        op[0] += 1
        k, cb = divmod(i, 5)
        if cb == 0: A(f"s_movk_i32 s64, {1280*k}")
        d = WO + 4 * i
        A(f"buffer_load_dwordx4 v[{d}:{d+3}], v{vWO}, s[56:59], s64 offen offset:{256*cb} {o.ldo}"); g.vmi(("wo", i))
    p_tail(nxt_wo, o.to1)
    A("v_lshrrev_b32 v47, 4, v1"); A("s_lshl_b32 s3, s31, 6"); A("v_lshl_add_u32 v44, v47, 4, s3"); A(f"v_add_u32 v44, {L_CXACC}, v44")
    A("v_and_b32 v47, 15, v1"); A("v_and_b32 v46, 16, v1"); A("v_lshl_add_u32 v46, v47, 5, v46"); A("s_mul_i32 s3, s31, 2560"); A(f"v_add_u32 v46, s3, v46")
    A("s_mul_i32 s3, s31, 640"); A(f"v_add_u32 v47, s3, v{vL16}"); A("v_lshlrev_b32 v45, 1, v47")
    A("s_lshl_b32 s62, s26, 1"); A("s_add_u32 s62, s62, s29"); A("s_mul_i32 s62, s62, 5120"); A(f"s_add_u32 s62, s62, {OC}")
    A(f"v_mov_b32 v18, {L_NON}"); A("ds_read_b64 v[16:17], v18")
    for _ in range(o.du // 100): A("s_sleep 100")
    if o.du % 100: A(f"s_sleep {o.du % 100}")
    while op[0] < 20:
        g.vmlimit((o.to1 if op[0] < o.nslow else o.to2) - 1); nxt_wo()
    g.stamp(5)
    A("s_waitcnt lgkmcnt(0)")
    A("v_mov_b32 v26, v16"); A("v_mov_b32 v27, v17"); A("v_mov_b32 v30, v16"); A("v_mov_b32 v31, v17")
    A("s_barrier")
    g.stamp(7)
    for w in range(4): A(f"ds_read_b128 v[{80+4*w}:{83+4*w}], v44 offset:{256*w}")
    A("s_waitcnt lgkmcnt(0)")
    for k in range(4): A(f"v_add_f32 v{80+k}, v{80+k}, v{84+k}")
    for k in range(4): A(f"v_add_f32 v{88+k}, v{88+k}, v{92+k}")
    for k in range(4): A(f"v_add_f32 v{QF+k}, v{80+k}, v{88+k}")
    for k in range(2): A(f"v_cvt_pk_bf16_f32 v{QP+k}, v{QF+2*k}, v{QF+2*k+1}")
    OA7 = 60; F7 = 80
    g.frag(F7, QP, 0, SEL)
    for k in range(4):
        if k < 3: g.frag(F7 + 4 * (k + 1), QP + ((k + 1) >> 1), (k + 1) & 1, SEL)
        for cb in range(5):
            g.vmwait(("wo", 5 * k + cb))
            g.mfma(OA7 + 4 * cb, F7 + 4 * k, WO + 4 * (5 * k + cb), k == 0)
    g.stamp(8)
    A("s_mov_b32 exec_hi, 0")
    for cb in range(5): A(f"ds_write_b128 v46, v[{OA7+4*cb}:{OA7+4*cb+3}] offset:{L_OUTP+512*cb}")
    A("s_mov_b32 exec_hi, 0xff")
    A("s_waitcnt lgkmcnt(0)")
    A("s_barrier")
    for w in range(4): A(f"ds_read_b128 v[{F7+4*w}:{F7+4*w+3}], v47 offset:{L_OUTP+2560*w}")
    A("s_waitcnt lgkmcnt(0)")
    for r in range(4): A(f"v_add_f32 v{F7+r}, v{F7+r}, v{F7+4+r}")
    for r in range(4): A(f"v_add_f32 v{F7+8+r}, v{F7+8+r}, v{F7+12+r}")
    for r in range(4): A(f"v_add_f32 v{24+(r&1)+4*(r>>1)}, v{F7+r}, v{F7+8+r}")
    A(f"buffer_store_dwordx4 v[24:27], v45, s[40:43], s62 offen sc1")
    A(f"buffer_store_dwordx4 v[28:31], v45, s[40:43], s62 offen offset:16 sc1")
    g.stamp(9)
    if o.stamps: A("s_waitcnt vmcnt(0)"); g.stamp(10)
    g.fin()
    g.vm = []
    A("L_S:")
    A("s_sub_u32 s31, s31, 4")
    SEN = 16; vA = 25; vB = 26
    A(f"v_lshlrev_b32 v{vL16}, 4, v1")
    for r in range(4): A(f"v_mov_b32 v{SEN+r}, -1")
    A("s_waitcnt lgkmcnt(0)")
    g.stamp(1)
    A("s_mov_b32 s40, s24"); A("s_mov_b32 s41, s25"); A(f"s_mov_b32 s42, {WS_END}"); A("s_mov_b32 s43, 0x20000")
    A("s_mov_b32 s48, s22"); A("s_mov_b32 s49, s23"); A("s_movk_i32 s50, 256"); A("s_mov_b32 s51, 0x20000")
    A("s_lshl_b32 s67, s4, 7")
    A("s_lshl_b32 s62, s26, 1"); A("s_add_u32 s62, s62, s29")
    A("s_and_b32 s3, s2, 7"); A("s_lshl_b32 s3, s3, 5"); A("s_add_u32 s3, s3, s6"); A("s_lshl_b32 s68, s3, 7")
    A("v_mov_b32 v44, 0")
    A("s_cmp_lg_u32 s31, 0"); A("s_cbranch_scc1 L_S_w123")
    A("s_lshl_b32 s52, s5, 3"); A("s_add_u32 s52, s52, s67")
    A("s_lshl_b32 s3, s62, 1"); A("s_add_u32 s3, s3, s30"); A("s_lshl_b32 s3, s3, 9")
    A("s_mov_b32 exec_hi, 0")
    A(f"buffer_store_dwordx4 v[{SEN}:{SEN+3}], v{vL16}, s[40:43], s3 offen sc1")
    A("s_mov_b64 exec, 1")
    A("s_cmp_lg_u32 s6, 0"); A("s_cbranch_scc1 L_S_nolead")
    A("s_memrealtime s[54:55]"); A("s_waitcnt lgkmcnt(0)"); A("s_or_b32 s54, s54, 1")
    A("v_mov_b32 v46, s54"); A("v_mov_b32 v47, s55")
    A("buffer_store_dwordx2 v[46:47], v44, s[48:51], s52 offen sc1")
    A("s_branch L_S_np_ok")
    A("L_S_nolead:")
    A("s_mov_b32 s33, 0x40000")
    A("L_S_np:")
    A(f"s_sleep {o.sleepn}")
    A("buffer_load_dwordx2 v[46:47], v44, s[48:51], s52 offen sc1")
    A("s_waitcnt vmcnt(0)")
    A("v_cmp_ne_u32 vcc, 0, v46"); A("s_cbranch_vccnz L_S_np_ok")
    A("s_sub_u32 s33, s33, 1"); A("s_cbranch_scc0 L_S_np")
    A("L_S_np_ok:")
    A(f"s_add_u32 s3, s68, {FLA}")
    A("s_waitcnt vmcnt(0)")
    A("buffer_store_dwordx2 v[46:47], v44, s[40:43], s3 offen sc1")
    A(f"v_mov_b32 v34, {L_NON}"); A("ds_write_b64 v34, v[46:47]"); A("s_waitcnt lgkmcnt(0)")
    A("s_mov_b64 exec, -1")
    g.stamp(2)
    A("s_branch L_S_join")
    A("L_S_w123:")
    if o.pf:
        A("s_cmp_lg_u32 s31, 2"); A("s_cbranch_scc1 L_S_npf")
        A("s_getpc_b64 s[34:35]")
        A("L_pc:")
        A(f"s_sub_u32 s34, s34, L_pc-{NAME}_kernel"); A("s_subb_u32 s35, s35, 0")
        A(f"s_and_b32 s3, s6, {o.pf-1}"); A("s_lshl_b32 s3, s3, 10"); A(f"v_add_u32 v46, s3, v{vL16}")
        A(f"global_load_dwordx4 v[200:203], v46, s[34:35]")
        A("L_S_npf:")
    if o.hp:
        A("s_cmp_lg_u32 s31, 1"); A("s_cbranch_scc1 L_S_nhp")
        A("s_lshr_b32 s3, s6, 4"); A("s_lshl_b32 s3, s3, 10"); A("s_lshl_b32 s52, s5, 11"); A("s_add_u32 s3, s3, s52"); A("s_add_u32 s3, s3, 384")
        A("s_and_b32 s52, s6, 15"); A("s_lshl_b32 s52, s52, 18"); A("s_add_u32 s3, s3, s52")
        g.srd(44, 14, "s3", 4194304)
        A("v_lshlrev_b32 v46, 13, v5"); A("v_lshl_add_u32 v46, v6, 4, v46")
        A("s_mov_b32 s52, 0")
        for n in range(o.hp):
            A(f"buffer_load_dwordx4 v[{200+4*n}:{203+4*n}], v46, s[44:47], s52 offen {LD}"); A("s_add_u32 s52, s52, 65536")
        A("L_S_nhp:")
    A("L_S_join:")
    g.selectors(8, 46)
    A("s_cmp_eq_u32 s30, 0"); A("s_cbranch_scc1 L_SU")
    A("s_lshl_b32 s60, s4, 1"); A("s_add_u32 s60, s60, s29"); A("s_lshl_b32 s60, s60, 2"); A("s_add_u32 s60, s60, s31"); A("s_lshl_b32 s60, s60, 7"); A("s_add_u32 s60, s60, s28")
    A("s_lshl_b32 s61, s4, 1"); A("s_add_u32 s61, s61, s29"); A("s_lshl_b32 s61, s61, 5"); A("s_add_u32 s61, s61, s28"); A("s_lshl_b32 s61, s61, 2"); A("s_add_u32 s61, s61, s31")
    A("s_lshl_b32 s61, s61, 8"); A(f"s_add_u32 s61, s61, {ST}")
    A("s_lshl_b32 s60, s60, 10"); A(f"s_add_u32 s60, s60, {OB}")
    A("s_barrier")
    g.stamp(3)
    if o.inval:
        for n in range(4):
            A(f"buffer_store_dwordx4 v[{SEN}:{SEN+3}], v{vL16}, s[40:43], s60 offen sc1")
            if n < 3: A("s_add_u32 s60, s60, 32768")
        A("s_mov_b64 exec, 0xffff")
        A(f"buffer_store_dwordx4 v[{SEN}:{SEN+3}], v{vL16}, s[40:43], s61 offen sc1")
        A("s_mov_b64 exec, -1")
    A("s_cmp_lg_u32 s31, 0"); A("s_cbranch_scc1 L_T_noarm")
    g.armcheck("T", FLA, "A")
    A("L_T_noarm:")
    A("s_waitcnt vmcnt(0)")
    g.stamp(4)
    A("s_lshl_b32 s52, s4, 1"); A("s_add_u32 s52, s52, s29"); A("s_lshl_b32 s52, s52, 2"); A("s_add_u32 s52, s52, s31"); A("s_lshl_b32 s52, s52, 13")
    A("s_add_u32 s53, s52, 4096")
    A(f"s_mul_i32 s3, s31, {4*PITCH}"); A(f"v_add_u32 v{vA}, s3, v{vL16}"); A(f"v_add_u32 v{vA}, {L_QI}, v{vA}")
    A("v_mov_b32 v20, 0x05040100"); A("v_mov_b32 v21, 0x07060302"); A("v_mov_b32 v22, 0x3f803f80")
    A("s_barrier")
    GA = 48
    A("s_mov_b32 s33, 0x40000")
    A("L_T_ga:")
    for n in range(8): A(f"buffer_load_dwordx4 v[{GA+4*n}:{GA+4*n+3}], v{vL16}, s[40:43], s{52+(n>>2)} offen offset:{1024*(n&3)} sc1")
    A("s_waitcnt vmcnt(0)")
    g.validate(GA, 32, "L_T_ga_ok")
    if o.sleepa: A(f"s_sleep {o.sleepa}")
    A("s_sub_u32 s33, s33, 1"); A("s_cbranch_scc0 L_T_ga")
    A("L_T_ga_ok:")
    g.stamp(5)
    for hh in range(4):
        a = GA + 8 * hh; b = a + 4; t = 80 + 8 * (hh & 1)
        for k in range(4):
            A(f"v_perm_b32 v{t+2*k}, v{b+k}, v{a+k}, v20"); A(f"v_perm_b32 v{t+2*k+1}, v{b+k}, v{a+k}, v21")
        for k in range(8): A(f"v_dot2_f32_bf16 v{t+k}, v{t+k}, v22, 0")
        for k in range(4): A(f"v_cvt_pk_bf16_f32 v{a+k}, v{t+2*k}, v{t+2*k+1}")
        A(f"ds_write_b128 v{vA}, v[{a}:{a+3}] offset:{hh*PITCH}")
    A("s_waitcnt lgkmcnt(0)")
    g.stamp(6)
    A("s_barrier")
    if o.hlp:
        A("s_lshl_b32 s3, s28, 7"); A("s_lshl_b32 s63, s29, 6"); A("s_add_u32 s3, s3, s63"); A("s_lshl_b32 s63, s31, 4"); A("s_add_u32 s3, s3, s63")
        A("s_mul_i32 s63, s3, 1280")
        g.srd(56, 18, "s63", 5242880)
        A(f"v_lshrrev_b32 v46, 4, v1"); A(f"v_mul_u32_u24 v43, 5120, v46"); A("v_and_b32 v47, 15, v1"); A(f"v_lshl_add_u32 v43, v47, 4, v43")
        for i in range(19, 19 - o.hlp, -1):
            k, cb = divmod(i, 5)
            A(f"s_movk_i32 s64, {1280*k}")
            if 19 - i in (o.hd, 2 * o.hd): A("s_barrier")
            if 19 - i >= o.hd: A(f"s_waitcnt vmcnt({o.hd-1})")
            A(f"buffer_load_dwordx4 v[{100+4*(i&7)}:{103+4*(i&7)}], v43, s[56:59], s64 offen offset:{256*cb} {LD}")
    g.fin()
    A("L_SU:")
    UV = 128; SEL = 8
    A("s_lshl_b32 s3, s31, 20"); A("s_add_u32 s61, s36, s3")
    g.srd(44, 16, "s61", 4194304)
    A("v_lshlrev_b32 v42, 17, v5"); A("v_lshl_add_u32 v42, v6, 4, v42")
    A(f"v_lshlrev_b32 v{vA}, 12, v5"); A(f"v_lshl_add_u32 v{vA}, v6, 4, v{vA}")
    A(f"v_lshlrev_b32 v{vB}, 12, v5"); A("v_lshrrev_b32 v36, 1, v5"); A("v_lshlrev_b32 v36, 3, v36")
    A("s_lshr_b32 s59, s26, 4"); A("s_lshl_b32 s59, s59, 7"); A("s_add_u32 s59, s59, s31"); A("s_lshl_b32 s59, s59, 4"); A("s_and_b32 s3, s28, 15"); A("s_add_u32 s59, s59, s3")
    A("s_lshl_b32 s59, s59, 4"); A(f"s_add_u32 s59, s59, {ST}")
    A("s_lshl_b32 s58, s26, 15"); A("s_lshl_b32 s3, s31, 8"); A("s_add_u32 s58, s58, s3"); A(f"s_add_u32 s58, s58, {OB}")
    A("v_and_b32 v46, 16, v1"); A("v_lshl_add_u32 v20, v6, 5, v46"); A("s_lshl_b32 s3, s31, 8"); A(f"s_add_u32 s54, s3, {L_CXACC}"); A("v_add_u32 v21, s54, v20")
    A(f"s_add_u32 s3, s3, {L_CC}"); A("v_lshrrev_b32 v20, 1, v20"); A("v_add_u32 v20, s3, v20"); A("v_lshl_add_u32 v22, v5, 5, s3")
    A("s_barrier")
    g.stamp(3)
    A("s_cmp_lg_u32 s31, 0"); A("s_cbranch_scc1 L_U_noinv")
    if o.prew:
        A("s_mul_i32 s62, s62, 5120"); A(f"s_add_u32 s62, s62, {OC}")
        for n in range(4): A(f"buffer_store_dwordx4 v[{SEN}:{SEN+3}], v{vL16}, s[40:43], s62 offen offset:{1024*n} sc1")
        A("s_add_u32 s62, s62, 4096")
        A(f"buffer_store_dwordx4 v[{SEN}:{SEN+3}], v{vL16}, s[40:43], s62 offen sc1")
    A("L_U_noinv:")
    for _ in range(o.dv // 100): A("s_sleep 100")
    if o.dv % 100: A(f"s_sleep {o.dv % 100}")
    A("s_mov_b32 s39, 0")
    for n in range(16):
        g.vmlimit((o.tv1 if n < o.nslow else o.tv2) - 1)
        A(f"buffer_load_dwordx4 v[{UV+4*n}:{UV+4*n+3}], v42, s[44:47], s39 offen {o.lduv}"); g.vmi(("uv", n))
        A("s_add_u32 s39, s39, 8192")
    g.stamp(4)
    GB = 48; GS = 80
    g.vm = []
    A("s_mov_b32 s33, 0x40000")
    A("L_U_gs:")
    A("buffer_load_dwordx2 v[40:41], v36, s[48:51], s67 offen sc1")
    for k in range(4): A(f"buffer_load_dwordx4 v[{GS+4*k}:{GS+4*k+3}], v{vB}, s[40:43], s59 offen offset:{1024*k} sc1")
    A("s_waitcnt vmcnt(0)")
    A("v_cmp_eq_u32 vcc, 0, v40")
    for k in range(4):
        A(f"v_cmp_ne_u64 s[54:55], v[{GS+4*k+2}:{GS+4*k+3}], v[40:41]"); A("s_or_b64 vcc, vcc, s[54:55]")
    A("s_cbranch_vccz L_U_gs_ok")
    if o.sleepb: A(f"s_sleep {o.sleepb}")
    A("s_sub_u32 s33, s33, 1"); A("s_cbranch_scc0 L_U_gs")
    A("L_U_gs_ok:")
    g.stamp(9)
    def gatherB():
        for cb in range(2):
            for n in range(4): A(f"buffer_load_dwordx4 v[{GB+16*cb+4*n}:{GB+16*cb+4*n+3}], v{vA}, s[40:43], s58 offen offset:{1024*n+128*cb} sc1")
    gatherB()
    A(f"v_max3_f32 v44, v{GS}, v{GS+4}, v{GS+8}"); A(f"v_max_f32 v44, v44, v{GS+12}")
    A("v_max_f32_dpp v44, v44, v44 row_ror:8 row_mask:0xf bank_mask:0xf")
    A("v_mov_b32 v45, v44"); A("v_permlane16_swap_b32 v44, v45"); A("v_max_f32 v44, v44, v45")
    A("v_mov_b32 v45, v44"); A("v_permlane32_swap_b32 v44, v45"); A("v_max_f32 v44, v44, v45")
    for n in range(4): A(f"v_sub_f32 v{GS+4*n}, v{GS+4*n}, v44")
    for n in range(4): A(f"v_exp_f32 v{GS+4*n}, v{GS+4*n}")
    A(f"v_cvt_pk_bf16_f32 v28, v{GS}, v{GS+4}"); A(f"v_cvt_pk_bf16_f32 v29, v{GS+8}, v{GS+12}")
    for n in range(4): g.frag(96 + 4 * n, 28 + (n >> 1), n & 1, SEL)
    A(f"v_mul_f32 v44, v{GS}, v{GS+1}")
    for n in range(1, 4): A(f"v_fmac_f32 v44, v{GS+4*n}, v{GS+4*n+1}")
    A("v_add_f32_dpp v44, v44, v44 row_ror:8 row_mask:0xf bank_mask:0xf")
    A("v_mov_b32 v45, v44"); A("v_permlane16_swap_b32 v44, v45"); A("v_add_f32 v44, v44, v45")
    A("v_mov_b32 v45, v44"); A("v_permlane32_swap_b32 v44, v45"); A("v_add_f32 v44, v44, v45")
    A("v_rcp_f32 v44, v44")
    A("s_mov_b32 s33, 0x40000")
    A("L_U_gb:")
    A("s_waitcnt vmcnt(0)")
    g.validate(GB, 32, "L_U_gb_ok")
    gatherB()
    A("s_sub_u32 s33, s33, 1"); A("s_cbranch_scc0 L_U_gb")
    A("L_U_gb_ok:")
    g.stamp(6)
    for n in range(4):
        for cb in range(2): g.mfma(32 + 4 * cb, 96 + 4 * n, GB + 16 * cb + 4 * n, n == 0)
    g.fold(32, 88, 8)
    for k in range(4): A(f"v_cvt_pk_bf16_f32 v{32+k}, v{32+2*k}, v{33+2*k}")
    A("s_mov_b64 exec, 0x00ff00ff")
    A("ds_write_b64 v20, v[32:33]"); A("ds_write_b64 v20, v[34:35] offset:128")
    A("s_mov_b64 exec, -1")
    for k in range(2): A(f"ds_read_b128 v[{64+4*k}:{67+4*k}], v22 offset:{16*k}")
    A("s_waitcnt lgkmcnt(0)")
    g.stamp(7)
    g.frag(72, 64, 0, SEL)
    for n in range(16):
        if n < 15: g.frag(72 + 4 * ((n + 1) & 1), 64 + ((n + 1) >> 1), (n + 1) & 1, SEL)
        g.mfma(32, 72 + 4 * (n & 1), UV + 4 * n, n == 0)
    g.fold(32, 88)
    for r in range(4): A(f"v_mul_f32 v{32+r}, v{32+r}, v44")
    A("s_mov_b64 exec, 0x00ff00ff")
    A("ds_write_b128 v21, v[32:35]")
    A("s_mov_b64 exec, -1")
    A("s_waitcnt lgkmcnt(0)")
    g.stamp(8)
    A("s_barrier")
    if o.stamps:
        A("L_stamps:")
        A("s_mov_b64 exec, 1")
        A("s_waitcnt lgkmcnt(0)")
        A("v_lshrrev_b32 v2, 6, v0"); A("s_lshl_b32 s3, s2, 3"); A("v_add_u32 v2, s3, v2"); A(f"v_mul_u32_u24 v2, {NST*8}, v2")
        A("s_add_u32 s40, s24, 0x8000000"); A("s_addc_u32 s41, s25, 0"); A("s_mov_b32 s42, 0x1000000"); A("s_mov_b32 s43, 0x20000")
        for i in range(NST):
            A(f"v_mov_b32 v4, s{72+2*i}"); A(f"v_mov_b32 v5, s{73+2*i}")
            A(f"buffer_store_dwordx2 v[4:5], v2, s[40:43], 0 offen offset:{8*i}")
            A("s_nop 1")
    A("L_end:")
    A("s_endpgm")
    lines, nn = hz.fix([l for l in g.L if l is not None])
    body = "\n".join(("" if l.endswith(":") else "    ") + l for l in lines)
    txt = (HDR + f"; @launch grid=(256,1,1) block=(512,1,1) lds={L_END}\n"
        ".amdgcn_target \"amdgcn-amd-amdhsa--gfx950\"\n.text\n"
        f".globl {NAME}_kernel\n.p2align 8\n.type {NAME}_kernel,@function\n{NAME}_kernel:\n" + body + "\n"
        + (f".org {NAME}_kernel+{o.pf*1024}, 0\n" if o.pf else "") +
        ".section .rodata,\"a\"\n.p2align 6\n"
        f".amdhsa_kernel {NAME}_kernel\n  .amdhsa_next_free_vgpr 256\n  .amdhsa_next_free_sgpr 96\n"
        "  .amdhsa_accum_offset 256\n  .amdhsa_group_segment_fixed_size 0\n  .amdhsa_kernarg_size 120\n"
        "  .amdhsa_user_sgpr_count 2\n  .amdhsa_user_sgpr_kernarg_segment_ptr 1\n  .amdhsa_system_sgpr_workgroup_id_x 1\n"
        ".end_amdhsa_kernel\n")
    return txt, nn

def parse(argv):
    ap = argparse.ArgumentParser()
    ap.add_argument("-o", default="k2.s")
    for k, d in dict(stamps=0, tw=7, tk=7, tk2=8, to1=3, to2=4, tv1=3, tv2=4, nslow=6, pf=16, hp=4, dinv=0,
                     sleepa0=20, sleepa=2, sleepb=4, cheapb=1, sleepc0=20, sleepc=2, sleepn=24, hlp=0, hd=4, prew=1, dbgend=0, du=0, dv=0, early=0, arm=1, inval=1, sleepf=16).items():
        ap.add_argument("--" + k, type=int, default=d)
    ap.add_argument("--ld", default="")
    for k in ("ldq", "ldq2", "lduk", "ldkv", "ldkv2", "ldo", "lduv"): ap.add_argument("--" + k, default="")
    return ap.parse_args(argv)
if __name__ == "__main__":
    o = parse(sys.argv[1:])
    txt, nn = gen(o)
    open(o.o, "w").write(txt)
    print("written", o.o, "nops inserted", nn)
```

```python
import sys, argparse
sys.path.insert(0, "gen")
import hz
NAME = "concat_heads__compressed_kv_cla__compressed_kv_cla__decode"
HDR = open("cdna_kernels/%s.s.ref" % NAME).read().split("; Override launch")[0]

QA = 0x0
QQ = 0x20000
ST = 0xA0000
OC = 0xC0000
OB = 0x200000
WS_END = 0x400000
PITCH = 1056
L_QI = 128 * PITCH
L_MISC = L_QI + 16 * PITCH
L_QP = L_MISC
L_MX = L_MISC
L_LS = L_MISC + 1024
L_P = L_MISC + 4096
L_NON = L_MISC + 8192
L_END = L_NON + 16
L_OUTP = 0
L_QS = 16384
L_CX = 20480
L_CC = 21504
SCALE = 0x3e0293ee
NST = 12

class G:
    def __init__(s, opt):
        s.L = []; s.o = opt; s.vm = []
    def A(s, t): s.L.append(t)
    def vmi(s, tag): s.vm.append(tag)
    def vmwait(s, tag):
        if tag not in s.vm: return
        k = len(s.vm) - 1 - max(i for i, t in enumerate(s.vm) if t == tag)
        s.A(f"s_waitcnt vmcnt({k})")
        s.vm = s.vm[len(s.vm) - k:]
    def vmlimit(s, k):
        if len(s.vm) > k:
            s.A(f"s_waitcnt vmcnt({k})"); s.vm = s.vm[len(s.vm) - k:]
    def stamp(s, i):
        if s.o.stamps == 1: s.A(f"s_memrealtime s[{72+2*i}:{73+2*i}]")
    def fine(s, i):
        if s.o.stamps == 2: s.A(f"s_memtime s[{72+2*i}:{73+2*i}]")
    def sleep(s, n):
        while n > 0:
            s.A(f"s_sleep {min(n, 100)}"); n -= 100
    def srd(s, d, base, off, size):
        s.A(f"s_add_u32 s{d}, s{base}, {off}"); s.A(f"s_addc_u32 s{d+1}, s{base+1}, 0")
        s.A(f"s_sub_u32 s{d+2}, {size}, {off}"); s.A(f"s_mov_b32 s{d+3}, 0x20000")
    def srd0(s, d, base, size):
        s.A(f"s_mov_b32 s{d}, s{base}"); s.A(f"s_mov_b32 s{d+1}, s{base+1}"); s.A(f"s_mov_b32 s{d+2}, {size}"); s.A(f"s_mov_b32 s{d+3}, 0x20000")
    def selectors(s, sel, tmp, sel2=None):
        A = s.A
        A(f"v_and_b32 v{tmp}, 1, v1")
        A(f"v_cmp_eq_u32 vcc, 1, v{tmp}")
        A(f"v_mov_b32 v{tmp+1}, 0x0c0c0100"); A(f"v_mov_b32 v{tmp+2}, 0x01000c0c")
        A(f"v_cndmask_b32 v{tmp+1}, v{tmp+1}, v{tmp+2}, vcc")
        A(f"v_mov_b32 v{tmp+2}, 0x0c0c0302"); A(f"v_mov_b32 v{tmp+3}, 0x03020c0c")
        A(f"v_cndmask_b32 v{tmp+2}, v{tmp+2}, v{tmp+3}, vcc")
        A(f"v_mov_b32 v{tmp+3}, 0x0c0c0c0c")
        A(f"v_bfe_u32 v{tmp}, v1, 1, 2")
        for r in range(4):
            A(f"v_cmp_eq_u32 vcc, {r}, v{tmp}")
            A(f"v_cndmask_b32 v{sel+r}, v{tmp+3}, v{tmp+1}, vcc")
            A(f"v_cndmask_b32 v{sel+4+r}, v{tmp+3}, v{tmp+2}, vcc")
        if sel2 is not None:
            A("s_mov_b32 vcc_lo, 0xff0000ff"); A("s_mov_b32 vcc_hi, 0xff0000ff")
            for r in range(8): A(f"v_cndmask_b32 v{sel2+r}, v{tmp+3}, v{sel+r}, vcc")
    def frag(s, dst, src, par, sel):
        for r in range(4): s.A(f"v_perm_b32 v{dst+r}, v{src}, v{src}, v{sel+4*par+r}")
    def fold(s, d, t, n=4):
        for r in range(n): s.A(f"v_mov_b32 v{t+r}, v{d+r}")
        for r in range(n): s.A(f"v_permlane32_swap_b32 v{d+r}, v{t+r}")
        for r in range(n): s.A(f"v_add_f32_dpp v{d+r}, v{t+r}, v{d+r} row_ror:8 row_mask:0xf bank_mask:0xf")
    def xred(s, op, r, t):
        for sw in ("16", "32"):
            s.A(f"v_mov_b32 v{t}, v{r}"); s.A(f"v_permlane{sw}_swap_b32 v{r}, v{t}"); s.A(f"{op} v{r}, v{r}, v{t}")
    def mfma(s, d, a, b, first):
        s.A(f"v_mfma_f32_16x16x32_bf16 v[{d}:{d+3}], v[{a}:{a+3}], v[{b}:{b+3}], " + ("0" if first else f"v[{d}:{d+3}]"))
    def validate(s, first, n, lab_ok):
        A = s.A
        A(f"v_max3_u32 v46, v{first}, v{first+1}, v{first+2}")
        A(f"v_max3_u32 v47, v{first+3}, v{first+4}, v{first+5}")
        k = 6; which = 46
        while k + 1 < n:
            A(f"v_max3_u32 v{which}, v{which}, v{first+k}, v{first+k+1}"); k += 2; which = 93 - which
        A("v_max_u32 v46, v46, v47")
        A("v_cmp_eq_u32 vcc, -1, v46")
        A(f"s_cbranch_vccz {lab_ok}")
    def retry(s, lab, sleep=0):
        if sleep: s.A(f"s_sleep {sleep}")
        s.A("s_sub_u32 s33, s33, 1"); s.A(f"s_cbranch_scc0 {lab}")
    def nonce(s, tag, goff, first=0):
        A = s.A
        A(f"s_add_u32 s34, s22, {goff}"); A("s_addc_u32 s35, s23, 0")
        for r in range(first, 4):
            A(f"s_load_dwordx2 s[54:55], s[34:35], {64*r}"); A("s_waitcnt lgkmcnt(0)")
            A("s_cmp_lg_u32 s54, 0"); A(f"s_cbranch_scc1 L_{tag}_ok")
            A(f"s_sleep {s.o.sleepn}")
        A("s_mov_b32 s33, 0x40000"); A("v_mov_b32 v46, 0")
        A(f"L_{tag}:")
        A(f"buffer_load_dwordx2 v[48:49], v46, s[48:51], {goff} offen sc1")
        A("s_waitcnt vmcnt(0)")
        A("v_readfirstlane_b32 s54, v48"); A("v_readfirstlane_b32 s55, v49")
        A("s_cmp_lg_u32 s54, 0"); A(f"s_cbranch_scc1 L_{tag}_ok")
        s.retry(f"L_{tag}", 16)
        A(f"L_{tag}_ok:")
    def fin(s):
        if s.o.stamps: s.A("s_branch L_stamps")
        else: s.A("s_endpgm")

def gen(o):
    g = G(o); A = g.A
    if o.stamps:
        for i in range(NST): A(f"s_mov_b64 s[{72+2*i}:{73+2*i}], 0")
    g.stamp(0)
    A("s_cmp_ge_u32 s2, 256"); A("s_cbranch_scc1 L_end")
    A("s_bfe_u32 s4, s2, 0x10002")
    A("s_mul_i32 s3, s4, 48")
    A("s_add_u32 s34, s0, s3"); A("s_addc_u32 s35, s1, 0")
    A("s_load_dwordx4 s[8:11], s[34:35], 0")
    A("s_load_dwordx4 s[12:15], s[34:35], 16")
    A("s_load_dwordx4 s[16:19], s[34:35], 32")
    A("s_load_dwordx4 s[20:23], s[0:1], 96")
    A("s_load_dwordx2 s[24:25], s[0:1], 112")
    A("v_lshrrev_b32 v4, 6, v0")
    A("v_and_b32 v1, 63, v0")
    A("v_readfirstlane_b32 s31, v4")
    A("s_and_b32 s5, s2, 3"); A("s_lshr_b32 s6, s2, 3"); A("s_and_b32 s7, s6, 7")
    A("s_lshl_b32 s28, s5, 3"); A("s_lshr_b32 s3, s6, 2"); A("s_add_u32 s28, s28, s3")
    A("s_and_b32 s27, s28, 30")
    A("s_bfe_u32 s29, s6, 0x10001"); A("s_and_b32 s30, s6, 1")
    A("s_lshl_b32 s26, s4, 5"); A("s_add_u32 s26, s26, s28")
    vL16 = 7
    A(f"v_lshlrev_b32 v{vL16}, 4, v1")
    A("s_cmp_ge_u32 s31, 4"); A("s_cbranch_scc1 L_S")
    SEL = 8; SEL2 = 16; XV = 24; FR = 32; ACC = 40; WQ = 100; UK = 140
    vWQ, vX, vUK, vWO = 2, 3, 5, 6
    A("v_lshrrev_b32 v4, 5, v1"); A("v_and_b32 v44, 31, v1")
    A("s_lshl_b32 s3, s7, 2"); A("s_add_u32 s3, s3, s31"); A("s_mul_i32 s37, s3, 40")
    A(f"v_mul_u32_u24 v{vX}, 20, v4"); A(f"v_lshlrev_b32 v{vWQ}, 12, v{vX}"); A(f"v_lshl_add_u32 v{vWQ}, v44, 4, v{vWQ}")
    A("s_lshl_b32 s36, s37, 12"); A("s_lshl_b32 s38, s27, 8"); A("s_add_u32 s36, s36, s38")
    A("s_mov_b32 s39, 0")
    A("s_waitcnt lgkmcnt(0)")
    g.stamp(1)
    g.srd0(40, 8, 1280)
    g.srd(44, 12, "s36", 5242880)
    A(f"buffer_load_dwordx4 v[{XV}:{XV+3}], v{vX}, s[40:43], s37 offen"); g.vmi("x")
    A(f"buffer_load_dword v{XV+4}, v{vX}, s[40:43], s37 offen offset:16"); g.vmi("x")
    def ld_wq(n):
        A(f"buffer_load_dwordx4 v[{WQ+4*n}:{WQ+4*n+3}], v{vWQ}, s[44:47], s39 offen {o.ldq}"); g.vmi(("wq", n))
        if n < 9: A("s_add_u32 s39, s39, 8192")
    for n in range(o.tw): ld_wq(n)
    g.selectors(SEL, 46, SEL2)
    A("s_mov_b32 s40, s24"); A("s_mov_b32 s41, s25"); A(f"s_mov_b32 s42, {WS_END}")
    A("v_lshlrev_b32 v30, 9, v4"); A("v_and_b32 v46, 15, v1"); A("v_lshl_add_u32 v30, v46, 5, v30"); A("v_and_b32 v47, 16, v1"); A("v_add_u32 v30, v30, v47")
    A("s_lshl_b32 s3, s31, 10"); A(f"s_add_u32 s3, s3, {L_QP}"); A("v_add_u32 v30, s3, v30")
    A("s_lshl_b32 s3, s31, 8"); A(f"s_add_u32 s3, s3, {L_QP}"); A("v_lshl_add_u32 v31, v1, 3, s3")
    A("s_lshr_b32 s62, s26, 1"); A("s_lshl_b32 s62, s62, 3"); A("s_add_u32 s62, s62, s7"); A("s_lshl_b32 s62, s62, 2"); A("s_add_u32 s62, s62, s31")
    A("s_lshl_b32 s62, s62, 9"); A(f"s_add_u32 s62, s62, {QQ}")
    A(f"v_mov_b32 v29, {L_NON}")
    A("s_lshl_b32 s3, s28, 1"); A("s_add_u32 s3, s3, s29"); A("s_lshl_b32 s3, s3, 2"); A("s_add_u32 s3, s3, s31"); A("s_mul_i32 s63, s3, 20480")
    g.srd(56, 18, "s63", 5242880)
    A(f"v_lshrrev_b32 v47, 4, v1"); A(f"v_mul_u32_u24 v{vWO}, 5120, v47"); A(f"v_lshl_add_u32 v{vWO}, v46, 4, v{vWO}")
    A("s_cmp_eq_u32 s30, 0"); A("s_cbranch_scc1 L_PU")
    vm_save = list(g.vm)
    def q_part(nxt, depth):
        todo = list(range(o.tw, 10))
        def step():
            if todo: ld_wq(todo.pop(0))
            else: nxt()
        g.vmwait("x")
        g.frag(FR, XV, 0, SEL2)
        for n in range(10):
            g.vmwait(("wq", n))
            while len(g.vm) < depth: step()
            if n < 9: g.frag(FR + 4 * ((n + 1) & 1), XV + ((n + 1) >> 1), (n + 1) & 1, SEL2)
            g.mfma(ACC, FR + 4 * (n & 1), WQ + 4 * n, n == 0)
        A(f"ds_write_b128 v30, v[{ACC}:{ACC+3}]")
        A("s_waitcnt lgkmcnt(0)")
        g.stamp(2)
        A("s_barrier")
        g.stamp(3)
        for w in range(4): A(f"ds_read_b64 v[{32+2*w}:{33+2*w}], v31 offset:{1024*w}")
        A("ds_read_b64 v[42:43], v29")
        g.vmlimit(depth - 1); nxt()
        A("s_waitcnt lgkmcnt(0)")
        for r in range(2): A(f"v_add_f32 v{32+r}, v{32+r}, v{34+r}")
        for r in range(2): A(f"v_add_f32 v{36+r}, v{36+r}, v{38+r}")
        for r in range(2): A(f"v_add_f32 v{40+r}, v{32+r}, v{36+r}")
        A("s_mov_b32 exec_hi, 0")
        A(f"buffer_store_dwordx4 v[40:43], v{vL16}, s[40:43], s62 offen sc1"); g.vmi("qq")
        A("s_mov_b32 exec_hi, -1")
    A("s_lshl_b32 s3, s28, 17")
    g.srd(52, 10, "s3", 4194304)
    A("s_lshl_b32 s64, s29, 2"); A("s_add_u32 s64, s64, s31"); A("s_xor_b32 s65, s64, 4"); A("s_lshl_b32 s64, s64, 14"); A("s_lshl_b32 s65, s65, 14")
    A(f"s_mul_i32 s66, s31, {32*PITCH}")
    kp = [0]
    hu = list(range(15, 15 - o.hu, -1))
    if o.hu:
        A("s_lshr_b32 s3, s7, 1"); A("s_lshl_b32 s3, s3, 2"); A("s_add_u32 s3, s3, s31"); A("s_lshl_b32 s3, s3, 18"); A("s_add_u32 s3, s3, s38")
        g.srd(48, 14, "s3", 4194304)
        A(f"v_lshlrev_b32 v{vUK}, 17, v4"); A(f"v_lshl_add_u32 v{vUK}, v44, 4, v{vUK}")
    def nxt_kv():
        if hu:
            A(f"s_mov_b32 s67, {8192*hu.pop(0)}")
            A(f"buffer_load_dwordx4 v[140:143], v{vUK}, s[48:51], s67 offen"); g.vmi("hu")
            return
        k = kp[0]
        if k >= 32: return
        kp[0] += 1
        so = "s64" if k < 16 else "s65"
        A("s_mov_b32 m0, s66"); A(f"s_add_u32 s66, s66, {PITCH}")
        A(f"buffer_load_dwordx4 v{vL16}, s[52:55], {so} offen {o.ldkv if k < 16 else o.ldkv2} lds"); g.vmi("kv")
        A(f"s_add_u32 {so}, {so}, 1024")
    q_part(nxt_kv, o.tk)
    vK = 21; vQ = 22; vT0 = 23; vT1 = 24; vB = 26
    GA = 28; QR = 48; SA = 112; PF = 92; KF = 128; OA = 48; PK = 28
    A("v_mov_b32 v16, v42"); A("v_mov_b32 v17, v43")
    A("v_and_b32 v46, 15, v1"); A("v_lshrrev_b32 v47, 4, v1")
    A(f"v_mul_u32_u24 v{vQ}, {PITCH}, v46"); A(f"v_lshl_add_u32 v{vQ}, v47, 4, v{vQ}")
    A(f"s_mul_i32 s3, s31, {32*PITCH}"); A(f"v_add_u32 v{vK}, s3, v{vQ}"); A(f"v_add_u32 v{vQ}, {L_QI}, v{vQ}")
    A("v_lshrrev_b32 v44, 2, v1"); A(f"v_mul_u32_u24 v{vT0}, {PITCH}, v44"); A("v_and_b32 v44, 3, v1"); A(f"v_lshl_add_u32 v{vT0}, v44, 3, v{vT0}")
    A("s_lshl_b32 s3, s31, 8"); A(f"v_add_u32 v{vT0}, s3, v{vT0}"); A(f"v_add_u32 v{vT1}, {64*PITCH}, v{vT0}")
    A(f"v_lshlrev_b32 v{vB}, 15, v46"); A("v_and_b32 v44, 16, v1"); A(f"v_lshl_add_u32 v{vB}, v44, 1, v{vB}")
    A("v_lshrrev_b32 v44, 5, v1"); A(f"v_lshl_add_u32 v{vB}, v44, 4, v{vB}")
    def st_ob_addr():
        A("s_lshl_b32 s60, s4, 1"); A("s_add_u32 s60, s60, s29")
        A("s_lshl_b32 s61, s60, 5"); A("s_add_u32 s61, s61, s28"); A("s_lshl_b32 s61, s61, 2"); A("s_add_u32 s61, s61, s31"); A("s_lshl_b32 s61, s61, 8"); A(f"s_add_u32 s61, s61, {ST}")
        A("s_lshl_b32 s60, s60, 9"); A("s_add_u32 s60, s60, s28"); A("s_lshl_b32 s60, s60, 2"); A("s_add_u32 s60, s60, s31"); A("s_lshl_b32 s60, s60, 8"); A(f"s_add_u32 s60, s60, {OB}")
    st_ob_addr()
    A(f"v_add_u32 v27, {L_MX}, v{vL16}"); A("s_lshl_b32 s3, s31, 2"); A("v_add_u32 v25, s3, v27")
    A(f"v_add_u32 v20, {L_P}, v{vL16}"); A("s_lshl_b32 s3, s31, 10"); A("v_add_u32 v19, s3, v20")
    while kp[0] < 32:
        g.vmlimit((o.tk if kp[0] < 16 else o.tk2) - 1); nxt_kv()
    A("s_barrier")
    g.stamp(5)
    A("s_waitcnt vmcnt(0)"); g.vm = []
    g.stamp(6)
    for kk in range(16):
        for t in range(2):
            d = KF + 4 * (2 * kk + t)
            A(f"ds_read_b128 v[{d}:{d+3}], v{vK} offset:{16*t*PITCH + 64*kk}")
    hl = [("o", 19 - i // 2) if i % 2 == 0 else ("v", 15 - i // 2) for i in range(o.hlp)]
    def helpn(n):
        for _ in range(n):
            if not hl: return
            k, i = hl.pop(0)
            if k == "o":
                A(f"s_movk_i32 s64, {1280*(i//5)}")
                A(f"buffer_load_dwordx4 v[124:127], v{vWO}, s[56:59], s64 offen offset:{256*(i%5)}")
            else:
                A(f"s_mov_b32 s64, {8192*i}")
                A(f"buffer_load_dwordx4 v[124:127], v9, s[44:47], s64 offen")
    if o.hlp:
        A("s_lshl_b32 s3, s31, 20"); A("s_lshl_b32 s36, s28, 8"); A("s_add_u32 s3, s3, s36"); A("s_lshl_b32 s36, s29, 7"); A("s_add_u32 s3, s3, s36")
        g.srd(44, 16, "s3", 4194304)
        A("v_lshrrev_b32 v9, 3, v1"); A("v_lshlrev_b32 v9, 17, v9"); A("v_and_b32 v8, 7, v1"); A("v_lshl_add_u32 v9, v8, 4, v9")
        helpn(o.hd)
    A("s_barrier")
    g.stamp(7); g.fine(0)
    vfr = [(ct, ks) for ct in range(8) for ks in range(4)]
    lg = []
    def lgw(tag):
        if tag not in lg: return
        k = len(lg) - 1 - max(i for i, t in enumerate(lg) if t == tag)
        A(f"s_waitcnt lgkmcnt({min(k,15)})"); del lg[:len(lg) - min(k, 15)]
    vi = [0]
    def rdv():
        idx = vi[0]
        if idx >= 32: return
        vi[0] += 1
        ct, ks = vfr[idx]; d = KF + 4 * idx
        base = vT0 if ks < 2 else vT1
        for hf in range(2):
            A(f"ds_read_b64_tr_b16 v[{d+2*hf}:{d+2*hf+1}], v{base} offset:{(32*(ks&1)+16*hf)*PITCH + 32*ct}"); lg.append(("v", idx))
    def rdq(kk):
        A(f"ds_read_b128 v[{QR+4*kk}:{QR+4*kk+3}], v{vQ} offset:{64*kk}"); lg.append(("q", kk))
    for kk in range(6): rdq(kk)
    for kk in range(16):
        lgw(("q", kk))
        for t in range(2): g.mfma(SA + 4 * t, KF + 4 * (2 * kk + t), QR + 4 * kk, kk == 0)
        if kk == 0: g.fine(1)
        if kk == 7: g.fine(2)
        if kk == 15: g.fine(3)
        if kk % 2 == 1 and kk // 2 < o.hs: helpn(1)
        if kk + 6 < 16: rdq(kk + 6)
        if 1 <= kk <= o.nvs: rdv()
    A(f"s_mov_b32 s3, {SCALE}")
    A(f"v_max3_f32 v46, v{SA}, v{SA+1}, v{SA+2}"); A(f"v_max3_f32 v47, v{SA+4}, v{SA+5}, v{SA+6}")
    A(f"v_max3_f32 v46, v46, v{SA+3}, v{SA+7}"); A("v_max_f32 v46, v46, v47")
    g.xred("v_max_f32", 46, 47)
    A("ds_write_b32 v25, v46")
    g.fine(4)
    A("s_waitcnt lgkmcnt(0)"); lg.clear()
    A("s_barrier")
    g.fine(5)
    A(f"ds_read_b128 v[{GA}:{GA+3}], v27"); lg.append("mx")
    for _ in range(o.nvm): rdv()
    lgw("mx")
    A(f"v_max3_f32 v46, v{GA}, v{GA+1}, v{GA+2}"); A(f"v_max_f32 v46, v46, v{GA+3}")
    A(f"v_mul_f32 v44, s3, v46")
    for r in range(8): A(f"v_fma_f32 v{SA+r}, v{SA+r}, s3, -v44")
    for r in range(8): A(f"v_exp_f32 v{SA+r}, v{SA+r}")
    for k in range(4): A(f"v_cvt_pk_bf16_f32 v{GA+k}, v{SA+2*k}, v{SA+2*k+1}")
    A(f"ds_write_b128 v19, v[{GA}:{GA+3}]")
    for k in range(4): A(f"v_add_f32 v{SA+k}, v{SA+k}, v{SA+4+k}")
    A(f"v_add_f32 v{SA}, v{SA}, v{SA+1}"); A(f"v_add_f32 v{SA+2}, v{SA+2}, v{SA+3}"); A(f"v_add_f32 v{SA}, v{SA}, v{SA+2}")
    A(f"ds_write_b32 v25, v{SA} offset:{L_LS - L_MX}")
    g.fine(6)
    A("s_waitcnt lgkmcnt(0)"); lg.clear()
    A("s_barrier")
    g.stamp(8); g.fine(7)
    for w in range(4): A(f"ds_read_b128 v[{PF+4*w}:{PF+4*w+3}], v20 offset:{1024*w}"); lg.append(("p", w))
    A(f"ds_read_b128 v[{SA}:{SA+3}], v27 offset:{L_LS - L_MX}"); lg.append("ls")
    def pack(ct):
        a = OA + 4 * ct
        A(f"v_cvt_pk_bf16_f32 v{PK+2*ct}, v{a}, v{a+1}"); A(f"v_cvt_pk_bf16_f32 v{PK+2*ct+1}, v{a+2}, v{a+3}")
    def ship(p):
        b = PK + 4 * p
        A(f"v_permlane16_swap_b32 v{b}, v{b+2}"); A(f"v_permlane16_swap_b32 v{b+1}, v{b+3}")
        A(f"buffer_store_dwordx4 v[{b}:{b+3}], v{vB}, s[40:43], s60 offen offset:{64*p} {o.stb}")
    for ct in range(8):
        for ks in range(4):
            lgw(("p", ks)); lgw(("v", 4 * ct + ks))
            g.mfma(OA + 4 * ct, KF + 4 * (4 * ct + ks), PF + 4 * ks, ks == 0)
            if ct == 0 and ks == 0: g.fine(8)
            if ct == 7 and ks == 3: g.fine(9)
            rdv()
            if ct == 1 and ks == 0:
                lgw("ls")
                A(f"v_add_f32 v45, v{SA}, v{SA+1}"); A(f"v_add_f32 v46, v{SA+2}, v{SA+3}"); A("v_add_f32 v45, v45, v46")
            if ct == 1 and ks == 2: g.xred("v_add_f32", 45, 46); A("v_mov_b32 v46, v16"); A("v_mov_b32 v47, v17")
            if ks == 2 and ct >= 1: pack(ct - 1)
            if ks == 0 and ct in (3, 5, 7): ship((ct - 3) // 2)
    pack(7); ship(3)
    A("s_mov_b64 exec, 0xffff")
    A(f"buffer_store_dwordx4 v[44:47], v{vL16}, s[40:43], s61 offen sc1")
    A("s_mov_b64 exec, -1")
    g.stamp(9); g.fine(10)
    if o.stamps == 1 and not o.hlp: A("s_waitcnt vmcnt(0)"); g.stamp(4)
    helpn(99)
    A("s_cmp_lg_u32 s31, 0"); A("s_cbranch_scc1 L_fin")
    A("s_cmp_ge_u32 s6, 20"); A("s_cbranch_scc1 L_fin")
    A("s_mul_i32 s3, s5, 10"); A("s_lshr_b32 s52, s6, 1"); A("s_add_u32 s3, s3, s52")
    A("v_lshrrev_b32 v46, 3, v1"); A(f"v_mul_u32_u24 v25, 5120, v46"); A("v_and_b32 v46, 7, v1"); A(f"v_lshl_add_u32 v25, v46, 4, v25")
    A(f"s_mul_i32 s52, s4, {64*5120}"); A("s_lshl_b32 s53, s3, 7"); A("s_add_u32 s52, s52, s53"); A(f"s_add_u32 s52, s52, {OC}")
    for n in range(1, 8): A(f"s_add_u32 s{52+n}, s{51+n}, {8*5120}")
    A("s_mul_i32 s61, s4, 1280"); A("s_lshl_b32 s3, s3, 5"); A("s_add_u32 s61, s61, s3")
    g.srd0(44, 20, 2560)
    g.srd0(48, 22, 256)
    A("s_lshl_b32 s67, s4, 5"); A("v_mov_b32 v26, 0"); A("v_lshlrev_b32 v27, 2, v1")
    A("s_mov_b32 s33, 0x40000")
    A("L_R_non:")
    A("buffer_load_dwordx4 v[28:31], v26, s[48:51], s67 offen sc1"); A("buffer_load_dwordx4 v[32:35], v26, s[48:51], s67 offen offset:16 sc1")
    A("s_waitcnt vmcnt(0)")
    A("v_min_u32 v46, v28, v30"); A("v_min3_u32 v46, v46, v32, v34"); A("v_cmp_eq_u32 vcc, 0, v46")
    A("s_cbranch_vccz L_R_non_ok")
    g.retry("L_R_non", 8)
    A("L_R_non_ok:")
    g.sleep(o.sleepc0)
    GC = 52
    A("s_mov_b32 s33, 0x40000")
    A("L_T_gc:")
    for n in range(8): A(f"buffer_load_dwordx4 v[{GC+4*n}:{GC+4*n+3}], v25, s[40:43], s{52+n} offen sc1")
    for n in range(8):
        A(f"s_waitcnt vmcnt({7-n})")
        d = "vcc" if n == 0 else "s[62:63]"
        A(f"v_cmp_ne_u64 {d}, v[{GC+4*n+2}:{GC+4*n+3}], v[{28+2*(n>>1)}:{29+2*(n>>1)}]")
        if n & 1:
            for r in range(2): A(f"v_add_f32 v{GC+4*n+r}, v{GC+4*n+r}, v{GC+4*n-4+r}")
        if n: A("s_or_b64 vcc, vcc, s[62:63]")
    A("s_cbranch_vccz L_T_gc_ok")
    g.retry("L_T_gc", o.sleepc)
    A("L_T_gc_ok:")
    g.stamp(10)
    for r in range(2): A(f"v_add_f32 v{GC+r}, v{GC+4+r}, v{GC+12+r}")
    for r in range(2): A(f"v_add_f32 v{GC+4+r}, v{GC+20+r}, v{GC+28+r}")
    for r in range(2): A(f"v_add_f32 v{GC+r}, v{GC+r}, v{GC+4+r}")
    for r in range(2): A(f"v_add_f32_dpp v{GC+r}, v{GC+r}, v{GC+r} row_ror:8 row_mask:0xf bank_mask:0xf")
    for sw in ("16", "32"):
        for r in range(2): A(f"v_mov_b32 v{GC+4+r}, v{GC+r}")
        for r in range(2): A(f"v_permlane{sw}_swap_b32 v{GC+r}, v{GC+4+r}")
        for r in range(2): A(f"v_add_f32 v{GC+r}, v{GC+r}, v{GC+4+r}")
    A(f"v_cvt_pk_bf16_f32 v{GC}, v{GC}, v{GC+1}")
    A("s_mov_b64 exec, 0xff")
    A(f"buffer_store_dword v{GC}, v27, s[44:47], s61 offen")
    if o.stamps: A("s_waitcnt vmcnt(0)"); g.stamp(11)
    A("L_fin:")
    g.fin()
    A("L_PU:")
    g.vm = list(vm_save)
    A("s_lshr_b32 s3, s7, 1"); A("s_lshl_b32 s3, s3, 2"); A("s_add_u32 s65, s3, s31")
    A("s_lshl_b32 s3, s65, 18"); A("s_add_u32 s3, s3, s38")
    g.srd(48, 14, "s3", 4194304)
    A(f"v_lshlrev_b32 v{vUK}, 17, v4"); A(f"v_lshl_add_u32 v{vUK}, v44, 4, v{vUK}")
    A("s_mov_b32 s66, 0")
    useq = [("uk", n) for n in range(16)] + [("wo", i) for i in range(20)]
    up = [0]
    def wo_reg(i): return 100 + 4 * i if i < 10 else 204 + 4 * (i - 10)
    def nxt_u():
        if up[0] >= len(useq): return
        k, n = useq[up[0]]; up[0] += 1
        if k == "uk":
            A(f"buffer_load_dwordx4 v[{UK+4*n}:{UK+4*n+3}], v{vUK}, s[48:51], s66 offen {o.lduk}")
            if n < 15: A("s_add_u32 s66, s66, 8192")
        else:
            if n % 5 == 0: A(f"s_movk_i32 s64, {1280*(n//5)}")
            d = wo_reg(n)
            A(f"buffer_load_dwordx4 v[{d}:{d+3}], v{vWO}, s[56:59], s64 offen offset:{256*(n%5)} {o.ldo}")
        g.vmi((k, n))
    q_part(nxt_u, o.tu)
    A("v_mov_b32 v26, v42"); A("v_mov_b32 v27, v43"); A("v_mov_b32 v30, v42"); A("v_mov_b32 v31, v43")
    A(f"v_lshlrev_b32 v46, 5, v44"); A(f"v_add_u32 v46, {L_QS}, v46")
    A("v_and_b32 v2, 16, v1"); A("v_lshlrev_b32 v2, 7, v2"); A("v_lshl_add_u32 v2, v4, 6, v2"); A("v_and_b32 v3, 12, v1"); A("v_lshl_add_u32 v2, v3, 2, v2")
    A("s_and_b32 s62, s26, 62"); A("s_lshl_b32 s62, s62, 4"); A("s_add_u32 s62, s62, s65"); A("s_lshl_b32 s62, s62, 7")
    while up[0] < 16 - o.uearly:
        g.vmlimit(o.tu - 1); nxt_u()
    A("s_barrier")
    while up[0] < 16 + o.npre:
        g.vmlimit(o.tu - 1); nxt_u()
    A("s_barrier")
    QP = 56; PP = 60
    for w in range(4):
        A(f"ds_read_b128 v[{60+8*w}:{63+8*w}], v46 offset:{1024*w}"); A(f"ds_read_b128 v[{64+8*w}:{67+8*w}], v46 offset:{1024*w+16}")
    A("s_waitcnt lgkmcnt(0)")
    for k in range(8): A(f"v_add_f32 v{60+k}, v{60+k}, v{68+k}")
    for k in range(8): A(f"v_add_f32 v{76+k}, v{76+k}, v{84+k}")
    for k in range(8): A(f"v_add_f32 v{48+k}, v{60+k}, v{76+k}")
    for k in range(4): A(f"v_cvt_pk_bf16_f32 v{QP+k}, v{48+2*k}, v{49+2*k}")
    for n0 in (0, 8):
        g.vmwait(("uk", n0 + 7))
        for k in range(4):
            for n in range(n0, n0 + 8):
                if k == 0: A(f"v_dot2_f32_bf16 v{PP+n}, v{UK+4*n}, v{QP}, 0")
                else: A(f"v_dot2c_f32_bf16 v{PP+n}, v{UK+4*n+k}, v{QP+k}")
        if n0 == 0:
            for n in range(8): A(f"v_add_f32_dpp v{PP+n}, v{PP+n}, v{PP+n} row_ror:8 row_mask:0xf bank_mask:0x3")
    for n in range(8): A(f"v_add_f32_dpp v{PP+n}, v{PP+n+8}, v{PP+n+8} row_ror:8 row_mask:0xf bank_mask:0xc")
    for n in range(4): A(f"v_add_f32_dpp v{PP+n}, v{PP+n}, v{PP+n} row_half_mirror row_mask:0xf bank_mask:0x5")
    for n in range(4): A(f"v_add_f32_dpp v{PP+n}, v{PP+n+4}, v{PP+n+4} row_half_mirror row_mask:0xf bank_mask:0xa")
    for n in range(4): A(f"v_add_f32_dpp v{PP+n}, v{PP+n}, v{PP+n} quad_perm:[2,3,0,1] row_mask:0xf bank_mask:0xf")
    for n in range(4): A(f"v_add_f32_dpp v{PP+n}, v{PP+n}, v{PP+n} quad_perm:[1,0,3,2] row_mask:0xf bank_mask:0xf")
    A(f"v_cvt_pk_bf16_f32 v24, v{PP}, v{PP+1}"); A(f"v_cvt_pk_bf16_f32 v25, v{PP+2}, v{PP+3}")
    A("s_mov_b32 exec_lo, 0x11111111"); A("s_mov_b32 exec_hi, 0x11111111")
    A(f"buffer_store_dwordx4 v[24:27], v2, s[40:43], s62 offen sc1"); g.vmi("qa")
    A("s_mov_b64 exec, -1")
    g.stamp(4)
    A("v_lshrrev_b32 v47, 4, v1"); A("s_lshl_b32 s3, s31, 6"); A("v_lshl_add_u32 v44, v47, 4, s3"); A(f"v_add_u32 v44, {L_CX}, v44")
    A("v_and_b32 v47, 15, v1"); A("v_and_b32 v46, 16, v1"); A("v_lshl_add_u32 v46, v47, 5, v46"); A("s_mul_i32 s3, s31, 2560"); A(f"v_add_u32 v46, s3, v46")
    A("s_mul_i32 s3, s31, 640"); A(f"v_add_u32 v47, s3, v{vL16}"); A("v_lshlrev_b32 v45, 1, v47")
    A("s_lshl_b32 s62, s26, 1"); A("s_add_u32 s62, s62, s29"); A("s_mul_i32 s62, s62, 5120"); A(f"s_add_u32 s62, s62, {OC}")
    g.sleep(o.du)
    while up[0] < len(useq):
        if o.ubar and up[0] == len(useq) - o.ubar + 1: A("s_barrier")
        g.vmlimit((o.to if up[0] < 16 + o.nto else o.to2) - 1); nxt_u()
    if o.ubar == 1: A("s_barrier")
    g.stamp(5)
    A("s_barrier")
    g.stamp(7); g.fine(0)
    OA7 = 60; F7 = 80
    for w in range(4): A(f"ds_read_b128 v[{80+4*w}:{83+4*w}], v44 offset:{256*w}")
    A("s_waitcnt lgkmcnt(0)")
    for k in range(4): A(f"v_add_f32 v{80+k}, v{80+k}, v{84+k}")
    for k in range(4): A(f"v_add_f32 v{88+k}, v{88+k}, v{92+k}")
    for k in range(4): A(f"v_add_f32 v{48+k}, v{80+k}, v{88+k}")
    for k in range(2): A(f"v_cvt_pk_bf16_f32 v{QP+k}, v{48+2*k}, v{49+2*k}")
    g.fine(1)
    g.frag(F7, QP, 0, SEL)
    for k in range(4):
        for cb in range(5):
            g.vmwait(("wo", 5 * k + cb))
            g.mfma(OA7 + 4 * cb, F7 + 4 * k, wo_reg(5 * k + cb), k == 0)
            if cb == 0 and k < 3: g.frag(F7 + 4 * (k + 1), QP + ((k + 1) >> 1), (k + 1) & 1, SEL)
    g.stamp(8); g.fine(2)
    A("s_mov_b32 exec_hi, 0")
    for cb in range(5): A(f"ds_write_b128 v46, v[{OA7+4*cb}:{OA7+4*cb+3}] offset:{L_OUTP+512*cb}")
    A("s_mov_b32 exec_hi, 0xff")
    A("s_waitcnt lgkmcnt(0)")
    A("s_barrier")
    g.fine(3)
    for w in range(4): A(f"ds_read_b128 v[{F7+4*w}:{F7+4*w+3}], v47 offset:{L_OUTP+2560*w}")
    A("s_waitcnt lgkmcnt(2)")
    for r in range(4): A(f"v_add_f32 v{F7+r}, v{F7+r}, v{F7+4+r}")
    A("s_waitcnt lgkmcnt(0)")
    for r in range(4): A(f"v_add_f32 v{F7+8+r}, v{F7+8+r}, v{F7+12+r}")
    for r in range(4): A(f"v_add_f32 v{24+(r&1)+4*(r>>1)}, v{F7+r}, v{F7+8+r}")
    A(f"buffer_store_dwordx4 v[24:27], v45, s[40:43], s62 offen sc1")
    A(f"buffer_store_dwordx4 v[28:31], v45, s[40:43], s62 offen offset:16 sc1")
    g.stamp(9); g.fine(4)
    if o.stamps: A("s_waitcnt vmcnt(0)"); g.stamp(10); g.fine(5)
    g.fin()
    g.vm = []
    A("L_S:")
    A("s_sub_u32 s31, s31, 4")
    SEN = 16; vA = 25; vB = 26
    for r in range(4): A(f"v_mov_b32 v{SEN+r}, -1")
    A("v_mov_b32 v44, 0"); A(f"v_mov_b32 v39, {L_NON}")
    A("s_lshl_b32 s67, s4, 5")
    A("s_waitcnt lgkmcnt(0)")
    g.stamp(1)
    g.srd0(40, 24, WS_END)
    g.srd0(48, 22, 256)
    A("s_cmp_lg_u32 s31, 0"); A("s_cbranch_scc1 L_S_w123")
    A("s_and_b32 s52, s2, 7"); A("s_lshl_b32 s52, s52, 3")
    A("s_cmp_lg_u32 s6, 0"); A("s_cbranch_scc1 L_S_nolead")
    A("s_memrealtime s[54:55]"); A("v_lshlrev_b32 v45, 6, v1"); A("s_waitcnt lgkmcnt(0)"); A("s_or_b32 s54, s54, 1")
    A("v_mov_b32 v46, s54"); A("v_mov_b32 v47, s55")
    A("s_mov_b64 exec, 15")
    A("buffer_store_dwordx2 v[46:47], v45, s[48:51], s52 offen sc1")
    A("s_mov_b64 exec, -1")
    A("s_branch L_S_np_ok")
    A("L_S_nolead:")
    g.sleep(o.dn)
    g.nonce("S_np", "s52")
    A("v_mov_b32 v46, s54"); A("v_mov_b32 v47, s55")
    A("ds_write_b64 v39, v[46:47]")
    A("s_waitcnt lgkmcnt(0)")
    g.stamp(2)
    A("L_S_w123:")
    if o.pf:
        A("s_cmp_lg_u32 s31, 2"); A("s_cbranch_scc1 L_S_npf")
        A("s_getpc_b64 s[34:35]")
        A("L_pc:")
        A(f"s_sub_u32 s34, s34, L_pc-{NAME}_kernel"); A("s_subb_u32 s35, s35, 0")
        A(f"s_and_b32 s3, s6, {o.pf-1}"); A("s_lshl_b32 s3, s3, 10"); A(f"v_add_u32 v46, s3, v{vL16}")
        A(f"global_load_dwordx4 v[200:203], v46, s[34:35]")
        A("L_S_npf:")
    A("s_cmp_eq_u32 s30, 0"); A("s_cbranch_scc1 L_SU")
    st_ob_addr()
    A("v_lshrrev_b32 v38, 4, v1"); A("v_lshlrev_b32 v38, 15, v38"); A("v_and_b32 v37, 15, v1"); A("v_lshl_add_u32 v38, v37, 4, v38")
    A("v_mov_b32 v40, -1"); A("v_mov_b32 v41, -1")
    A("s_barrier")
    g.stamp(3)
    g.sleep(o.dinv)
    for n in range(4):
        A(f"buffer_store_dwordx4 v[{SEN}:{SEN+3}], v38, s[40:43], s60 offen sc1")
        if n < 3: A("s_add_u32 s60, s60, 131072")
    A("ds_read_b64 v[42:43], v39")
    A("s_waitcnt vmcnt(0) lgkmcnt(0)")
    A("s_mov_b64 exec, 0xffff")
    A(f"buffer_store_dwordx4 v[40:43], v{vL16}, s[40:43], s61 offen sc1")
    A("s_mov_b64 exec, -1")
    A("s_lshl_b32 s52, s29, 1"); A("s_lshr_b32 s3, s31, 1"); A("s_add_u32 s52, s52, s3"); A("s_lshl_b32 s52, s52, 3"); A("s_add_u32 s52, s52, s67")
    g.nonce("T_np", "s52", 3)
    g.stamp(4)
    A("s_lshl_b32 s52, s4, 1"); A("s_add_u32 s52, s52, s29"); A("s_lshl_b32 s52, s52, 2"); A("s_add_u32 s52, s52, s31"); A("s_lshl_b32 s52, s52, 13"); A("s_add_u32 s53, s52, 4096")
    A(f"s_mul_i32 s3, s31, {4*PITCH}"); A(f"s_add_u32 s3, s3, {L_QI}"); A(f"v_lshl_add_u32 v{vA}, v1, 3, s3")
    hs = [0]
    def helps(n):
        for _ in range(n):
            i = hs[0]
            if i >= o.hsv: return
            hs[0] += 1
            if i % 2 == 0:
                k = 19 - i // 2
                A(f"s_movk_i32 s64, {1280*(k//5)}"); A(f"buffer_load_dwordx4 v[124:127], v6, s[60:63], s64 offen offset:{256*(k%5)}")
            else:
                A(f"s_mov_b32 s64, {8192*(15 - i // 2)}"); A(f"buffer_load_dwordx4 v[124:127], v9, s[44:47], s64 offen")
    if o.hsv:
        A("s_lshl_b32 s3, s28, 1"); A("s_add_u32 s3, s3, s29"); A("s_lshl_b32 s3, s3, 2"); A("s_add_u32 s3, s3, s31"); A("s_mul_i32 s63, s3, 20480")
        g.srd(60, 18, "s63", 5242880)
        A("s_lshl_b32 s3, s31, 20"); A("s_lshl_b32 s36, s28, 8"); A("s_add_u32 s3, s3, s36"); A("s_lshl_b32 s36, s29, 7"); A("s_add_u32 s3, s3, s36")
        g.srd(44, 16, "s3", 4194304)
        A("v_lshrrev_b32 v9, 3, v1"); A("v_lshlrev_b32 v9, 17, v9"); A("v_and_b32 v8, 7, v1"); A("v_lshl_add_u32 v9, v8, 4, v9")
        A("v_lshrrev_b32 v47, 4, v1"); A("v_mul_u32_u24 v6, 5120, v47"); A("v_and_b32 v46, 15, v1"); A("v_lshl_add_u32 v6, v46, 4, v6")
    A("s_barrier")
    if o.h1:
        helps(o.h1)
        A(f"s_waitcnt vmcnt({o.h1w})")
    GA = 48
    if o.hinta:
        A("v_lshlrev_b32 v37, 7, v1")
        A("s_mov_b32 s33, 0x40000")
        A("L_T_ha:")
        A("buffer_load_dwordx2 v[48:49], v37, s[40:43], s52 offen offset:8 sc1")
        A("s_waitcnt vmcnt(0)")
        A("v_cmp_ne_u64 vcc, s[54:55], v[48:49]"); A("s_bcnt1_i32_b64 s3, vcc")
        A(f"s_cmp_lt_u32 s3, {o.hinta}"); A("s_cbranch_scc1 L_T_ha_ok")
        g.retry("L_T_ha", o.sleepa)
        A("L_T_ha_ok:")
    g.sleep(o.da)
    A("s_mov_b32 s33, 0x40000")
    A("L_T_ga:")
    for n in range(8): A(f"buffer_load_dwordx4 v[{GA+4*n}:{GA+4*n+3}], v{vL16}, s[40:43], s{52+(n>>2)} offen offset:{1024*(n&3)} sc1")
    for n in range(8):
        A(f"s_waitcnt vmcnt({7-n})")
        A(f"ds_write_b64 v{vA}, v[{GA+4*n}:{GA+4*n+1}] offset:{(n>>1)*PITCH + 512*(n&1)}")
        d = "vcc" if n == 0 else "s[56:57]"
        A(f"v_cmp_ne_u64 {d}, s[54:55], v[{GA+4*n+2}:{GA+4*n+3}]")
        if n: A("s_or_b64 vcc, vcc, s[56:57]")
    A("s_cbranch_vccz L_T_ga_ok")
    g.retry("L_T_ga", o.sleepa)
    A("L_T_ga_ok:")
    g.stamp(5)
    A("s_waitcnt lgkmcnt(0)")
    g.stamp(6)
    A("s_barrier")
    if o.hsv:
        helps(o.h2)
        A("s_barrier"); A("s_barrier")
        while hs[0] < o.hsv:
            A(f"s_waitcnt vmcnt({o.hsd2-1})"); helps(1)
    g.fin()
    A("L_SU:")
    UV = 128; SEL = 8
    g.selectors(SEL, 46)
    A("s_lshr_b32 s52, s26, 1"); A("s_lshl_b32 s52, s52, 2"); A("s_add_u32 s52, s52, s31"); A("s_lshl_b32 s52, s52, 12"); A(f"s_add_u32 s52, s52, {QQ}")
    A("s_lshl_b32 s3, s31, 10"); A(f"s_add_u32 s3, s3, {L_QS}"); A("v_lshl_add_u32 v38, v1, 3, s3")
    A("s_barrier")
    g.stamp(3)
    A("ds_read_b64 v[42:43], v39")
    A("s_lshl_b32 s3, s31, 20"); A("s_lshl_b32 s36, s28, 8"); A("s_add_u32 s3, s3, s36"); A("s_lshl_b32 s36, s29, 7"); A("s_add_u32 s3, s3, s36")
    g.srd(44, 16, "s3", 4194304)
    A("v_lshrrev_b32 v5, 3, v1"); A("v_and_b32 v6, 7, v1"); A("v_lshrrev_b32 v4, 4, v1"); A("v_and_b32 v3, 15, v1")
    A("v_lshlrev_b32 v24, 17, v5"); A("v_lshl_add_u32 v24, v6, 4, v24")
    A(f"v_lshlrev_b32 v{vB}, 13, v4"); A(f"v_lshl_add_u32 v{vA}, v3, 4, v{vB}"); A("v_lshlrev_b32 v36, 3, v4")
    A("s_lshr_b32 s59, s26, 4"); A("s_lshl_b32 s59, s59, 7"); A("s_add_u32 s59, s59, s31"); A("s_lshl_b32 s59, s59, 4"); A("s_and_b32 s3, s28, 15"); A("s_add_u32 s59, s59, s3")
    A("s_lshl_b32 s59, s59, 4"); A(f"s_add_u32 s59, s59, {ST}"); A("s_add_u32 s61, s59, 4096")
    A("s_lshl_b32 s58, s26, 15"); A("s_lshl_b32 s3, s31, 8"); A("s_add_u32 s58, s58, s3"); A(f"s_add_u32 s58, s58, {OB}"); A("s_add_u32 s60, s58, 4096")
    A("v_and_b32 v46, 16, v1"); A("v_lshl_add_u32 v21, v6, 5, v46"); A(f"s_add_u32 s54, s3, {L_CX}"); A("v_add_u32 v21, s54, v21")
    A(f"s_add_u32 s3, s3, {L_CC}"); A("v_lshlrev_b32 v20, 4, v3"); A("v_lshl_add_u32 v20, v4, 3, v20"); A("v_add_u32 v20, s3, v20"); A("v_lshl_add_u32 v22, v5, 5, s3")
    A("s_barrier")
    g.sleep(o.dq)
    A("s_mov_b32 s33, 0x40000"); A("s_mov_b32 s39, 0")
    def gq():
        for n in range(4): A(f"buffer_load_dwordx4 v[{48+4*n}:{51+4*n}], v{vL16}, s[40:43], s52 offen offset:{1024*n} sc1")
    def ld_uv(n):
        A(f"buffer_load_dwordx4 v[{UV+4*n}:{UV+4*n+3}], v24, s[44:47], s39 offen {o.lduv}"); g.vmi(("uv", n))
        A("s_add_u32 s39, s39, 8192")
    gq()
    for n in range(o.vpre): ld_uv(n)
    A(f"s_waitcnt vmcnt({o.vpre}) lgkmcnt(0)")
    A("s_branch L_U_gq_t")
    A("L_U_gq:")
    gq()
    A("s_waitcnt vmcnt(0)")
    A("L_U_gq_t:")
    for n in range(4):
        d = "vcc" if n == 0 else "s[54:55]"
        A(f"v_cmp_ne_u64 {d}, v[{50+4*n}:{51+4*n}], v[42:43]")
        if n: A("s_or_b64 vcc, vcc, s[54:55]")
    A("s_cbranch_vccz L_U_gq_ok")
    g.retry("L_U_gq", o.sleepa)
    A("L_U_gq_ok:")
    for k in range(2):
        for r in range(2): A(f"v_add_f32 v{48+4*k+r}, v{48+4*k+r}, v{56+4*k+r}")
    A("ds_write_b64 v38, v[48:49]"); A("ds_write_b64 v38, v[52:53] offset:512")
    A("s_waitcnt lgkmcnt(0)")
    g.stamp(10)
    A("s_barrier")
    if o.prew:
        A("s_cmp_lg_u32 s31, 0"); A("s_cbranch_scc1 L_U_noprew")
        A("s_lshl_b32 s62, s26, 1"); A("s_add_u32 s62, s62, s29"); A("s_mul_i32 s62, s62, 5120"); A(f"s_add_u32 s62, s62, {OC}")
        for n in range(4): A(f"buffer_store_dwordx4 v[{SEN}:{SEN+3}], v{vL16}, s[40:43], s62 offen offset:{1024*n} sc1")
        A("s_add_u32 s62, s62, 4096")
        A(f"buffer_store_dwordx4 v[{SEN}:{SEN+3}], v{vL16}, s[40:43], s62 offen sc1")
        A("L_U_noprew:")
    g.sleep(o.dv)
    for n in range(o.vpre, 16):
        g.vmlimit(o.tv - 1); ld_uv(n)
    g.stamp(4)
    if o.ubar: A("s_barrier")
    g.sleep(o.db)
    GB = 48; GS = 80; FC = 192
    g.vm = []
    def stats():
        for k in range(8): A(f"buffer_load_dwordx4 v[{GS+4*k}:{GS+4*k+3}], v{vB}, s[40:43], s{59 if k < 4 else 61} offen offset:{1024*(k&3)} sc1")
    A("s_mov_b32 s33, 0x40000")
    A("L_U_gs:")
    A("buffer_load_dwordx2 v[40:41], v36, s[48:51], s67 offen sc1")
    stats()
    A("s_waitcnt vmcnt(0)")
    A("v_cmp_eq_u32 vcc, 0, v40")
    for k in range(8):
        A(f"v_cmp_ne_u64 s[54:55], v[{GS+4*k+2}:{GS+4*k+3}], v[40:41]"); A("s_or_b64 vcc, vcc, s[54:55]")
    A("s_cbranch_vccnz L_U_gs_no")
    A("s_mov_b32 s56, 0")
    for k in range(8):
        A(f"v_cmp_eq_u32 vcc, -1, v{GS+4*k}"); A("s_bcnt1_i32_b64 s57, vcc"); A("s_add_u32 s56, s56, s57")
    A(f"s_cmp_le_u32 s56, {16*o.thr}"); A("s_cbranch_scc1 L_U_gs_ok")
    A("L_U_gs_no:")
    g.retry("L_U_gs", o.sleepb)
    A("L_U_gs_ok:")
    g.stamp(9)
    A("s_mov_b32 s33, 0x40000")
    A("L_U_gb:")
    stats()
    for n in range(8): A(f"buffer_load_dwordx4 v[{GB+4*n}:{GB+4*n+3}], v{vA}, s[40:43], s{58 if n < 4 else 60} offen offset:{1024*(n&3)} sc1")
    A("s_waitcnt vmcnt(8)")
    g.fine(0)
    A(f"v_max3_f32 v44, v{GS}, v{GS+4}, v{GS+8}"); A(f"v_max3_f32 v45, v{GS+12}, v{GS+16}, v{GS+20}")
    A(f"v_max3_f32 v44, v44, v{GS+24}, v{GS+28}"); A("v_max_f32 v44, v44, v45")
    A(f"v_max3_u32 v43, v{GS}, v{GS+4}, v{GS+8}")
    A("v_mov_b32 v45, v44"); A(f"v_max3_u32 v43, v43, v{GS+12}, v{GS+16}"); A(f"v_max3_u32 v43, v43, v{GS+20}, v{GS+24}")
    A("v_permlane16_swap_b32 v44, v45"); A("v_max_f32 v44, v44, v45")
    A("v_mov_b32 v45, v44"); A(f"v_max_u32 v43, v43, v{GS+28}")
    A("v_permlane32_swap_b32 v44, v45"); A("v_max_f32 v44, v44, v45")
    for n in range(8): A(f"v_sub_f32 v{GS+4*n}, v{GS+4*n}, v44")
    for n in range(8): A(f"v_exp_f32 v{GS+4*n}, v{GS+4*n}")
    for k in range(4): A(f"v_cvt_pk_bf16_f32 v{28+k}, v{GS+8*k}, v{GS+8*k+4}")
    g.frag(FC, 28, 0, SEL)
    for n in range(8):
        if n < 7: g.frag(FC + 4 * (n + 1), 28 + ((n + 1) >> 1), (n + 1) & 1, SEL)
        A(f"s_waitcnt vmcnt({7-n})")
        g.mfma(32, FC + 4 * n, GB + 4 * n, n == 0)
    for n in range(8):
        A(f"v_max3_u32 v43, v43, v{GB+4*n}, v{GB+4*n+1}") if n < 2 else None
        A(f"v_max3_u32 v42, v{GB+4*n+2}, v{GB+4*n+3}, v{GB+4*n+3}") if n == 0 else None
    for n in range(1, 8): A(f"v_max3_u32 v42, v42, v{GB+4*n+2}, v{GB+4*n+3}")
    for k in range(2): A(f"v_cvt_pk_bf16_f32 v{32+k}, v{32+2*k}, v{33+2*k}")
    A("s_mov_b32 exec_hi, 0")
    A("ds_write_b64 v20, v[32:33]")
    A("s_mov_b32 exec_hi, -1")
    for k in range(2): A(f"ds_read_b128 v[{112+4*k}:{115+4*k}], v22 offset:{16*k}")
    for n in range(2, 8): A(f"v_max3_u32 v43, v43, v{GB+4*n}, v{GB+4*n+1}")
    A("v_max_u32 v43, v43, v42")
    A("v_cmp_eq_u32 vcc, -1, v43")
    A("s_cbranch_vccz L_U_gb_ok")
    A("s_waitcnt lgkmcnt(0)")
    g.retry("L_U_gb")
    A("L_U_gb_ok:")
    g.stamp(6)
    A(f"v_mul_f32 v44, v{GS}, v{GS+1}")
    for n in range(1, 8): A(f"v_fmac_f32 v44, v{GS+4*n}, v{GS+4*n+1}")
    A("s_waitcnt lgkmcnt(0)")
    g.stamp(7); g.fine(1)
    g.frag(72, 112, 0, SEL)
    for n in range(16):
        if n < 15: g.frag(72 + 4 * ((n + 1) & 1), 112 + ((n + 1) >> 1), (n + 1) & 1, SEL)
        g.mfma(32, 72 + 4 * (n & 1), UV + 4 * n, n == 0)
    g.fine(2)
    g.xred("v_add_f32", 44, 45)
    A("v_rcp_f32 v44, v44")
    g.fold(32, 88)
    for r in range(4): A(f"v_mul_f32 v{32+r}, v{32+r}, v44")
    A("s_mov_b64 exec, 0x00ff00ff")
    A("ds_write_b128 v21, v[32:35]")
    A("s_mov_b64 exec, -1")
    A("s_waitcnt lgkmcnt(0)")
    g.stamp(8); g.fine(3)
    A("s_barrier")
    g.fine(4)
    if o.stamps:
        A("L_stamps:")
        A("s_mov_b64 exec, 1")
        A("s_waitcnt lgkmcnt(0)")
        A("v_lshrrev_b32 v2, 6, v0"); A("s_lshl_b32 s3, s2, 3"); A("v_add_u32 v2, s3, v2"); A(f"v_mul_u32_u24 v2, {NST*8}, v2")
        A("s_add_u32 s40, s24, 0x8000000"); A("s_addc_u32 s41, s25, 0"); A("s_mov_b32 s42, 0x1000000"); A("s_mov_b32 s43, 0x20000")
        for i in range(NST):
            A(f"v_mov_b32 v4, s{72+2*i}"); A(f"v_mov_b32 v5, s{73+2*i}")
            A(f"buffer_store_dwordx2 v[4:5], v2, s[40:43], 0 offen offset:{8*i}")
            A("s_nop 1")
    A("L_end:")
    A("s_endpgm")
    lines, nn = hz.fix([l for l in g.L if l is not None])
    body = "\n".join(("" if l.endswith(":") else "    ") + l for l in lines)
    txt = (HDR + f"; @launch grid=(256,1,1) block=(512,1,1) lds={L_END}\n"
        ".amdgcn_target \"amdgcn-amd-amdhsa--gfx950\"\n.text\n"
        f".globl {NAME}_kernel\n.p2align 8\n.type {NAME}_kernel,@function\n{NAME}_kernel:\n" + body + "\n"
        + (f".org {NAME}_kernel+{o.pf*1024}, 0\n" if o.pf else "") +
        ".section .rodata,\"a\"\n.p2align 6\n"
        f".amdhsa_kernel {NAME}_kernel\n  .amdhsa_next_free_vgpr 256\n  .amdhsa_next_free_sgpr 96\n"
        "  .amdhsa_accum_offset 256\n  .amdhsa_group_segment_fixed_size 0\n  .amdhsa_kernarg_size 120\n"
        "  .amdhsa_user_sgpr_count 2\n  .amdhsa_user_sgpr_kernarg_segment_ptr 1\n  .amdhsa_system_sgpr_workgroup_id_x 1\n"
        ".end_amdhsa_kernel\n")
    return txt, nn

def parse(argv):
    ap = argparse.ArgumentParser()
    ap.add_argument("-o", default="k4.s")
    for k, d in dict(stamps=0, tw=7, tk=7, tk2=8, tu=7, to=4, tv=4, npre=0, h1=0, h1w=0, h2=3, vpre=0, hsv=0, hsd=6, hsd2=6, db=0, ubar=1, nto=12, to2=7, hs=0, hinta=0, da=0, hu=0, uearly=0, dn=14, pf=16, dinv=0, dq=0, du=0, dv=0,
                     sleepa=4, sleepb=4, sleepc0=20, sleepc=2, sleepn=8, sleepf=16, hlp=0, hd=6, prew=1, thr=4, nvs=13, nvm=3).items():
        ap.add_argument("--" + k, type=int, default=d)
    for k in ("ldq", "lduk", "ldkv", "ldkv2", "ldo", "lduv"): ap.add_argument("--" + k, default="")
    ap.add_argument("--stb", default="sc1")
    return ap.parse_args(argv)
if __name__ == "__main__":
    o = parse(sys.argv[1:])
    txt, nn = gen(o)
    open(o.o, "w").write(txt)
    print("written", o.o, "nops inserted", nn)
```

```python
import sys, argparse
sys.path.insert(0, "gen")
import hz
NAME = "concat_heads__compressed_kv_cla__compressed_kv_cla__decode"
HDR = open("cdna_kernels/%s.s.ref" % NAME).read().split("; Override launch")[0]

QA = 0x0
QQ = 0x20000
ST = 0x180000
OC = 0xC0000
OB = 0x200000
WS_END = 0x400000
PITCH = 1056
L_QI = 128 * PITCH
L_MISC = L_QI + 16 * PITCH
L_QP = L_MISC
L_MX = L_MISC
L_LS = L_MISC + 1024
L_P = L_MISC + 4096
L_NON = L_MISC + 8192
L_EW = 22528
L_END = L_NON + 16
L_OUTP = 0
L_QS = 16384
L_CX = 20480
L_CC = 21504
SCALE = 0x3e0293ee
NST = 12

class G:
    def __init__(s, opt):
        s.L = []; s.o = opt; s.vm = []
    def A(s, t): s.L.append(t)
    def vmi(s, tag): s.vm.append(tag)
    def vmwait(s, tag):
        if tag not in s.vm: return
        k = len(s.vm) - 1 - max(i for i, t in enumerate(s.vm) if t == tag)
        s.A(f"s_waitcnt vmcnt({k})")
        s.vm = s.vm[len(s.vm) - k:]
    def vmlimit(s, k):
        if len(s.vm) > k:
            s.A(f"s_waitcnt vmcnt({k})"); s.vm = s.vm[len(s.vm) - k:]
    def stamp(s, i):
        if s.o.stamps == 1: s.A(f"s_memrealtime s[{72+2*i}:{73+2*i}]")
    def fine(s, i):
        if s.o.stamps == 2: s.A(f"s_memtime s[{72+2*i}:{73+2*i}]")
    def sleep(s, n):
        while n > 0:
            s.A(f"s_sleep {min(n, 100)}"); n -= 100
    def srd(s, d, base, off, size):
        s.A(f"s_add_u32 s{d}, s{base}, {off}"); s.A(f"s_addc_u32 s{d+1}, s{base+1}, 0")
        s.A(f"s_sub_u32 s{d+2}, {size}, {off}"); s.A(f"s_mov_b32 s{d+3}, 0x20000")
    def srd0(s, d, base, size):
        s.A(f"s_mov_b32 s{d}, s{base}"); s.A(f"s_mov_b32 s{d+1}, s{base+1}"); s.A(f"s_mov_b32 s{d+2}, {size}"); s.A(f"s_mov_b32 s{d+3}, 0x20000")
    def selectors(s, sel, tmp, sel2=None):
        A = s.A
        A(f"v_and_b32 v{tmp}, 1, v1")
        A(f"v_cmp_eq_u32 vcc, 1, v{tmp}")
        A(f"v_mov_b32 v{tmp+1}, 0x0c0c0100"); A(f"v_mov_b32 v{tmp+2}, 0x01000c0c")
        A(f"v_cndmask_b32 v{tmp+1}, v{tmp+1}, v{tmp+2}, vcc")
        A(f"v_mov_b32 v{tmp+2}, 0x0c0c0302"); A(f"v_mov_b32 v{tmp+3}, 0x03020c0c")
        A(f"v_cndmask_b32 v{tmp+2}, v{tmp+2}, v{tmp+3}, vcc")
        A(f"v_mov_b32 v{tmp+3}, 0x0c0c0c0c")
        A(f"v_bfe_u32 v{tmp}, v1, 1, 2")
        for r in range(4):
            A(f"v_cmp_eq_u32 vcc, {r}, v{tmp}")
            A(f"v_cndmask_b32 v{sel+r}, v{tmp+3}, v{tmp+1}, vcc")
            A(f"v_cndmask_b32 v{sel+4+r}, v{tmp+3}, v{tmp+2}, vcc")
        if sel2 is not None:
            A("s_mov_b32 vcc_lo, 0xff0000ff"); A("s_mov_b32 vcc_hi, 0xff0000ff")
            for r in range(8): A(f"v_cndmask_b32 v{sel2+r}, v{tmp+3}, v{sel+r}, vcc")
    def frag(s, dst, src, par, sel):
        for r in range(4): s.A(f"v_perm_b32 v{dst+r}, v{src}, v{src}, v{sel+4*par+r}")
    def fold(s, d, t, n=4):
        for r in range(n): s.A(f"v_mov_b32 v{t+r}, v{d+r}")
        for r in range(n): s.A(f"v_permlane32_swap_b32 v{d+r}, v{t+r}")
        for r in range(n): s.A(f"v_add_f32_dpp v{d+r}, v{t+r}, v{d+r} row_ror:8 row_mask:0xf bank_mask:0xf")
    def xred(s, op, r, t):
        for sw in ("16", "32"):
            s.A(f"v_mov_b32 v{t}, v{r}"); s.A(f"v_permlane{sw}_swap_b32 v{r}, v{t}"); s.A(f"{op} v{r}, v{r}, v{t}")
    def mfma(s, d, a, b, first):
        s.A(f"v_mfma_f32_16x16x32_bf16 v[{d}:{d+3}], v[{a}:{a+3}], v[{b}:{b+3}], " + ("0" if first else f"v[{d}:{d+3}]"))
    def validate(s, first, n, lab_ok):
        A = s.A
        A(f"v_max3_u32 v46, v{first}, v{first+1}, v{first+2}")
        A(f"v_max3_u32 v47, v{first+3}, v{first+4}, v{first+5}")
        k = 6; which = 46
        while k + 1 < n:
            A(f"v_max3_u32 v{which}, v{which}, v{first+k}, v{first+k+1}"); k += 2; which = 93 - which
        A("v_max_u32 v46, v46, v47")
        A("v_cmp_eq_u32 vcc, -1, v46")
        A(f"s_cbranch_vccz {lab_ok}")
    def retry(s, lab, sleep=0):
        if sleep: s.A(f"s_sleep {sleep}")
        s.A("s_sub_u32 s33, s33, 1"); s.A(f"s_cbranch_scc0 {lab}")
    def nonce(s, tag, goff, first=0):
        A = s.A
        A(f"s_add_u32 s34, s22, {goff}"); A("s_addc_u32 s35, s23, 0")
        for r in range(first, 4):
            A(f"s_load_dwordx2 s[54:55], s[34:35], {64*r}"); A("s_waitcnt lgkmcnt(0)")
            A("s_cmp_lg_u32 s54, 0"); A(f"s_cbranch_scc1 L_{tag}_ok")
            A(f"s_sleep {s.o.sleepn}")
        A("s_mov_b32 s33, 0x40000"); A("v_mov_b32 v46, 0")
        A(f"L_{tag}:")
        A(f"buffer_load_dwordx2 v[48:49], v46, s[48:51], {goff} offen sc1")
        A("s_waitcnt vmcnt(0)")
        A("v_readfirstlane_b32 s54, v48"); A("v_readfirstlane_b32 s55, v49")
        A("s_cmp_lg_u32 s54, 0"); A(f"s_cbranch_scc1 L_{tag}_ok")
        s.retry(f"L_{tag}", 16)
        A(f"L_{tag}_ok:")
    def fin(s):
        if s.o.stamps: s.A("s_branch L_stamps")
        else: s.A("s_endpgm")

def gen(o):
    g = G(o); A = g.A
    if o.stamps:
        for i in range(NST): A(f"s_mov_b64 s[{72+2*i}:{73+2*i}], 0")
    g.stamp(0)
    A("s_cmp_ge_u32 s2, 256"); A("s_cbranch_scc1 L_end")
    A("s_bfe_u32 s4, s2, 0x10002")
    A("s_mul_i32 s3, s4, 48")
    A("s_add_u32 s34, s0, s3"); A("s_addc_u32 s35, s1, 0")
    A("s_load_dwordx4 s[8:11], s[34:35], 0")
    A("s_load_dwordx4 s[12:15], s[34:35], 16")
    A("s_load_dwordx4 s[16:19], s[34:35], 32")
    A("s_load_dwordx4 s[20:23], s[0:1], 96")
    A("s_load_dwordx2 s[24:25], s[0:1], 112")
    A("v_lshrrev_b32 v4, 6, v0")
    A("v_and_b32 v1, 63, v0")
    A("v_readfirstlane_b32 s31, v4")
    A("s_and_b32 s5, s2, 3"); A("s_lshr_b32 s6, s2, 3"); A("s_and_b32 s7, s6, 7")
    A("s_lshl_b32 s28, s5, 3"); A("s_lshr_b32 s3, s6, 2"); A("s_add_u32 s28, s28, s3")
    A("s_and_b32 s27, s28, 30")
    A("s_bfe_u32 s29, s6, 0x10001"); A("s_and_b32 s30, s6, 1")
    A("s_lshl_b32 s26, s4, 5"); A("s_add_u32 s26, s26, s28")
    vL16 = 7
    A(f"v_lshlrev_b32 v{vL16}, 4, v1")
    A("s_cmp_ge_u32 s31, 4"); A("s_cbranch_scc1 L_S")
    SEL = 8; SEL2 = 16; XV = 24; FR = 32; ACC = 40; WQ = 100; UK = 140
    vWQ, vX, vUK, vWO = 2, 3, 5, 6
    A("v_lshrrev_b32 v4, 5, v1"); A("v_and_b32 v44, 31, v1")
    A("s_lshl_b32 s3, s7, 2"); A("s_add_u32 s3, s3, s31"); A("s_mul_i32 s37, s3, 40")
    A(f"v_mul_u32_u24 v{vX}, 20, v4"); A(f"v_lshlrev_b32 v{vWQ}, 12, v{vX}"); A(f"v_lshl_add_u32 v{vWQ}, v44, 4, v{vWQ}")
    A("s_lshl_b32 s36, s37, 12"); A("s_lshl_b32 s38, s27, 8"); A("s_add_u32 s36, s36, s38")
    A("s_mov_b32 s39, 0")
    A("s_waitcnt lgkmcnt(0)")
    g.stamp(1)
    g.srd0(40, 8, 1280)
    g.srd(44, 12, "s36", 5242880)
    A(f"buffer_load_dwordx4 v[{XV}:{XV+3}], v{vX}, s[40:43], s37 offen"); g.vmi("x")
    A(f"buffer_load_dword v{XV+4}, v{vX}, s[40:43], s37 offen offset:16"); g.vmi("x")
    def ld_wq(n):
        A(f"buffer_load_dwordx4 v[{WQ+4*n}:{WQ+4*n+3}], v{vWQ}, s[44:47], s39 offen {o.ldq}"); g.vmi(("wq", n))
        if n < 9: A("s_add_u32 s39, s39, 8192")
    for n in range(o.tw): ld_wq(n)
    g.selectors(SEL, 46, SEL2)
    A("s_mov_b32 s40, s24"); A("s_mov_b32 s41, s25"); A(f"s_mov_b32 s42, {WS_END}")
    A("v_lshlrev_b32 v30, 9, v4"); A("v_and_b32 v46, 15, v1"); A("v_lshl_add_u32 v30, v46, 5, v30"); A("v_and_b32 v47, 16, v1"); A("v_add_u32 v30, v30, v47")
    A("s_lshl_b32 s3, s31, 10"); A(f"s_add_u32 s3, s3, {L_QP}"); A("v_add_u32 v30, s3, v30")
    A("s_lshl_b32 s3, s31, 8"); A(f"s_add_u32 s3, s3, {L_QP}"); A("v_lshl_add_u32 v31, v1, 3, s3")
    A("s_lshr_b32 s62, s26, 1"); A("s_lshl_b32 s62, s62, 3"); A("s_add_u32 s62, s62, s7"); A("s_lshl_b32 s62, s62, 2"); A("s_add_u32 s62, s62, s31")
    A("s_lshl_b32 s62, s62, 9"); A(f"s_add_u32 s62, s62, {QQ}")
    A(f"v_mov_b32 v29, {L_NON}")
    A("s_lshl_b32 s3, s28, 1"); A("s_add_u32 s3, s3, s29"); A("s_lshl_b32 s3, s3, 2"); A("s_add_u32 s3, s3, s31"); A("s_mul_i32 s63, s3, 20480")
    g.srd(56, 18, "s63", 5242880)
    A(f"v_lshrrev_b32 v47, 4, v1"); A(f"v_mul_u32_u24 v{vWO}, 5120, v47"); A(f"v_lshl_add_u32 v{vWO}, v46, 4, v{vWO}")
    A("s_cmp_eq_u32 s30, 0"); A("s_cbranch_scc1 L_PU")
    vm_save = list(g.vm)
    def q_part(nxt, depth):
        todo = list(range(o.tw, 10))
        def step():
            if todo: ld_wq(todo.pop(0))
            else: nxt()
        g.vmwait("x")
        g.frag(FR, XV, 0, SEL2)
        for n in range(10):
            g.vmwait(("wq", n))
            while len(g.vm) < depth: step()
            if n < 9: g.frag(FR + 4 * ((n + 1) & 1), XV + ((n + 1) >> 1), (n + 1) & 1, SEL2)
            g.mfma(ACC, FR + 4 * (n & 1), WQ + 4 * n, n == 0)
        A(f"ds_write_b128 v30, v[{ACC}:{ACC+3}]")
        A("s_waitcnt lgkmcnt(0)")
        g.stamp(2)
        A("s_barrier")
        g.stamp(3)
        for w in range(4): A(f"ds_read_b64 v[{32+2*w}:{33+2*w}], v31 offset:{1024*w}")
        A("ds_read_b64 v[42:43], v29")
        g.vmlimit(depth - 1); nxt()
        A("s_waitcnt lgkmcnt(0)")
        for r in range(2): A(f"v_add_f32 v{32+r}, v{32+r}, v{34+r}")
        for r in range(2): A(f"v_add_f32 v{36+r}, v{36+r}, v{38+r}")
        for r in range(2): A(f"v_add_f32 v{40+r}, v{32+r}, v{36+r}")
        A("s_mov_b32 exec_hi, 0")
        A(f"buffer_store_dwordx4 v[40:43], v{vL16}, s[40:43], s62 offen sc1"); g.vmi("qq")
        A("s_mov_b32 exec_hi, -1")
    A("s_lshl_b32 s3, s28, 17")
    g.srd(52, 10, "s3", 4194304)
    A("s_lshl_b32 s64, s29, 2"); A("s_add_u32 s64, s64, s31"); A("s_xor_b32 s65, s64, 4"); A("s_lshl_b32 s64, s64, 14"); A("s_lshl_b32 s65, s65, 14")
    A(f"s_mul_i32 s66, s31, {32*PITCH}")
    kp = [0]
    hu = list(range(15, 15 - o.hu, -1))
    if o.hu:
        A("s_lshr_b32 s3, s7, 1"); A("s_lshl_b32 s3, s3, 2"); A("s_add_u32 s3, s3, s31"); A("s_lshl_b32 s3, s3, 18"); A("s_add_u32 s3, s3, s38")
        g.srd(48, 14, "s3", 4194304)
        A(f"v_lshlrev_b32 v{vUK}, 17, v4"); A(f"v_lshl_add_u32 v{vUK}, v44, 4, v{vUK}")
    def nxt_kv():
        if hu:
            A(f"s_mov_b32 s67, {8192*hu.pop(0)}")
            A(f"buffer_load_dwordx4 v[140:143], v{vUK}, s[48:51], s67 offen"); g.vmi("hu")
            return
        k = kp[0]
        if k >= 32: return
        kp[0] += 1
        so = "s64" if k < 16 else "s65"
        A("s_mov_b32 m0, s66"); A(f"s_add_u32 s66, s66, {PITCH}")
        A(f"buffer_load_dwordx4 v{vL16}, s[52:55], {so} offen {o.ldkv if k < 16 else o.ldkv2} lds"); g.vmi("kv")
        A(f"s_add_u32 {so}, {so}, 1024")
    q_part(nxt_kv, o.tk)
    vK = 21; vQ = 22; vT0 = 23; vT1 = 24; vB = 26
    GA = 28; QR = 48; SA = 112; PF = 92; KF = 128; OA = 48; PK = 28
    A("v_mov_b32 v16, v42"); A("v_mov_b32 v17, v43")
    A("v_and_b32 v46, 15, v1"); A("v_lshrrev_b32 v47, 4, v1")
    A(f"v_mul_u32_u24 v{vQ}, {PITCH}, v46"); A(f"v_lshl_add_u32 v{vQ}, v47, 4, v{vQ}")
    A(f"s_mul_i32 s3, s31, {32*PITCH}"); A(f"v_add_u32 v{vK}, s3, v{vQ}"); A(f"v_add_u32 v{vQ}, {L_QI}, v{vQ}")
    def st_ob_addr(hi):
        A("s_lshl_b32 s68, s31, 1")
        if hi: A("s_add_u32 s68, s68, 1")
        A("s_lshl_b32 s60, s4, 1"); A("s_add_u32 s60, s60, s29")
        A("s_lshl_b32 s61, s60, 5"); A("s_add_u32 s61, s61, s28"); A("s_lshl_b32 s61, s61, 8"); A(f"s_add_u32 s61, s61, {ST}")
        A("s_lshl_b32 s60, s60, 9"); A("s_add_u32 s60, s60, s28"); A("s_lshl_b32 s60, s60, 3"); A("s_add_u32 s60, s60, s68"); A("s_lshl_b32 s60, s60, 7"); A(f"s_add_u32 s60, s60, {OB}")
    def pv_addr():
        A("v_and_b32 v46, 15, v1")
        A("v_lshrrev_b32 v44, 2, v1"); A(f"v_mul_u32_u24 v{vT0}, {PITCH}, v44"); A("v_and_b32 v44, 3, v1"); A(f"v_lshl_add_u32 v{vT0}, v44, 3, v{vT0}")
        A("s_lshl_b32 s3, s68, 7"); A(f"v_add_u32 v{vT0}, s3, v{vT0}"); A(f"v_add_u32 v{vT1}, {64*PITCH}, v{vT0}")
        A(f"v_lshlrev_b32 v{vB}, 15, v46"); A("v_and_b32 v44, 16, v1"); A(f"v_lshl_add_u32 v{vB}, v44, 1, v{vB}")
        A("v_lshrrev_b32 v44, 5, v1"); A(f"v_lshl_add_u32 v{vB}, v44, 4, v{vB}")
        A(f"v_add_u32 v27, {L_MX}, v{vL16}"); A(f"v_add_u32 v20, {L_P}, v{vL16}")
    st_ob_addr(0); pv_addr()
    A("s_lshl_b32 s3, s31, 2"); A("v_add_u32 v25, s3, v27")
    A("s_lshl_b32 s3, s31, 10"); A("v_add_u32 v19, s3, v20")
    while kp[0] < 32:
        g.vmlimit((o.tk if kp[0] < 16 else o.tk2) - 1); nxt_kv()
    A("s_barrier")
    g.stamp(5)
    A("s_waitcnt vmcnt(0)"); g.vm = []
    g.stamp(6)
    for kk in range(16):
        for t in range(2):
            d = KF + 4 * (2 * kk + t)
            A(f"ds_read_b128 v[{d}:{d+3}], v{vK} offset:{16*t*PITCH + 64*kk}")
    hl = [("o", 19 - i // 2) if i % 2 == 0 else ("v", 15 - i // 2) for i in range(o.hlp)]
    def helpn(n):
        for _ in range(n):
            if not hl: return
            k, i = hl.pop(0)
            if k == "o":
                A(f"s_movk_i32 s64, {1280*(i//5)}")
                A(f"buffer_load_dwordx4 v[124:127], v{vWO}, s[56:59], s64 offen offset:{256*(i%5)}")
            else:
                A(f"s_mov_b32 s64, {8192*i}")
                A(f"buffer_load_dwordx4 v[124:127], v9, s[44:47], s64 offen")
    if o.hlp:
        A("s_lshl_b32 s3, s31, 20"); A("s_lshl_b32 s36, s28, 8"); A("s_add_u32 s3, s3, s36"); A("s_lshl_b32 s36, s29, 7"); A("s_add_u32 s3, s3, s36")
        g.srd(44, 16, "s3", 4194304)
        A("v_lshrrev_b32 v9, 3, v1"); A("v_lshlrev_b32 v9, 17, v9"); A("v_and_b32 v8, 7, v1"); A("v_lshl_add_u32 v9, v8, 4, v9")
        helpn(o.hd)
    A("s_barrier")
    g.stamp(7); g.fine(0)
    vfr = [(ct, ks) for ct in range(4) for ks in range(4)]
    lg = []
    def lgw(tag):
        if tag not in lg: return
        k = len(lg) - 1 - max(i for i, t in enumerate(lg) if t == tag)
        A(f"s_waitcnt lgkmcnt({min(k,15)})"); del lg[:len(lg) - min(k, 15)]
    vi = [0]
    def rdv():
        idx = vi[0]
        if idx >= 16: return
        vi[0] += 1
        ct, ks = vfr[idx]; d = KF + 4 * idx
        base = vT0 if ks < 2 else vT1
        for hf in range(2):
            A(f"ds_read_b64_tr_b16 v[{d+2*hf}:{d+2*hf+1}], v{base} offset:{(32*(ks&1)+16*hf)*PITCH + 32*ct}"); lg.append(("v", idx))
    def rdq(kk):
        A(f"ds_read_b128 v[{QR+4*kk}:{QR+4*kk+3}], v{vQ} offset:{64*kk}"); lg.append(("q", kk))
    for kk in range(6): rdq(kk)
    for kk in range(16):
        lgw(("q", kk))
        for t in range(2): g.mfma(SA + 4 * t, KF + 4 * (2 * kk + t), QR + 4 * kk, kk == 0)
        if kk == 0: g.fine(1)
        if kk == 7: g.fine(2)
        if kk == 15: g.fine(3)
        if kk % 2 == 1 and kk // 2 < o.hs: helpn(1)
        if kk + 6 < 16: rdq(kk + 6)
        if 1 <= kk <= o.nvs: rdv()
    A(f"s_mov_b32 s3, {SCALE}")
    A(f"v_max3_f32 v46, v{SA}, v{SA+1}, v{SA+2}"); A(f"v_max3_f32 v47, v{SA+4}, v{SA+5}, v{SA+6}")
    A(f"v_max3_f32 v46, v46, v{SA+3}, v{SA+7}"); A("v_max_f32 v46, v46, v47")
    g.xred("v_max_f32", 46, 47)
    A("ds_write_b32 v25, v46")
    g.fine(4)
    A("s_waitcnt lgkmcnt(0)"); lg.clear()
    A("s_barrier")
    g.fine(5)
    A(f"ds_read_b128 v[{GA}:{GA+3}], v27"); lg.append("mx")
    for _ in range(o.nvm): rdv()
    lgw("mx")
    A(f"v_max3_f32 v46, v{GA}, v{GA+1}, v{GA+2}"); A(f"v_max_f32 v46, v46, v{GA+3}")
    A(f"v_mul_f32 v44, s3, v46")
    for r in range(8): A(f"v_fma_f32 v{SA+r}, v{SA+r}, s3, -v44")
    for r in range(8): A(f"v_exp_f32 v{SA+r}, v{SA+r}")
    for k in range(4): A(f"v_cvt_pk_bf16_f32 v{GA+k}, v{SA+2*k}, v{SA+2*k+1}")
    A(f"ds_write_b128 v19, v[{GA}:{GA+3}]")
    for k in range(4): A(f"v_add_f32 v{SA+k}, v{SA+k}, v{SA+4+k}")
    A(f"v_add_f32 v{SA}, v{SA}, v{SA+1}"); A(f"v_add_f32 v{SA+2}, v{SA+2}, v{SA+3}"); A(f"v_add_f32 v{SA}, v{SA}, v{SA+2}")
    A(f"ds_write_b32 v25, v{SA} offset:{L_LS - L_MX}")
    g.fine(6)
    A("s_waitcnt lgkmcnt(0)"); lg.clear()
    A("s_barrier")
    g.stamp(8); g.fine(7)
    def pv(fine):
        for w in range(4): A(f"ds_read_b128 v[{PF+4*w}:{PF+4*w+3}], v20 offset:{1024*w}"); lg.append(("p", w))
        if fine: A(f"ds_read_b128 v[{SA}:{SA+3}], v27 offset:{L_LS - L_MX}"); lg.append("ls")
        def pack(ct):
            a = OA + 4 * ct
            A(f"v_cvt_pk_bf16_f32 v{PK+2*ct}, v{a}, v{a+1}"); A(f"v_cvt_pk_bf16_f32 v{PK+2*ct+1}, v{a+2}, v{a+3}")
        def ship(p):
            b = PK + 4 * p
            A(f"v_permlane16_swap_b32 v{b}, v{b+2}"); A(f"v_permlane16_swap_b32 v{b+1}, v{b+3}")
            A(f"buffer_store_dwordx4 v[{b}:{b+3}], v{vB}, s[40:43], s60 offen offset:{64*p} {o.stb}")
        for ct in range(4):
            for ks in range(4):
                lgw(("p", ks)); lgw(("v", 4 * ct + ks))
                g.mfma(OA + 4 * ct, KF + 4 * (4 * ct + ks), PF + 4 * ks, ks == 0)
                if fine and ct == 0 and ks == 0: g.fine(8)
                if fine and ct == 3 and ks == 3: g.fine(9)
                if fine and ct == 1 and ks == 0:
                    lgw("ls")
                    A(f"v_add_f32 v45, v{SA}, v{SA+1}"); A(f"v_add_f32 v46, v{SA+2}, v{SA+3}"); A("v_add_f32 v45, v45, v46")
                if fine and ct == 1 and ks == 2: g.xred("v_add_f32", 45, 46); A("v_mov_b32 v46, v16"); A("v_mov_b32 v47, v17")
                if ct == 2 and ks == 1: pack(0)
                if ct == 2 and ks == 3: pack(1)
                if ct == 3 and ks == 1: ship(0)
                if ct == 3 and ks == 3: pack(2)
        pack(3); ship(1)
        A("s_barrier")
        if fine:
            A("s_cmp_lg_u32 s31, 0"); A("s_cbranch_scc1 L_T_nost")
            A("s_mov_b64 exec, 0xffff")
            A(f"buffer_store_dwordx4 v[44:47], v{vL16}, s[40:43], s61 offen sc1")
            A("s_mov_b64 exec, -1")
            A("L_T_nost:")
    while vi[0] < 16: rdv()
    pv(True)
    g.stamp(9); g.fine(10)
    if o.stamps == 1 and not o.hlp: A("s_waitcnt vmcnt(0)"); g.stamp(4)
    helpn(99)
    A("s_cmp_lg_u32 s31, 0"); A("s_cbranch_scc1 L_fin")
    A("s_cmp_ge_u32 s6, 20"); A("s_cbranch_scc1 L_fin")
    A("s_mul_i32 s3, s5, 10"); A("s_lshr_b32 s52, s6, 1"); A("s_add_u32 s3, s3, s52")
    A("v_lshrrev_b32 v46, 3, v1"); A(f"v_mul_u32_u24 v25, 5120, v46"); A("v_and_b32 v46, 7, v1"); A(f"v_lshl_add_u32 v25, v46, 4, v25")
    A(f"s_mul_i32 s52, s4, {64*5120}"); A("s_lshl_b32 s53, s3, 7"); A("s_add_u32 s52, s52, s53"); A(f"s_add_u32 s52, s52, {OC}")
    for n in range(1, 8): A(f"s_add_u32 s{52+n}, s{51+n}, {8*5120}")
    A("s_mul_i32 s61, s4, 1280"); A("s_lshl_b32 s3, s3, 5"); A("s_add_u32 s61, s61, s3")
    g.srd0(44, 20, 2560)
    g.srd0(48, 22, 256)
    A("s_lshl_b32 s67, s4, 5"); A("v_mov_b32 v26, 0"); A("v_lshlrev_b32 v27, 2, v1")
    A("s_mov_b32 s33, 0x40000")
    A("L_R_non:")
    A("buffer_load_dwordx4 v[28:31], v26, s[48:51], s67 offen sc1"); A("buffer_load_dwordx4 v[32:35], v26, s[48:51], s67 offen offset:16 sc1")
    A("s_waitcnt vmcnt(0)")
    A("v_min_u32 v46, v28, v30"); A("v_min3_u32 v46, v46, v32, v34"); A("v_cmp_eq_u32 vcc, 0, v46")
    A("s_cbranch_vccz L_R_non_ok")
    g.retry("L_R_non", 8)
    A("L_R_non_ok:")
    g.sleep(o.sleepc0)
    GC = 52
    A("s_mov_b32 s33, 0x40000")
    A("L_T_gc:")
    for n in range(8): A(f"buffer_load_dwordx4 v[{GC+4*n}:{GC+4*n+3}], v25, s[40:43], s{52+n} offen sc1")
    for n in range(8):
        A(f"s_waitcnt vmcnt({7-n})")
        d = "vcc" if n == 0 else "s[62:63]"
        A(f"v_cmp_ne_u64 {d}, v[{GC+4*n+2}:{GC+4*n+3}], v[{28+2*(n>>1)}:{29+2*(n>>1)}]")
        if n & 1:
            for r in range(2): A(f"v_add_f32 v{GC+4*n+r}, v{GC+4*n+r}, v{GC+4*n-4+r}")
        if n: A("s_or_b64 vcc, vcc, s[62:63]")
    A("s_cbranch_vccz L_T_gc_ok")
    g.retry("L_T_gc", o.sleepc)
    A("L_T_gc_ok:")
    g.stamp(10)
    for r in range(2): A(f"v_add_f32 v{GC+r}, v{GC+4+r}, v{GC+12+r}")
    for r in range(2): A(f"v_add_f32 v{GC+4+r}, v{GC+20+r}, v{GC+28+r}")
    for r in range(2): A(f"v_add_f32 v{GC+r}, v{GC+r}, v{GC+4+r}")
    for r in range(2): A(f"v_add_f32_dpp v{GC+r}, v{GC+r}, v{GC+r} row_ror:8 row_mask:0xf bank_mask:0xf")
    for sw in ("16", "32"):
        for r in range(2): A(f"v_mov_b32 v{GC+4+r}, v{GC+r}")
        for r in range(2): A(f"v_permlane{sw}_swap_b32 v{GC+r}, v{GC+4+r}")
        for r in range(2): A(f"v_add_f32 v{GC+r}, v{GC+r}, v{GC+4+r}")
    A(f"v_cvt_pk_bf16_f32 v{GC}, v{GC}, v{GC+1}")
    A("s_mov_b64 exec, 0xff")
    A(f"buffer_store_dword v{GC}, v27, s[44:47], s61 offen")
    if o.stamps: A("s_waitcnt vmcnt(0)"); g.stamp(11)
    A("L_fin:")
    g.fin()
    A("L_PU:")
    g.vm = list(vm_save)
    A("s_lshr_b32 s3, s7, 1"); A("s_lshl_b32 s3, s3, 2"); A("s_add_u32 s65, s3, s31")
    A("s_lshl_b32 s3, s65, 18"); A("s_add_u32 s3, s3, s38")
    g.srd(48, 14, "s3", 4194304)
    A(f"v_lshlrev_b32 v{vUK}, 17, v4"); A(f"v_lshl_add_u32 v{vUK}, v44, 4, v{vUK}")
    A("s_mov_b32 s66, 0")
    useq = [("uk", n) for n in range(16)] + [("wo", i) for i in range(20)]
    up = [0]
    def wo_reg(i): return 100 + 4 * i if i < 10 else 204 + 4 * (i - 10)
    def nxt_u():
        if up[0] >= len(useq): return
        k, n = useq[up[0]]; up[0] += 1
        if k == "uk":
            A(f"buffer_load_dwordx4 v[{UK+4*n}:{UK+4*n+3}], v{vUK}, s[48:51], s66 offen {o.lduk}")
            if n < 15: A("s_add_u32 s66, s66, 8192")
        else:
            if n % 5 == 0: A(f"s_movk_i32 s64, {1280*(n//5)}")
            d = wo_reg(n)
            A(f"buffer_load_dwordx4 v[{d}:{d+3}], v{vWO}, s[56:59], s64 offen offset:{256*(n%5)} {o.ldo}")
        g.vmi((k, n))
    q_part(nxt_u, o.tu)
    A("v_mov_b32 v26, v42"); A("v_mov_b32 v27, v43"); A("v_mov_b32 v30, v42"); A("v_mov_b32 v31, v43")
    A(f"v_lshlrev_b32 v46, 5, v44"); A(f"v_add_u32 v46, {L_QS}, v46")
    A("v_and_b32 v2, 16, v1"); A("v_lshlrev_b32 v2, 7, v2"); A("v_lshl_add_u32 v2, v4, 6, v2"); A("v_and_b32 v3, 12, v1"); A("v_lshl_add_u32 v2, v3, 2, v2")
    A("s_and_b32 s62, s26, 62"); A("s_lshl_b32 s62, s62, 4"); A("s_add_u32 s62, s62, s65"); A("s_lshl_b32 s62, s62, 7")
    while up[0] < 16 - o.uearly:
        g.vmlimit(o.tu - 1); nxt_u()
    A("s_barrier")
    while up[0] < 16 + o.npre:
        g.vmlimit(o.tu - 1); nxt_u()
    A("s_barrier")
    QP = 56; PP = 60
    for w in range(4):
        A(f"ds_read_b128 v[{60+8*w}:{63+8*w}], v46 offset:{1024*w}"); A(f"ds_read_b128 v[{64+8*w}:{67+8*w}], v46 offset:{1024*w+16}")
    A("s_waitcnt lgkmcnt(0)")
    for k in range(8): A(f"v_add_f32 v{60+k}, v{60+k}, v{68+k}")
    for k in range(8): A(f"v_add_f32 v{76+k}, v{76+k}, v{84+k}")
    for k in range(8): A(f"v_add_f32 v{48+k}, v{60+k}, v{76+k}")
    for k in range(4): A(f"v_cvt_pk_bf16_f32 v{QP+k}, v{48+2*k}, v{49+2*k}")
    for n0 in (0, 8):
        g.vmwait(("uk", n0 + 7))
        for k in range(4):
            for n in range(n0, n0 + 8):
                if k == 0: A(f"v_dot2_f32_bf16 v{PP+n}, v{UK+4*n}, v{QP}, 0")
                else: A(f"v_dot2c_f32_bf16 v{PP+n}, v{UK+4*n+k}, v{QP+k}")
        if n0 == 0:
            for n in range(8): A(f"v_add_f32_dpp v{PP+n}, v{PP+n}, v{PP+n} row_ror:8 row_mask:0xf bank_mask:0x3")
    for n in range(8): A(f"v_add_f32_dpp v{PP+n}, v{PP+n+8}, v{PP+n+8} row_ror:8 row_mask:0xf bank_mask:0xc")
    for n in range(4): A(f"v_add_f32_dpp v{PP+n}, v{PP+n}, v{PP+n} row_half_mirror row_mask:0xf bank_mask:0x5")
    for n in range(4): A(f"v_add_f32_dpp v{PP+n}, v{PP+n+4}, v{PP+n+4} row_half_mirror row_mask:0xf bank_mask:0xa")
    for n in range(4): A(f"v_add_f32_dpp v{PP+n}, v{PP+n}, v{PP+n} quad_perm:[2,3,0,1] row_mask:0xf bank_mask:0xf")
    for n in range(4): A(f"v_add_f32_dpp v{PP+n}, v{PP+n}, v{PP+n} quad_perm:[1,0,3,2] row_mask:0xf bank_mask:0xf")
    A(f"v_cvt_pk_bf16_f32 v24, v{PP}, v{PP+1}"); A(f"v_cvt_pk_bf16_f32 v25, v{PP+2}, v{PP+3}")
    A("s_mov_b32 exec_lo, 0x11111111"); A("s_mov_b32 exec_hi, 0x11111111")
    A(f"buffer_store_dwordx4 v[24:27], v2, s[40:43], s62 offen sc1"); g.vmi("qa")
    A("s_mov_b64 exec, -1")
    g.stamp(4)
    A("v_lshrrev_b32 v47, 4, v1"); A("s_lshl_b32 s3, s31, 6"); A("v_lshl_add_u32 v44, v47, 4, s3"); A(f"v_add_u32 v44, {L_CX}, v44")
    A("v_and_b32 v47, 15, v1"); A("v_and_b32 v46, 16, v1"); A("v_lshl_add_u32 v46, v47, 5, v46"); A("s_mul_i32 s3, s31, 2560"); A(f"v_add_u32 v46, s3, v46")
    A("s_mul_i32 s3, s31, 640"); A(f"v_add_u32 v47, s3, v{vL16}"); A("v_lshlrev_b32 v45, 1, v47")
    A("s_lshl_b32 s62, s26, 1"); A("s_add_u32 s62, s62, s29"); A("s_mul_i32 s62, s62, 5120"); A(f"s_add_u32 s62, s62, {OC}")
    g.sleep(o.du)
    while up[0] < len(useq):
        if o.ubar and up[0] == len(useq) - o.ubar + 1: A("s_barrier")
        g.vmlimit((o.to if up[0] < 16 + o.nto else o.to2) - 1); nxt_u()
    if o.ubar == 1: A("s_barrier")
    g.stamp(5)
    A("s_barrier")
    A("s_barrier")
    g.stamp(7); g.fine(0)
    OA7 = 60; F7 = 80
    for w in range(4): A(f"ds_read_b128 v[{80+4*w}:{83+4*w}], v44 offset:{256*w}")
    A("s_waitcnt lgkmcnt(0)")
    for k in range(4): A(f"v_add_f32 v{80+k}, v{80+k}, v{84+k}")
    for k in range(4): A(f"v_add_f32 v{88+k}, v{88+k}, v{92+k}")
    for k in range(4): A(f"v_add_f32 v{48+k}, v{80+k}, v{88+k}")
    for k in range(2): A(f"v_cvt_pk_bf16_f32 v{QP+k}, v{48+2*k}, v{49+2*k}")
    g.fine(1)
    g.frag(F7, QP, 0, SEL)
    for k in range(4):
        for cb in range(5):
            g.vmwait(("wo", 5 * k + cb))
            g.mfma(OA7 + 4 * cb, F7 + 4 * k, wo_reg(5 * k + cb), k == 0)
            if cb == 0 and k < 3: g.frag(F7 + 4 * (k + 1), QP + ((k + 1) >> 1), (k + 1) & 1, SEL)
    g.stamp(8); g.fine(2)
    A("s_mov_b32 exec_hi, 0")
    for cb in range(5): A(f"ds_write_b128 v46, v[{OA7+4*cb}:{OA7+4*cb+3}] offset:{L_OUTP+512*cb}")
    A("s_mov_b32 exec_hi, 0xff")
    A("s_waitcnt lgkmcnt(0)")
    A("s_barrier")
    g.fine(3)
    for w in range(4): A(f"ds_read_b128 v[{F7+4*w}:{F7+4*w+3}], v47 offset:{L_OUTP+2560*w}")
    A("s_waitcnt lgkmcnt(2)")
    for r in range(4): A(f"v_add_f32 v{F7+r}, v{F7+r}, v{F7+4+r}")
    A("s_waitcnt lgkmcnt(0)")
    for r in range(4): A(f"v_add_f32 v{F7+8+r}, v{F7+8+r}, v{F7+12+r}")
    for r in range(4): A(f"v_add_f32 v{24+(r&1)+4*(r>>1)}, v{F7+r}, v{F7+8+r}")
    A(f"buffer_store_dwordx4 v[24:27], v45, s[40:43], s62 offen sc1")
    A(f"buffer_store_dwordx4 v[28:31], v45, s[40:43], s62 offen offset:16 sc1")
    g.stamp(9); g.fine(4)
    if o.stamps: A("s_waitcnt vmcnt(0)"); g.stamp(10); g.fine(5)
    g.fin()
    g.vm = []
    A("L_S:")
    A("s_sub_u32 s31, s31, 4")
    SEN = 16; vA = 25; vB = 26
    for r in range(4): A(f"v_mov_b32 v{SEN+r}, -1")
    A("v_mov_b32 v44, 0"); A(f"v_mov_b32 v39, {L_NON}")
    A("s_lshl_b32 s67, s4, 5")
    A("s_waitcnt lgkmcnt(0)")
    g.stamp(1)
    g.srd0(40, 24, WS_END)
    g.srd0(48, 22, 256)
    A("s_cmp_lg_u32 s31, 0"); A("s_cbranch_scc1 L_S_w123")
    A("s_and_b32 s52, s2, 7"); A("s_lshl_b32 s52, s52, 3")
    A("s_cmp_lg_u32 s6, 0"); A("s_cbranch_scc1 L_S_nolead")
    A("s_memrealtime s[54:55]"); A("v_lshlrev_b32 v45, 6, v1"); A("s_waitcnt lgkmcnt(0)"); A("s_or_b32 s54, s54, 1")
    A("v_mov_b32 v46, s54"); A("v_mov_b32 v47, s55")
    A("s_mov_b64 exec, 15")
    A("buffer_store_dwordx2 v[46:47], v45, s[48:51], s52 offen sc1")
    A("s_mov_b64 exec, -1")
    A("s_branch L_S_np_ok")
    A("L_S_nolead:")
    g.sleep(o.dn)
    g.nonce("S_np", "s52")
    A("v_mov_b32 v46, s54"); A("v_mov_b32 v47, s55")
    A("ds_write_b64 v39, v[46:47]")
    A("s_waitcnt lgkmcnt(0)")
    g.stamp(2)
    A("L_S_w123:")
    if o.pf:
        A("s_cmp_lg_u32 s31, 2"); A("s_cbranch_scc1 L_S_npf")
        A("s_getpc_b64 s[34:35]")
        A("L_pc:")
        A(f"s_sub_u32 s34, s34, L_pc-{NAME}_kernel"); A("s_subb_u32 s35, s35, 0")
        A(f"s_and_b32 s3, s6, {o.pf-1}"); A("s_lshl_b32 s3, s3, 10"); A(f"v_add_u32 v46, s3, v{vL16}")
        A(f"global_load_dwordx4 v[200:203], v46, s[34:35]")
        A("L_S_npf:")
    A("s_cmp_eq_u32 s30, 0"); A("s_cbranch_scc1 L_SU")
    vB = 26
    st_ob_addr(0)
    A("v_lshrrev_b32 v38, 4, v1"); A("v_lshlrev_b32 v38, 15, v38"); A("v_and_b32 v37, 15, v1"); A("v_lshl_add_u32 v38, v37, 4, v38")
    A("s_barrier")
    g.stamp(3)
    g.sleep(o.dinv)
    for n in range(4):
        A(f"buffer_store_dwordx4 v[{SEN}:{SEN+3}], v38, s[40:43], s60 offen sc1")
        if n < 3: A("s_add_u32 s60, s60, 131072")
    st_ob_addr(1); pv_addr()
    A("s_waitcnt vmcnt(0)")
    A("s_lshl_b32 s52, s29, 1"); A("s_lshr_b32 s3, s31, 1"); A("s_add_u32 s52, s52, s3"); A("s_lshl_b32 s52, s52, 3"); A("s_add_u32 s52, s52, s67")
    g.nonce("T_np", "s52", 3)
    g.stamp(4)
    A("s_lshl_b32 s52, s4, 1"); A("s_add_u32 s52, s52, s29"); A("s_lshl_b32 s52, s52, 2"); A("s_add_u32 s52, s52, s31"); A("s_lshl_b32 s52, s52, 13"); A("s_add_u32 s53, s52, 4096")
    A(f"s_mul_i32 s3, s31, {4*PITCH}"); A(f"s_add_u32 s3, s3, {L_QI}"); A(f"v_lshl_add_u32 v{vA}, v1, 3, s3")
    hs = [0]
    def helps(n):
        for _ in range(n):
            i = hs[0]
            if i >= o.hsv: return
            hs[0] += 1
            if i % 2 == 0:
                k = 19 - i // 2
                A(f"s_movk_i32 s63, {1280*(k//5)}"); A(f"buffer_load_dwordx4 v[124:127], v6, s[56:59], s63 offen offset:{256*(k%5)}")
            else:
                A(f"s_mov_b32 s63, {8192*(15 - i // 2)}"); A(f"buffer_load_dwordx4 v[124:127], v9, s[44:47], s63 offen")
    if o.hsv:
        A("s_lshl_b32 s3, s28, 1"); A("s_add_u32 s3, s3, s29"); A("s_lshl_b32 s3, s3, 2"); A("s_add_u32 s3, s3, s31"); A("s_mul_i32 s63, s3, 20480")
        g.srd(56, 18, "s63", 5242880)
        A("s_lshl_b32 s3, s31, 20"); A("s_lshl_b32 s36, s28, 8"); A("s_add_u32 s3, s3, s36"); A("s_lshl_b32 s36, s29, 7"); A("s_add_u32 s3, s3, s36")
        g.srd(44, 16, "s3", 4194304)
        A("v_lshrrev_b32 v9, 3, v1"); A("v_lshlrev_b32 v9, 17, v9"); A("v_and_b32 v8, 7, v1"); A("v_lshl_add_u32 v9, v8, 4, v9")
        A("v_lshrrev_b32 v47, 4, v1"); A("v_mul_u32_u24 v6, 5120, v47"); A("v_and_b32 v46, 15, v1"); A("v_lshl_add_u32 v6, v46, 4, v6")
    if o.k3:
        A("s_lshr_b32 s3, s6, 4"); A("s_lshl_b32 s3, s3, 10"); A("s_lshl_b32 s36, s5, 11"); A("s_add_u32 s3, s3, s36"); A("s_add_u32 s3, s3, 384")
        A("s_lshl_b32 s36, s31, 20"); A("s_add_u32 s3, s3, s36")
        g.srd(64, 16, "s3", 4194304)
        A("s_bfe_u32 s3, s6, 0x30001"); A("s_sub_u32 s69, 15, s3"); A("s_lshl_b32 s69, s69, 13")
        A("v_lshrrev_b32 v10, 3, v1"); A("v_lshlrev_b32 v10, 17, v10"); A("v_and_b32 v8, 7, v1"); A("v_lshl_add_u32 v10, v8, 4, v10")
    def k3():
        for n in range(o.k3):
            A("buffer_load_dwordx4 v[124:127], v10, s[64:67], s69 offen")
            if n == 0 and o.k3 > 1: A("s_sub_u32 s69, s69, 65536")
    if o.k3 and o.k3e: k3()
    A("s_barrier")
    GA = 48
    A("v_and_b32 v37, 15, v1"); A("v_lshlrev_b32 v37, 7, v37"); A("v_and_b32 v36, 16, v1"); A("v_lshl_add_u32 v37, v36, 8, v37")
    g.sleep(o.da)
    A("s_mov_b32 s33, 0x40000")
    A("L_T_ga:")
    for n in range(8): A(f"buffer_load_dwordx4 v[{GA+4*n}:{GA+4*n+3}], v{vL16}, s[40:43], s{52+(n>>2)} offen offset:{1024*(n&3)} sc1")
    for n in range(8):
        A(f"s_waitcnt vmcnt({7-n})")
        A(f"ds_write_b64 v{vA}, v[{GA+4*n}:{GA+4*n+1}] offset:{(n>>1)*PITCH + 512*(n&1)}")
        d = "vcc" if n == 0 else "s[70:71]"
        A(f"v_cmp_ne_u64 {d}, s[54:55], v[{GA+4*n+2}:{GA+4*n+3}]")
        if n: A("s_or_b64 vcc, vcc, s[70:71]")
    A("s_cbranch_vccz L_T_ga_ok")
    if o.h1: helps(o.h1)
    A("L_T_ha:")
    A(f"s_sleep {o.sleepa}")
    A("buffer_load_dwordx2 v[48:49], v37, s[40:43], s52 offen offset:8 sc1")
    A("s_waitcnt vmcnt(0)")
    A("s_sub_u32 s33, s33, 1"); A("s_cbranch_scc1 L_T_ga_ok")
    A("v_cmp_ne_u64 vcc, s[54:55], v[48:49]"); A("s_cbranch_vccnz L_T_ha")
    A("s_branch L_T_ga")
    A("L_T_ga_ok:")
    g.stamp(5)
    A("s_waitcnt lgkmcnt(0)")
    g.stamp(6)
    A("s_barrier")
    if o.k3 and not o.k3e: k3()
    lg.clear(); vi[0] = 0
    while vi[0] < 16: rdv()
    if o.hsv: helps(o.h2)
    A("s_barrier")
    A("s_barrier")
    pv(False)
    while hs[0] < o.hsv:
        A(f"s_waitcnt vmcnt({o.hsd2-1})"); helps(1)
    g.fin()
    A("L_SU:")
    UV = 128; SEL = 8
    g.selectors(SEL, 46)
    A("s_lshr_b32 s52, s26, 1"); A("s_lshl_b32 s52, s52, 2"); A("s_add_u32 s52, s52, s31"); A("s_lshl_b32 s52, s52, 12"); A(f"s_add_u32 s52, s52, {QQ}")
    A("s_lshl_b32 s3, s31, 10"); A(f"s_add_u32 s3, s3, {L_QS}"); A("v_lshl_add_u32 v38, v1, 3, s3")
    A("s_barrier")
    g.stamp(3)
    A("ds_read_b64 v[42:43], v39")
    A("s_lshl_b32 s3, s31, 20"); A("s_lshl_b32 s36, s28, 8"); A("s_add_u32 s3, s3, s36"); A("s_lshl_b32 s36, s29, 7"); A("s_add_u32 s3, s3, s36")
    g.srd(44, 16, "s3", 4194304)
    A("v_lshrrev_b32 v5, 3, v1"); A("v_and_b32 v6, 7, v1"); A("v_lshrrev_b32 v4, 4, v1"); A("v_and_b32 v3, 15, v1")
    A("v_lshlrev_b32 v24, 17, v5"); A("v_lshl_add_u32 v24, v6, 4, v24")
    A(f"v_lshlrev_b32 v{vA}, 13, v4"); A(f"v_lshl_add_u32 v{vA}, v3, 4, v{vA}")
    A("v_and_b32 v46, 31, v1"); A(f"v_lshlrev_b32 v{vB}, 8, v46"); A(f"v_lshlrev_b32 v19, 3, v46"); A(f"v_add_u32 v19, {L_EW + 256}, v19")
    A("v_and_b32 v36, 24, v1")
    A("s_lshr_b32 s59, s26, 4"); A("s_lshl_b32 s59, s59, 9"); A("s_and_b32 s3, s28, 15"); A("s_add_u32 s59, s59, s3")
    A("s_lshl_b32 s59, s59, 4"); A(f"s_add_u32 s59, s59, {ST}")
    A("s_lshl_b32 s3, s31, 6"); A(f"s_add_u32 s3, s3, {L_EW}"); A("v_lshl_add_u32 v37, v46, 1, s3"); A("v_lshl_add_u32 v23, v4, 4, s3")
    A("s_lshl_b32 s58, s26, 15"); A("s_lshl_b32 s3, s31, 8"); A("s_add_u32 s58, s58, s3"); A(f"s_add_u32 s58, s58, {OB}"); A("s_add_u32 s60, s58, 4096")
    A("v_and_b32 v46, 16, v1"); A("v_lshl_add_u32 v21, v6, 5, v46"); A(f"s_add_u32 s54, s3, {L_CX}"); A("v_add_u32 v21, s54, v21")
    A(f"s_add_u32 s3, s3, {L_CC}"); A("v_lshlrev_b32 v20, 4, v3"); A("v_lshl_add_u32 v20, v4, 3, v20"); A("v_add_u32 v20, s3, v20"); A("v_lshl_add_u32 v22, v5, 5, s3")
    A("s_barrier")
    g.sleep(o.dq)
    A("s_mov_b32 s33, 0x40000"); A("s_mov_b32 s39, 0")
    def gq():
        for n in range(4): A(f"buffer_load_dwordx4 v[{48+4*n}:{51+4*n}], v{vL16}, s[40:43], s52 offen offset:{1024*n} sc1")
    def ld_uv(n):
        A(f"buffer_load_dwordx4 v[{UV+4*n}:{UV+4*n+3}], v24, s[44:47], s39 offen {o.lduv}"); g.vmi(("uv", n))
        A("s_add_u32 s39, s39, 8192")
    gq()
    for n in range(o.vpre): ld_uv(n)
    A(f"s_waitcnt vmcnt({o.vpre}) lgkmcnt(0)")
    A("s_branch L_U_gq_t")
    A("L_U_gq:")
    gq()
    A("s_waitcnt vmcnt(0)")
    A("L_U_gq_t:")
    for n in range(4):
        d = "vcc" if n == 0 else "s[54:55]"
        A(f"v_cmp_ne_u64 {d}, v[{50+4*n}:{51+4*n}], v[42:43]")
        if n: A("s_or_b64 vcc, vcc, s[54:55]")
    A("s_cbranch_vccz L_U_gq_ok")
    g.retry("L_U_gq", o.sleepa)
    A("L_U_gq_ok:")
    for k in range(2):
        for r in range(2): A(f"v_add_f32 v{48+4*k+r}, v{48+4*k+r}, v{56+4*k+r}")
    A("ds_write_b64 v38, v[48:49]"); A("ds_write_b64 v38, v[52:53] offset:512")
    A("s_waitcnt lgkmcnt(0)")
    g.stamp(10)
    A("s_barrier")
    if o.prew:
        A("s_cmp_lg_u32 s31, 0"); A("s_cbranch_scc1 L_U_noprew")
        A("s_lshl_b32 s62, s26, 1"); A("s_add_u32 s62, s62, s29"); A("s_mul_i32 s62, s62, 5120"); A(f"s_add_u32 s62, s62, {OC}")
        for n in range(4): A(f"buffer_store_dwordx4 v[{SEN}:{SEN+3}], v{vL16}, s[40:43], s62 offen offset:{1024*n} sc1")
        A("s_add_u32 s62, s62, 4096")
        A(f"buffer_store_dwordx4 v[{SEN}:{SEN+3}], v{vL16}, s[40:43], s62 offen sc1")
        A("L_U_noprew:")
    g.sleep(o.dv)
    for n in range(o.vpre, 16):
        g.vmlimit(o.tv - 1); ld_uv(n)
    g.stamp(4)
    if o.ubar: A("s_barrier")
    g.sleep(o.db)
    GB = 48; GS = 80; FC = 192
    g.vm = []
    A("s_cmp_lg_u32 s31, 0"); A("s_cbranch_scc1 L_U_gs_ok")
    A("s_mov_b32 s33, 0x40000")
    A("L_U_gn:")
    A("buffer_load_dwordx2 v[40:41], v36, s[48:51], s67 offen sc1")
    A("s_waitcnt vmcnt(0)")
    A("v_cmp_eq_u32 vcc, 0, v40"); A("s_cbranch_vccz L_U_gn_ok")
    g.retry("L_U_gn", 8)
    A("L_U_gn_ok:")
    A("s_mov_b32 s33, 0x40000")
    A(f"buffer_load_dwordx4 v[84:87], v{vB}, s[40:43], s59 offen sc1")
    A("L_U_gs:")
    if o.sleepb: A(f"s_sleep {o.sleepb}")
    A(f"buffer_load_dwordx4 v[80:83], v{vB}, s[40:43], s59 offen sc1")
    A("s_waitcnt vmcnt(1)")
    A("v_cmp_ne_u64 vcc, v[86:87], v[40:41]"); A("s_cbranch_vccz L_U_gs_b")
    if o.sleepb: A(f"s_sleep {o.sleepb}")
    A(f"buffer_load_dwordx4 v[84:87], v{vB}, s[40:43], s59 offen sc1")
    A("s_waitcnt vmcnt(1)")
    A("v_cmp_ne_u64 vcc, v[82:83], v[40:41]"); A("s_cbranch_vccz L_U_gs_a")
    g.retry("L_U_gs")
    A("L_U_gs_a:")
    A("ds_write_b64 v19, v[80:81]"); A("s_branch L_U_gs_c")
    A("L_U_gs_b:")
    A("ds_write_b64 v19, v[84:85]")
    A("L_U_gs_c:")
    A("s_waitcnt lgkmcnt(0)")
    A("L_U_gs_ok:")
    A("s_barrier")
    g.stamp(9)
    def gB():
        for n in range(8): A(f"buffer_load_dwordx4 v[{GB+4*n}:{GB+4*n+3}], v{vA}, s[40:43], s{58 if n < 4 else 60} offen offset:{1024*(n&3)} sc1")
    gB()
    g.fine(0)
    def wred(op, r, t):
        for c in ("quad_perm:[1,0,3,2]", "quad_perm:[2,3,0,1]", "row_half_mirror", "row_ror:8"):
            A(f"{op}_dpp v{r}, v{r}, v{r} {c} row_mask:0xf bank_mask:0xf")
        A(f"v_mov_b32 v{t}, v{r}"); A(f"v_permlane16_swap_b32 v{r}, v{t}"); A(f"{op} v{r}, v{r}, v{t}")
    A("ds_read_b64 v[88:89], v19")
    A("s_waitcnt lgkmcnt(0)")
    A("v_mov_b32 v44, v88")
    wred("v_max_f32", 44, 45)
    A("v_sub_f32 v88, v88, v44"); A("v_exp_f32 v88, v88")
    A("v_cvt_pk_bf16_f32 v45, v88, v88")
    A("ds_write_b16 v37, v45")
    A("ds_read_b128 v[28:31], v23")
    A("v_mul_f32 v44, v88, v89")
    wred("v_add_f32", 44, 45)
    A("v_rcp_f32 v44, v44")
    A("s_waitcnt lgkmcnt(0)")
    for n in range(8): g.frag(FC + 4 * n, 28 + (n >> 1), n & 1, SEL)
    A("s_mov_b32 s33, 0x40000")
    A("L_U_gb:")
    for n in range(8):
        A(f"s_waitcnt vmcnt({7-n})")
        g.mfma(32, FC + 4 * n, GB + 4 * n, n == 0)
        if n == 0: A(f"v_max3_u32 v43, v{GB}, v{GB+1}, v{GB+2}"); A(f"v_max_u32 v43, v43, v{GB+3}")
        else: A(f"v_max3_u32 v43, v43, v{GB+4*n}, v{GB+4*n+1}"); A(f"v_max3_u32 v43, v43, v{GB+4*n+2}, v{GB+4*n+3}")
    A("v_cmp_eq_u32 vcc, -1, v43")
    A("s_cbranch_vccz L_U_gb_ok")
    gB()
    g.retry("L_U_gb")
    A("L_U_gb_ok:")
    g.stamp(6)
    for k in range(2): A(f"v_cvt_pk_bf16_f32 v{32+k}, v{32+2*k}, v{33+2*k}")
    A("s_mov_b32 exec_hi, 0")
    A("ds_write_b64 v20, v[32:33]")
    A("s_mov_b32 exec_hi, -1")
    for k in range(2): A(f"ds_read_b128 v[{112+4*k}:{115+4*k}], v22 offset:{16*k}")
    A("s_waitcnt lgkmcnt(0)")
    g.stamp(7); g.fine(1)
    g.frag(72, 112, 0, SEL)
    for n in range(16):
        if n < 15: g.frag(72 + 4 * ((n + 1) & 1), 112 + ((n + 1) >> 1), (n + 1) & 1, SEL)
        g.mfma(32, 72 + 4 * (n & 1), UV + 4 * n, n == 0)
    g.fine(2)
    g.fold(32, 88)
    for r in range(4): A(f"v_mul_f32 v{32+r}, v{32+r}, v44")
    A("s_mov_b64 exec, 0x00ff00ff")
    A("ds_write_b128 v21, v[32:35]")
    A("s_mov_b64 exec, -1")
    A("s_waitcnt lgkmcnt(0)")
    g.stamp(8); g.fine(3)
    A("s_barrier")
    g.fine(4)
    if o.stamps:
        A("L_stamps:")
        A("s_mov_b64 exec, 1")
        A("s_waitcnt lgkmcnt(0)")
        A("v_lshrrev_b32 v2, 6, v0"); A("s_lshl_b32 s3, s2, 3"); A("v_add_u32 v2, s3, v2"); A(f"v_mul_u32_u24 v2, {NST*8}, v2")
        A("s_add_u32 s40, s24, 0x8000000"); A("s_addc_u32 s41, s25, 0"); A("s_mov_b32 s42, 0x1000000"); A("s_mov_b32 s43, 0x20000")
        for i in range(NST):
            A(f"v_mov_b32 v4, s{72+2*i}"); A(f"v_mov_b32 v5, s{73+2*i}")
            A(f"buffer_store_dwordx2 v[4:5], v2, s[40:43], 0 offen offset:{8*i}")
            A("s_nop 1")
    A("L_end:")
    A("s_endpgm")
    lines, nn = hz.fix([l for l in g.L if l is not None])
    body = "\n".join(("" if l.endswith(":") else "    ") + l for l in lines)
    txt = (HDR + f"; @launch grid=(256,1,1) block=(512,1,1) lds={L_END}\n"
        ".amdgcn_target \"amdgcn-amd-amdhsa--gfx950\"\n.text\n"
        f".globl {NAME}_kernel\n.p2align 8\n.type {NAME}_kernel,@function\n{NAME}_kernel:\n" + body + "\n"
        + (f".org {NAME}_kernel+{o.pf*1024}, 0\n" if o.pf else "") +
        ".section .rodata,\"a\"\n.p2align 6\n"
        f".amdhsa_kernel {NAME}_kernel\n  .amdhsa_next_free_vgpr 256\n  .amdhsa_next_free_sgpr 96\n"
        "  .amdhsa_accum_offset 256\n  .amdhsa_group_segment_fixed_size 0\n  .amdhsa_kernarg_size 120\n"
        "  .amdhsa_user_sgpr_count 2\n  .amdhsa_user_sgpr_kernarg_segment_ptr 1\n  .amdhsa_system_sgpr_workgroup_id_x 1\n"
        ".end_amdhsa_kernel\n")
    return txt, nn

def parse(argv):
    ap = argparse.ArgumentParser()
    ap.add_argument("-o", default="k4.s")
    for k, d in dict(stamps=0, tw=7, tk=7, tk2=8, tu=7, to=4, tv=4, npre=0, k3=0, k3e=1, h1=0, h1w=0, h2=3, vpre=0, hsv=0, hsd=6, hsd2=6, db=0, ubar=1, nto=12, to2=7, hs=0, hinta=0, da=0, hu=0, uearly=0, dn=14, pf=16, dinv=0, dq=0, du=0, dv=0,
                     sleepa=3, sleepb=1, sleepc0=20, sleepc=2, sleepn=8, sleepf=16, hlp=0, hd=6, prew=1, thr=4, nvs=15, nvm=1).items():
        ap.add_argument("--" + k, type=int, default=d)
    for k in ("ldq", "lduk", "ldkv", "ldkv2", "ldo", "lduv"): ap.add_argument("--" + k, default="")
    ap.add_argument("--stb", default="sc1")
    return ap.parse_args(argv)
if __name__ == "__main__":
    o = parse(sys.argv[1:])
    txt, nn = gen(o)
    open(o.o, "w").write(txt)
    print("written", o.o, "nops inserted", nn)
```

```python
import sys, argparse
sys.path.insert(0, "gen")
import hz
NAME = "concat_heads__compressed_kv_cla__compressed_kv_cla__decode"
HDR = open("cdna_kernels/%s.s.ref" % NAME).read().split("; Override launch")[0]

QA = 0x0
QQ = 0x20000
ST = 0x180000
OC = 0xC0000
OB = 0x200000
WS_END = 0x400000
PITCH = 1056
L_QI = 128 * PITCH
L_MISC = L_QI + 16 * PITCH
L_QP = L_MISC
L_MX = L_MISC
L_LS = L_MISC + 1024
L_P = L_MISC + 4096
L_NON = L_MISC + 8192
L_EW = 22528
L_END = L_NON + 16
L_OUTP = 0
L_QS = 16384
L_CX = 20480
L_CC = 21504
SCALE = 0x3e0293ee
NST = 12

class G:
    def __init__(s, opt):
        s.L = []; s.o = opt; s.vm = []
    def A(s, t): s.L.append(t)
    def vmi(s, tag): s.vm.append(tag)
    def vmwait(s, tag):
        if tag not in s.vm: return
        k = len(s.vm) - 1 - max(i for i, t in enumerate(s.vm) if t == tag)
        s.A(f"s_waitcnt vmcnt({k})")
        s.vm = s.vm[len(s.vm) - k:]
    def vmlimit(s, k):
        if len(s.vm) > k:
            s.A(f"s_waitcnt vmcnt({k})"); s.vm = s.vm[len(s.vm) - k:]
    def stamp(s, i):
        if s.o.stamps in (1, 3): s.A(f"s_memrealtime s[{72+2*i}:{73+2*i}]")
    def fine(s, i):
        if s.o.stamps == 2: s.A(f"s_memtime s[{72+2*i}:{73+2*i}]")
    def sleep(s, n):
        while n > 0:
            s.A(f"s_sleep {min(n, 100)}"); n -= 100
    def srd(s, d, base, off, size):
        s.A(f"s_add_u32 s{d}, s{base}, {off}"); s.A(f"s_addc_u32 s{d+1}, s{base+1}, 0")
        s.A(f"s_sub_u32 s{d+2}, {size}, {off}"); s.A(f"s_mov_b32 s{d+3}, 0x20000")
    def srd0(s, d, base, size):
        s.A(f"s_mov_b32 s{d}, s{base}"); s.A(f"s_mov_b32 s{d+1}, s{base+1}"); s.A(f"s_mov_b32 s{d+2}, {size}"); s.A(f"s_mov_b32 s{d+3}, 0x20000")
    def selectors(s, sel, tmp, sel2=None):
        A = s.A
        A(f"v_and_b32 v{tmp}, 1, v1")
        A(f"v_cmp_eq_u32 vcc, 1, v{tmp}")
        A(f"v_mov_b32 v{tmp+1}, 0x0c0c0100"); A(f"v_mov_b32 v{tmp+2}, 0x01000c0c")
        A(f"v_cndmask_b32 v{tmp+1}, v{tmp+1}, v{tmp+2}, vcc")
        A(f"v_mov_b32 v{tmp+2}, 0x0c0c0302"); A(f"v_mov_b32 v{tmp+3}, 0x03020c0c")
        A(f"v_cndmask_b32 v{tmp+2}, v{tmp+2}, v{tmp+3}, vcc")
        A(f"v_mov_b32 v{tmp+3}, 0x0c0c0c0c")
        A(f"v_bfe_u32 v{tmp}, v1, 1, 2")
        for r in range(4):
            A(f"v_cmp_eq_u32 vcc, {r}, v{tmp}")
            A(f"v_cndmask_b32 v{sel+r}, v{tmp+3}, v{tmp+1}, vcc")
            A(f"v_cndmask_b32 v{sel+4+r}, v{tmp+3}, v{tmp+2}, vcc")
        if sel2 is not None:
            A("s_mov_b32 vcc_lo, 0xff0000ff"); A("s_mov_b32 vcc_hi, 0xff0000ff")
            for r in range(8): A(f"v_cndmask_b32 v{sel2+r}, v{tmp+3}, v{sel+r}, vcc")
    def frag(s, dst, src, par, sel):
        for r in range(4): s.A(f"v_perm_b32 v{dst+r}, v{src}, v{src}, v{sel+4*par+r}")
    def fold(s, d, t, n=4):
        for r in range(n): s.A(f"v_mov_b32 v{t+r}, v{d+r}")
        for r in range(n): s.A(f"v_permlane32_swap_b32 v{d+r}, v{t+r}")
        for r in range(n): s.A(f"v_add_f32_dpp v{d+r}, v{t+r}, v{d+r} row_ror:8 row_mask:0xf bank_mask:0xf")
    def xred(s, op, r, t):
        for sw in ("16", "32"):
            s.A(f"v_mov_b32 v{t}, v{r}"); s.A(f"v_permlane{sw}_swap_b32 v{r}, v{t}"); s.A(f"{op} v{r}, v{r}, v{t}")
    def mfma(s, d, a, b, first):
        s.A(f"v_mfma_f32_16x16x32_bf16 v[{d}:{d+3}], v[{a}:{a+3}], v[{b}:{b+3}], " + ("0" if first else f"v[{d}:{d+3}]"))
    def validate(s, first, n, lab_ok):
        A = s.A
        A(f"v_max3_u32 v46, v{first}, v{first+1}, v{first+2}")
        A(f"v_max3_u32 v47, v{first+3}, v{first+4}, v{first+5}")
        k = 6; which = 46
        while k + 1 < n:
            A(f"v_max3_u32 v{which}, v{which}, v{first+k}, v{first+k+1}"); k += 2; which = 93 - which
        A("v_max_u32 v46, v46, v47")
        A("v_cmp_eq_u32 vcc, -1, v46")
        A(f"s_cbranch_vccz {lab_ok}")
    def retry(s, lab, sleep=0):
        if sleep: s.A(f"s_sleep {sleep}")
        s.A("s_sub_u32 s33, s33, 1"); s.A(f"s_cbranch_scc0 {lab}")
    def nonce(s, tag, goff, first=0):
        A = s.A
        A(f"s_add_u32 s34, s22, {goff}"); A("s_addc_u32 s35, s23, 0")
        for r in range(max(first, s.o.r0), 4):
            A(f"s_load_dwordx2 s[54:55], s[34:35], {64*r}"); A("s_waitcnt lgkmcnt(0)")
            A("s_cmp_lg_u32 s54, 0"); A(f"s_cbranch_scc1 L_{tag}_ok")
            A(f"s_sleep {s.o.sleepn}")
        A("s_mov_b32 s33, 0x40000"); A("v_mov_b32 v46, 0")
        A(f"L_{tag}:")
        A(f"buffer_load_dwordx2 v[48:49], v46, s[48:51], {goff} offen offset:192 sc1")
        A("s_waitcnt vmcnt(0)")
        A("v_readfirstlane_b32 s54, v48"); A("v_readfirstlane_b32 s55, v49")
        A("s_cmp_lg_u32 s54, 0"); A(f"s_cbranch_scc1 L_{tag}_ok")
        s.retry(f"L_{tag}", 16)
        A(f"L_{tag}_ok:")
    def fin(s):
        if s.o.stamps: s.A("s_branch L_stamps")
        else: s.A("s_endpgm")

def gen(o):
    g = G(o); A = g.A
    if o.stamps:
        for i in range(NST): A(f"s_mov_b64 s[{72+2*i}:{73+2*i}], 0")
    g.stamp(0)
    A("s_cmp_ge_u32 s2, 256"); A("s_cbranch_scc1 L_end")
    A("s_bfe_u32 s4, s2, 0x10002")
    A("s_mul_i32 s3, s4, 48")
    A("s_add_u32 s34, s0, s3"); A("s_addc_u32 s35, s1, 0")
    A("s_load_dwordx4 s[8:11], s[34:35], 0")
    A("s_load_dwordx4 s[12:15], s[34:35], 16")
    A("s_load_dwordx4 s[16:19], s[34:35], 32")
    A("s_load_dwordx4 s[20:23], s[0:1], 96")
    A("s_load_dwordx2 s[24:25], s[0:1], 112")
    A("v_lshrrev_b32 v4, 6, v0")
    A("v_and_b32 v1, 63, v0")
    A("v_readfirstlane_b32 s31, v4")
    A("s_and_b32 s5, s2, 3"); A("s_lshr_b32 s6, s2, 3"); A("s_and_b32 s7, s6, 7")
    A("s_lshl_b32 s28, s5, 3"); A("s_lshr_b32 s3, s6, 2"); A("s_add_u32 s28, s28, s3")
    A("s_and_b32 s27, s28, 30")
    A("s_bfe_u32 s29, s6, 0x10001"); A("s_and_b32 s30, s6, 1")
    A("s_lshl_b32 s26, s4, 5"); A("s_add_u32 s26, s26, s28")
    vL16 = 7
    A(f"v_lshlrev_b32 v{vL16}, 4, v1")
    A("s_cmp_ge_u32 s31, 4"); A("s_cbranch_scc1 L_S")
    SEL = 8; SEL2 = 16; XV = 24; FR = 32; ACC = 40; WQ = 100; UK = 140
    vWQ, vX, vUK, vWO = 2, 3, 5, 6
    A("v_lshrrev_b32 v4, 5, v1"); A("v_and_b32 v44, 31, v1")
    A("s_lshl_b32 s3, s7, 2"); A("s_add_u32 s3, s3, s31"); A("s_mul_i32 s37, s3, 40")
    A(f"v_mul_u32_u24 v{vX}, 20, v4"); A(f"v_lshlrev_b32 v{vWQ}, 12, v{vX}"); A(f"v_lshl_add_u32 v{vWQ}, v44, 4, v{vWQ}")
    A("s_lshl_b32 s36, s37, 12"); A("s_lshl_b32 s38, s27, 8"); A("s_add_u32 s36, s36, s38")
    A("s_mov_b32 s39, 0")
    A("s_waitcnt lgkmcnt(0)")
    g.stamp(1)
    g.srd0(40, 8, 1280)
    g.srd(44, 12, "s36", 5242880)
    A(f"buffer_load_dwordx4 v[{XV}:{XV+3}], v{vX}, s[40:43], s37 offen"); g.vmi("x")
    A(f"buffer_load_dword v{XV+4}, v{vX}, s[40:43], s37 offen offset:16"); g.vmi("x")
    def ld_wq(n):
        A(f"buffer_load_dwordx4 v[{WQ+4*n}:{WQ+4*n+3}], v{vWQ}, s[44:47], s39 offen {o.ldq}"); g.vmi(("wq", n))
        if n < 9: A("s_add_u32 s39, s39, 8192")
    for n in range(o.tw): ld_wq(n)
    g.selectors(SEL, 46, SEL2)
    A("s_mov_b32 s40, s24"); A("s_mov_b32 s41, s25"); A(f"s_mov_b32 s42, {WS_END}")
    A("v_lshlrev_b32 v30, 9, v4"); A("v_and_b32 v46, 15, v1"); A("v_lshl_add_u32 v30, v46, 5, v30"); A("v_and_b32 v47, 16, v1"); A("v_add_u32 v30, v30, v47")
    A("s_lshl_b32 s3, s31, 10"); A(f"s_add_u32 s3, s3, {L_QP}"); A("v_add_u32 v30, s3, v30")
    A("s_lshl_b32 s3, s31, 8"); A(f"s_add_u32 s3, s3, {L_QP}"); A("v_lshl_add_u32 v31, v1, 3, s3")
    A("s_lshr_b32 s62, s26, 1"); A("s_lshl_b32 s62, s62, 3"); A("s_add_u32 s62, s62, s7"); A("s_lshl_b32 s62, s62, 2"); A("s_add_u32 s62, s62, s31")
    A("s_lshl_b32 s62, s62, 9"); A(f"s_add_u32 s62, s62, {QQ}")
    A(f"v_mov_b32 v29, {L_NON}")
    A("s_lshl_b32 s3, s28, 1"); A("s_add_u32 s3, s3, s29"); A("s_lshl_b32 s3, s3, 2"); A("s_add_u32 s3, s3, s31"); A("s_mul_i32 s63, s3, 20480")
    g.srd(56, 18, "s63", 5242880)
    A(f"v_lshrrev_b32 v47, 4, v1"); A(f"v_mul_u32_u24 v{vWO}, 5120, v47"); A(f"v_lshl_add_u32 v{vWO}, v46, 4, v{vWO}")
    A("s_cmp_eq_u32 s30, 0"); A("s_cbranch_scc1 L_PU")
    vm_save = list(g.vm)
    def q_part(nxt, depth):
        todo = list(range(o.tw, 10))
        def step():
            if todo: ld_wq(todo.pop(0))
            else: nxt()
        g.vmwait("x")
        g.frag(FR, XV, 0, SEL2)
        for n in range(10):
            g.vmwait(("wq", n))
            while len(g.vm) < depth: step()
            if n < 9: g.frag(FR + 4 * ((n + 1) & 1), XV + ((n + 1) >> 1), (n + 1) & 1, SEL2)
            g.mfma(ACC, FR + 4 * (n & 1), WQ + 4 * n, n == 0)
        A(f"ds_write_b128 v30, v[{ACC}:{ACC+3}]")
        A("s_waitcnt lgkmcnt(0)")
        g.stamp(2)
        A("s_barrier")
        g.stamp(3)
        for w in range(4): A(f"ds_read_b64 v[{32+2*w}:{33+2*w}], v31 offset:{1024*w}")
        A("ds_read_b64 v[42:43], v29")
        g.vmlimit(depth - 1); nxt()
        A("s_waitcnt lgkmcnt(0)")
        for r in range(2): A(f"v_add_f32 v{32+r}, v{32+r}, v{34+r}")
        for r in range(2): A(f"v_add_f32 v{36+r}, v{36+r}, v{38+r}")
        for r in range(2): A(f"v_add_f32 v{40+r}, v{32+r}, v{36+r}")
        A("s_mov_b32 exec_hi, 0")
        A(f"buffer_store_dwordx4 v[40:43], v{vL16}, s[40:43], s62 offen sc1"); g.vmi("qq")
        A("s_mov_b32 exec_hi, -1")
    A("s_lshl_b32 s3, s28, 17")
    g.srd(52, 10, "s3", 4194304)
    A("s_lshl_b32 s64, s29, 2"); A("s_add_u32 s64, s64, s31"); A("s_xor_b32 s65, s64, 4"); A("s_lshl_b32 s64, s64, 14"); A("s_lshl_b32 s65, s65, 14")
    A(f"s_mul_i32 s66, s31, {32*PITCH}")
    kp = [0]
    hu = list(range(15, 15 - o.hu, -1))
    if o.hu:
        A("s_lshr_b32 s3, s7, 1"); A("s_lshl_b32 s3, s3, 2"); A("s_add_u32 s3, s3, s31"); A("s_lshl_b32 s3, s3, 18"); A("s_add_u32 s3, s3, s38")
        g.srd(48, 14, "s3", 4194304)
        A(f"v_lshlrev_b32 v{vUK}, 17, v4"); A(f"v_lshl_add_u32 v{vUK}, v44, 4, v{vUK}")
    def nxt_kv():
        if hu:
            A(f"s_mov_b32 s67, {8192*hu.pop(0)}")
            A(f"buffer_load_dwordx4 v[140:143], v{vUK}, s[48:51], s67 offen"); g.vmi("hu")
            return
        k = kp[0]
        if k >= 32: return
        kp[0] += 1
        so = "s64" if k < 16 else "s65"
        A("s_mov_b32 m0, s66"); A(f"s_add_u32 s66, s66, {PITCH}")
        A(f"buffer_load_dwordx4 v{vL16}, s[52:55], {so} offen {o.ldkv if k < 16 else o.ldkv2} lds"); g.vmi("kv")
        A(f"s_add_u32 {so}, {so}, 1024")
    q_part(nxt_kv, o.tk)
    vK = 21; vQ = 22; vT0 = 23; vT1 = 24; vB = 26
    GA = 28; QR = 48; SA = 112; PF = 92; KF = 128; OA = 48; PK = 28
    A("v_mov_b32 v16, v42"); A("v_mov_b32 v17, v43")
    A("v_and_b32 v46, 15, v1"); A("v_lshrrev_b32 v47, 4, v1")
    A(f"v_mul_u32_u24 v{vQ}, {PITCH}, v46"); A(f"v_lshl_add_u32 v{vQ}, v47, 4, v{vQ}")
    A(f"s_mul_i32 s3, s31, {32*PITCH}"); A(f"v_add_u32 v{vK}, s3, v{vQ}"); A(f"v_add_u32 v{vQ}, {L_QI}, v{vQ}")
    def st_ob_addr(hi):
        A("s_lshl_b32 s68, s31, 1")
        if hi: A("s_add_u32 s68, s68, 1")
        A("s_lshl_b32 s60, s4, 1"); A("s_add_u32 s60, s60, s29")
        A("s_lshl_b32 s61, s60, 5"); A("s_add_u32 s61, s61, s28"); A("s_lshl_b32 s61, s61, 8"); A(f"s_add_u32 s61, s61, {ST}")
        A("s_lshl_b32 s60, s60, 9"); A("s_add_u32 s60, s60, s28"); A("s_lshl_b32 s60, s60, 3"); A("s_add_u32 s60, s60, s68"); A("s_lshl_b32 s60, s60, 7"); A(f"s_add_u32 s60, s60, {OB}")
    def pv_addr():
        A("v_and_b32 v46, 15, v1")
        A("v_lshrrev_b32 v44, 2, v1"); A(f"v_mul_u32_u24 v{vT0}, {PITCH}, v44"); A("v_and_b32 v44, 3, v1"); A(f"v_lshl_add_u32 v{vT0}, v44, 3, v{vT0}")
        A("s_lshl_b32 s3, s68, 7"); A(f"v_add_u32 v{vT0}, s3, v{vT0}"); A(f"v_add_u32 v{vT1}, {64*PITCH}, v{vT0}")
        A(f"v_lshlrev_b32 v{vB}, 15, v46"); A("v_and_b32 v44, 16, v1"); A(f"v_lshl_add_u32 v{vB}, v44, 1, v{vB}")
        A("v_lshrrev_b32 v44, 5, v1"); A(f"v_lshl_add_u32 v{vB}, v44, 4, v{vB}")
        A(f"v_add_u32 v27, {L_MX}, v{vL16}"); A(f"v_add_u32 v20, {L_P}, v{vL16}")
    st_ob_addr(0); pv_addr()
    A("s_lshl_b32 s3, s31, 2"); A("v_add_u32 v25, s3, v27")
    A("s_lshl_b32 s3, s31, 10"); A("v_add_u32 v19, s3, v20")
    while kp[0] < 32:
        g.vmlimit((o.tk if kp[0] < 16 else o.tk2) - 1); nxt_kv()
    A("s_barrier")
    g.stamp(5)
    A("s_waitcnt vmcnt(0)"); g.vm = []
    g.stamp(6)
    for kk in range(16):
        for t in range(2):
            d = KF + 4 * (2 * kk + t)
            A(f"ds_read_b128 v[{d}:{d+3}], v{vK} offset:{16*t*PITCH + 64*kk}")
    hl = [("o", 19 - i // 2) if i % 2 == 0 else ("v", 15 - i // 2) for i in range(o.hlp)]
    def helpn(n):
        for _ in range(n):
            if not hl: return
            k, i = hl.pop(0)
            if k == "o":
                A(f"s_movk_i32 s64, {1280*(i//5)}")
                A(f"buffer_load_dwordx4 v[124:127], v{vWO}, s[56:59], s64 offen offset:{256*(i%5)}")
            else:
                A(f"s_mov_b32 s64, {8192*i}")
                A(f"buffer_load_dwordx4 v[124:127], v9, s[44:47], s64 offen")
    if o.hlp:
        A("s_lshl_b32 s3, s31, 20"); A("s_lshl_b32 s36, s28, 8"); A("s_add_u32 s3, s3, s36"); A("s_lshl_b32 s36, s29, 7"); A("s_add_u32 s3, s3, s36")
        g.srd(44, 16, "s3", 4194304)
        A("v_lshrrev_b32 v9, 3, v1"); A("v_lshlrev_b32 v9, 17, v9"); A("v_and_b32 v8, 7, v1"); A("v_lshl_add_u32 v9, v8, 4, v9")
        helpn(o.hd)
    A("s_barrier")
    g.stamp(7); g.fine(0)
    vfr = [(ct, ks) for ct in range(4) for ks in range(4)]
    lg = []
    def lgw(tag):
        if tag not in lg: return
        k = len(lg) - 1 - max(i for i, t in enumerate(lg) if t == tag)
        A(f"s_waitcnt lgkmcnt({min(k,15)})"); del lg[:len(lg) - min(k, 15)]
    vi = [0]
    def rdv():
        idx = vi[0]
        if idx >= 16: return
        vi[0] += 1
        ct, ks = vfr[idx]; d = KF + 4 * idx
        base = vT0 if ks < 2 else vT1
        for hf in range(2):
            A(f"ds_read_b64_tr_b16 v[{d+2*hf}:{d+2*hf+1}], v{base} offset:{(32*(ks&1)+16*hf)*PITCH + 32*ct}"); lg.append(("v", idx))
    def rdq(kk):
        A(f"ds_read_b128 v[{QR+4*kk}:{QR+4*kk+3}], v{vQ} offset:{64*kk}"); lg.append(("q", kk))
    for kk in range(6): rdq(kk)
    for kk in range(16):
        lgw(("q", kk))
        for t in range(2): g.mfma(SA + 4 * t, KF + 4 * (2 * kk + t), QR + 4 * kk, kk == 0)
        if kk == 0: g.fine(1)
        if kk == 7: g.fine(2)
        if kk == 15: g.fine(3)
        if kk % 2 == 1 and kk // 2 < o.hs: helpn(1)
        if kk + 6 < 16: rdq(kk + 6)
        if 1 <= kk <= o.nvs: rdv()
    A(f"s_mov_b32 s3, {SCALE}")
    A(f"v_max3_f32 v46, v{SA}, v{SA+1}, v{SA+2}"); A(f"v_max3_f32 v47, v{SA+4}, v{SA+5}, v{SA+6}")
    A(f"v_max3_f32 v46, v46, v{SA+3}, v{SA+7}"); A("v_max_f32 v46, v46, v47")
    g.xred("v_max_f32", 46, 47)
    A("ds_write_b32 v25, v46")
    g.fine(4)
    A("s_waitcnt lgkmcnt(0)"); lg.clear()
    A("s_barrier")
    g.fine(5)
    A(f"ds_read_b128 v[{GA}:{GA+3}], v27"); lg.append("mx")
    for _ in range(o.nvm): rdv()
    lgw("mx")
    A(f"v_max3_f32 v46, v{GA}, v{GA+1}, v{GA+2}"); A(f"v_max_f32 v46, v46, v{GA+3}")
    A(f"v_mul_f32 v44, s3, v46")
    for r in range(8): A(f"v_fma_f32 v{SA+r}, v{SA+r}, s3, -v44")
    for r in range(8): A(f"v_exp_f32 v{SA+r}, v{SA+r}")
    for k in range(4): A(f"v_cvt_pk_bf16_f32 v{GA+k}, v{SA+2*k}, v{SA+2*k+1}")
    A(f"ds_write_b128 v19, v[{GA}:{GA+3}]")
    for k in range(4): A(f"v_add_f32 v{SA+k}, v{SA+k}, v{SA+4+k}")
    A(f"v_add_f32 v{SA}, v{SA}, v{SA+1}"); A(f"v_add_f32 v{SA+2}, v{SA+2}, v{SA+3}"); A(f"v_add_f32 v{SA}, v{SA}, v{SA+2}")
    A(f"ds_write_b32 v25, v{SA} offset:{L_LS - L_MX}")
    g.fine(6)
    A("s_waitcnt lgkmcnt(0)"); lg.clear()
    A("s_barrier")
    g.stamp(8); g.fine(7)
    def pv(fine):
        for w in range(4): A(f"ds_read_b128 v[{PF+4*w}:{PF+4*w+3}], v20 offset:{1024*w}"); lg.append(("p", w))
        if fine: A(f"ds_read_b128 v[{SA}:{SA+3}], v27 offset:{L_LS - L_MX}"); lg.append("ls")
        def pack(ct):
            a = OA + 4 * ct
            A(f"v_cvt_pk_bf16_f32 v{PK+2*ct}, v{a}, v{a+1}"); A(f"v_cvt_pk_bf16_f32 v{PK+2*ct+1}, v{a+2}, v{a+3}")
        def ship(p):
            b = PK + 4 * p
            A(f"v_permlane16_swap_b32 v{b}, v{b+2}"); A(f"v_permlane16_swap_b32 v{b+1}, v{b+3}")
            A(f"buffer_store_dwordx4 v[{b}:{b+3}], v{vB}, s[40:43], s60 offen offset:{64*p} {o.stb}")
        for ct in range(4):
            for ks in range(4):
                lgw(("p", ks)); lgw(("v", 4 * ct + ks))
                g.mfma(OA + 4 * ct, KF + 4 * (4 * ct + ks), PF + 4 * ks, ks == 0)
                if fine and ct == 0 and ks == 0: g.fine(8)
                if fine and ct == 3 and ks == 3: g.fine(9)
                if fine and ct == 1 and ks == 0:
                    lgw("ls")
                    A(f"v_add_f32 v45, v{SA}, v{SA+1}"); A(f"v_add_f32 v46, v{SA+2}, v{SA+3}"); A("v_add_f32 v45, v45, v46")
                if fine and ct == 1 and ks == 2: g.xred("v_add_f32", 45, 46); A("v_mov_b32 v46, v16"); A("v_mov_b32 v47, v17")
                if ct == 2 and ks == 1: pack(0)
                if ct == 2 and ks == 3: pack(1)
                if ct == 3 and ks == 1: ship(0)
                if ct == 3 and ks == 3: pack(2)
        pack(3); ship(1)
        A("s_barrier")
        if fine:
            A("s_cmp_lg_u32 s31, 0"); A("s_cbranch_scc1 L_T_nost")
            A("s_mov_b64 exec, 0xffff")
            A(f"buffer_store_dwordx4 v[44:47], v{vL16}, s[40:43], s61 offen sc1")
            A("s_mov_b64 exec, -1")
            A("L_T_nost:")
    while vi[0] < 16: rdv()
    pv(True)
    g.stamp(9); g.fine(10)
    if o.stamps == 1 and not o.hlp: A("s_waitcnt vmcnt(0)"); g.stamp(4)
    helpn(99)
    A("s_cmp_lg_u32 s31, 0"); A("s_cbranch_scc1 L_fin")
    A("s_cmp_ge_u32 s6, 20"); A("s_cbranch_scc1 L_fin")
    A("s_mul_i32 s3, s5, 10"); A("s_lshr_b32 s52, s6, 1"); A("s_add_u32 s3, s3, s52")
    A("v_lshrrev_b32 v46, 3, v1"); A(f"v_mul_u32_u24 v25, 5120, v46"); A("v_and_b32 v46, 7, v1"); A(f"v_lshl_add_u32 v25, v46, 4, v25")
    A(f"s_mul_i32 s52, s4, {64*5120}"); A("s_lshl_b32 s53, s3, 7"); A("s_add_u32 s52, s52, s53"); A(f"s_add_u32 s52, s52, {OC}")
    for n in range(1, 8): A(f"s_add_u32 s{52+n}, s{51+n}, {8*5120}")
    A("s_mul_i32 s61, s4, 1280"); A("s_lshl_b32 s3, s3, 5"); A("s_add_u32 s61, s61, s3")
    g.srd0(44, 20, 2560)
    g.srd0(48, 22, 256)
    A("s_lshl_b32 s67, s4, 5"); A("v_mov_b32 v26, 0"); A("v_lshlrev_b32 v27, 2, v1")
    A("s_mov_b32 s33, 0x40000")
    A("L_R_non:")
    A("buffer_load_dwordx4 v[28:31], v26, s[48:51], s67 offen offset:192 sc1"); A("buffer_load_dwordx4 v[32:35], v26, s[48:51], s67 offen offset:208 sc1")
    A("s_waitcnt vmcnt(0)")
    A("v_min_u32 v46, v28, v30"); A("v_min3_u32 v46, v46, v32, v34"); A("v_cmp_eq_u32 vcc, 0, v46")
    A("s_cbranch_vccz L_R_non_ok")
    g.retry("L_R_non", 8)
    A("L_R_non_ok:")
    g.sleep(o.sleepc0)
    GC = 52
    A("s_mov_b32 s33, 0x40000")
    A("L_T_gc:")
    for n in range(8): A(f"buffer_load_dwordx4 v[{GC+4*n}:{GC+4*n+3}], v25, s[40:43], s{52+n} offen sc1")
    for n in range(8):
        A(f"s_waitcnt vmcnt({7-n})")
        d = "vcc" if n == 0 else "s[62:63]"
        A(f"v_cmp_ne_u64 {d}, v[{GC+4*n+2}:{GC+4*n+3}], v[{28+2*(n>>1)}:{29+2*(n>>1)}]")
        if n & 1:
            for r in range(2): A(f"v_add_f32 v{GC+4*n+r}, v{GC+4*n+r}, v{GC+4*n-4+r}")
        if n: A("s_or_b64 vcc, vcc, s[62:63]")
    A("s_cbranch_vccz L_T_gc_ok")
    g.retry("L_T_gc", o.sleepc)
    A("L_T_gc_ok:")
    g.stamp(10)
    for r in range(2): A(f"v_add_f32 v{GC+r}, v{GC+4+r}, v{GC+12+r}")
    for r in range(2): A(f"v_add_f32 v{GC+4+r}, v{GC+20+r}, v{GC+28+r}")
    for r in range(2): A(f"v_add_f32 v{GC+r}, v{GC+r}, v{GC+4+r}")
    for r in range(2): A(f"v_add_f32_dpp v{GC+r}, v{GC+r}, v{GC+r} row_ror:8 row_mask:0xf bank_mask:0xf")
    for sw in ("16", "32"):
        for r in range(2): A(f"v_mov_b32 v{GC+4+r}, v{GC+r}")
        for r in range(2): A(f"v_permlane{sw}_swap_b32 v{GC+r}, v{GC+4+r}")
        for r in range(2): A(f"v_add_f32 v{GC+r}, v{GC+r}, v{GC+4+r}")
    A(f"v_cvt_pk_bf16_f32 v{GC}, v{GC}, v{GC+1}")
    A("s_mov_b64 exec, 0xff")
    A(f"buffer_store_dword v{GC}, v27, s[44:47], s61 offen")
    if o.stamps: A("s_waitcnt vmcnt(0)"); g.stamp(11)
    A("L_fin:")
    g.fin()
    A("L_PU:")
    g.vm = list(vm_save)
    A("s_lshr_b32 s3, s7, 1"); A("s_lshl_b32 s3, s3, 2"); A("s_add_u32 s65, s3, s31")
    A("s_lshl_b32 s3, s65, 18"); A("s_add_u32 s3, s3, s38")
    g.srd(48, 14, "s3", 4194304)
    A(f"v_lshlrev_b32 v{vUK}, 17, v4"); A(f"v_lshl_add_u32 v{vUK}, v44, 4, v{vUK}")
    A("s_mov_b32 s66, 0")
    useq = [("uk", n) for n in range(16)] + [("wo", i) for i in range(20)]
    up = [0]
    def wo_reg(i): return 100 + 4 * i if i < 10 else 204 + 4 * (i - 10)
    def nxt_u():
        if up[0] >= len(useq): return
        k, n = useq[up[0]]; up[0] += 1
        if k == "uk":
            A(f"buffer_load_dwordx4 v[{UK+4*n}:{UK+4*n+3}], v{vUK}, s[48:51], s66 offen {o.lduk}")
            if n < 15: A("s_add_u32 s66, s66, 8192")
        else:
            if n % 5 == 0: A(f"s_movk_i32 s64, {1280*(n//5)}")
            d = wo_reg(n)
            A(f"buffer_load_dwordx4 v[{d}:{d+3}], v{vWO}, s[56:59], s64 offen offset:{256*(n%5)} {o.ldo}")
        g.vmi((k, n))
    q_part(nxt_u, o.tu)
    A("v_mov_b32 v26, v42"); A("v_mov_b32 v27, v43"); A("v_mov_b32 v30, v42"); A("v_mov_b32 v31, v43")
    A(f"v_lshlrev_b32 v46, 5, v44"); A(f"v_add_u32 v46, {L_QS}, v46")
    A("v_and_b32 v2, 16, v1"); A("v_lshlrev_b32 v2, 7, v2"); A("v_lshl_add_u32 v2, v4, 6, v2"); A("v_and_b32 v3, 12, v1"); A("v_lshl_add_u32 v2, v3, 2, v2")
    A("s_and_b32 s62, s26, 62"); A("s_lshl_b32 s62, s62, 4"); A("s_add_u32 s62, s62, s65"); A("s_lshl_b32 s62, s62, 7")
    while up[0] < 16 - o.uearly:
        g.vmlimit(o.tu - 1); nxt_u()
    A("s_barrier")
    while up[0] < 16 + o.npre:
        g.vmlimit(o.tu - 1); nxt_u()
    A("s_barrier")
    QP = 56; PP = 60
    for w in range(4):
        A(f"ds_read_b128 v[{60+8*w}:{63+8*w}], v46 offset:{1024*w}"); A(f"ds_read_b128 v[{64+8*w}:{67+8*w}], v46 offset:{1024*w+16}")
    A("s_waitcnt lgkmcnt(0)")
    for k in range(8): A(f"v_add_f32 v{60+k}, v{60+k}, v{68+k}")
    for k in range(8): A(f"v_add_f32 v{76+k}, v{76+k}, v{84+k}")
    for k in range(8): A(f"v_add_f32 v{48+k}, v{60+k}, v{76+k}")
    for k in range(4): A(f"v_cvt_pk_bf16_f32 v{QP+k}, v{48+2*k}, v{49+2*k}")
    for n0 in (0, 8):
        g.vmwait(("uk", n0 + 7))
        for k in range(4):
            for n in range(n0, n0 + 8):
                if k == 0: A(f"v_dot2_f32_bf16 v{PP+n}, v{UK+4*n}, v{QP}, 0")
                else: A(f"v_dot2c_f32_bf16 v{PP+n}, v{UK+4*n+k}, v{QP+k}")
        if n0 == 0:
            for n in range(8): A(f"v_add_f32_dpp v{PP+n}, v{PP+n}, v{PP+n} row_ror:8 row_mask:0xf bank_mask:0x3")
    for n in range(8): A(f"v_add_f32_dpp v{PP+n}, v{PP+n+8}, v{PP+n+8} row_ror:8 row_mask:0xf bank_mask:0xc")
    for n in range(4): A(f"v_add_f32_dpp v{PP+n}, v{PP+n}, v{PP+n} row_half_mirror row_mask:0xf bank_mask:0x5")
    for n in range(4): A(f"v_add_f32_dpp v{PP+n}, v{PP+n+4}, v{PP+n+4} row_half_mirror row_mask:0xf bank_mask:0xa")
    for n in range(4): A(f"v_add_f32_dpp v{PP+n}, v{PP+n}, v{PP+n} quad_perm:[2,3,0,1] row_mask:0xf bank_mask:0xf")
    for n in range(4): A(f"v_add_f32_dpp v{PP+n}, v{PP+n}, v{PP+n} quad_perm:[1,0,3,2] row_mask:0xf bank_mask:0xf")
    A(f"v_cvt_pk_bf16_f32 v24, v{PP}, v{PP+1}"); A(f"v_cvt_pk_bf16_f32 v25, v{PP+2}, v{PP+3}")
    A("s_mov_b32 exec_lo, 0x11111111"); A("s_mov_b32 exec_hi, 0x11111111")
    A(f"buffer_store_dwordx4 v[24:27], v2, s[40:43], s62 offen sc1"); g.vmi("qa")
    A("s_mov_b64 exec, -1")
    g.stamp(4)
    A("v_lshrrev_b32 v47, 4, v1"); A("s_lshl_b32 s3, s31, 6"); A("v_lshl_add_u32 v44, v47, 4, s3"); A(f"v_add_u32 v44, {L_CX}, v44")
    A("v_and_b32 v47, 15, v1"); A("v_and_b32 v46, 16, v1"); A("v_lshl_add_u32 v46, v47, 5, v46"); A("s_mul_i32 s3, s31, 2560"); A(f"v_add_u32 v46, s3, v46")
    A("s_mul_i32 s3, s31, 640"); A(f"v_add_u32 v47, s3, v{vL16}"); A("v_lshlrev_b32 v45, 1, v47")
    A("s_lshl_b32 s62, s26, 1"); A("s_add_u32 s62, s62, s29"); A("s_mul_i32 s62, s62, 5120"); A(f"s_add_u32 s62, s62, {OC}")
    g.sleep(o.du)
    while up[0] < len(useq):
        if o.ubar and up[0] == len(useq) - o.ubar + 1: A("s_barrier")
        g.vmlimit((o.to if up[0] < 16 + o.nto else o.to2) - 1); nxt_u()
    if o.ubar == 1: A("s_barrier")
    g.stamp(5)
    A("s_barrier")
    A("s_barrier")
    g.stamp(7); g.fine(0)
    OA7 = 60; F7 = 80
    for w in range(4): A(f"ds_read_b128 v[{80+4*w}:{83+4*w}], v44 offset:{256*w}")
    A("s_waitcnt lgkmcnt(0)")
    for k in range(4): A(f"v_add_f32 v{80+k}, v{80+k}, v{84+k}")
    for k in range(4): A(f"v_add_f32 v{88+k}, v{88+k}, v{92+k}")
    for k in range(4): A(f"v_add_f32 v{48+k}, v{80+k}, v{88+k}")
    for k in range(2): A(f"v_cvt_pk_bf16_f32 v{QP+k}, v{48+2*k}, v{49+2*k}")
    g.fine(1)
    g.frag(F7, QP, 0, SEL)
    for k in range(4):
        for cb in range(5):
            g.vmwait(("wo", 5 * k + cb))
            g.mfma(OA7 + 4 * cb, F7 + 4 * k, wo_reg(5 * k + cb), k == 0)
            if cb == 0 and k < 3: g.frag(F7 + 4 * (k + 1), QP + ((k + 1) >> 1), (k + 1) & 1, SEL)
    g.stamp(8); g.fine(2)
    A("s_mov_b32 exec_hi, 0")
    for cb in range(5): A(f"ds_write_b128 v46, v[{OA7+4*cb}:{OA7+4*cb+3}] offset:{L_OUTP+512*cb}")
    A("s_mov_b32 exec_hi, 0xff")
    A("s_waitcnt lgkmcnt(0)")
    A("s_barrier")
    g.fine(3)
    for w in range(4): A(f"ds_read_b128 v[{F7+4*w}:{F7+4*w+3}], v47 offset:{L_OUTP+2560*w}")
    A("s_waitcnt lgkmcnt(2)")
    for r in range(4): A(f"v_add_f32 v{F7+r}, v{F7+r}, v{F7+4+r}")
    A("s_waitcnt lgkmcnt(0)")
    for r in range(4): A(f"v_add_f32 v{F7+8+r}, v{F7+8+r}, v{F7+12+r}")
    for r in range(4): A(f"v_add_f32 v{24+(r&1)+4*(r>>1)}, v{F7+r}, v{F7+8+r}")
    A(f"buffer_store_dwordx4 v[24:27], v45, s[40:43], s62 offen sc1")
    A(f"buffer_store_dwordx4 v[28:31], v45, s[40:43], s62 offen offset:16 sc1")
    g.stamp(9); g.fine(4)
    if o.stamps: A("s_waitcnt vmcnt(0)"); g.stamp(10); g.fine(5)
    g.fin()
    g.vm = []
    A("L_S:")
    A("s_sub_u32 s31, s31, 4")
    SEN = 16; vA = 25; vB = 26
    for r in range(4): A(f"v_mov_b32 v{SEN+r}, -1")
    A("v_mov_b32 v44, 0"); A(f"v_mov_b32 v39, {L_NON}")
    A("s_lshl_b32 s67, s4, 5")
    A("s_waitcnt lgkmcnt(0)")
    g.stamp(1)
    g.srd0(40, 24, WS_END)
    g.srd0(48, 22, 256)
    A("s_cmp_lg_u32 s31, 0"); A("s_cbranch_scc1 L_S_w123")
    A("s_and_b32 s52, s2, 7"); A("s_lshl_b32 s52, s52, 3")
    A("s_cmp_lg_u32 s6, 0"); A("s_cbranch_scc1 L_S_nolead")
    A("s_memrealtime s[54:55]"); A("v_lshlrev_b32 v45, 6, v1"); A("s_waitcnt lgkmcnt(0)"); A("s_or_b32 s54, s54, 1")
    A("v_mov_b32 v46, s54"); A("v_mov_b32 v47, s55")
    A(f"s_mov_b64 exec, {15 & ~((1 << o.r0) - 1)}")
    A("buffer_store_dwordx2 v[46:47], v45, s[48:51], s52 offen sc1")
    A("s_mov_b64 exec, -1")
    A("s_branch L_S_np_ok")
    A("L_S_nolead:")
    g.sleep(o.dn)
    g.nonce("S_np", "s52")
    A("v_mov_b32 v46, s54"); A("v_mov_b32 v47, s55")
    A("ds_write_b64 v39, v[46:47]")
    A("s_waitcnt lgkmcnt(0)")
    g.stamp(2)
    A("L_S_w123:")
    if o.pf:
        A("s_cmp_lg_u32 s31, 2"); A("s_cbranch_scc1 L_S_npf")
        A("s_getpc_b64 s[34:35]")
        A("L_pc:")
        A(f"s_sub_u32 s34, s34, L_pc-{NAME}_kernel"); A("s_subb_u32 s35, s35, 0")
        A(f"s_and_b32 s3, s6, {o.pf-1}"); A("s_lshl_b32 s3, s3, 10"); A(f"v_add_u32 v46, s3, v{vL16}")
        A(f"global_load_dwordx4 v[200:203], v46, s[34:35]")
        A("L_S_npf:")
    A("s_cmp_eq_u32 s30, 0"); A("s_cbranch_scc1 L_SU")
    vB = 26
    st_ob_addr(0)
    A("v_lshrrev_b32 v38, 4, v1"); A("v_lshlrev_b32 v38, 15, v38"); A("v_and_b32 v37, 15, v1"); A("v_lshl_add_u32 v38, v37, 4, v38")
    A("s_barrier")
    g.stamp(3)
    g.sleep(o.dinv)
    for n in range(4):
        A(f"buffer_store_dwordx4 v[{SEN}:{SEN+3}], v38, s[40:43], s60 offen sc1")
        if n < 3: A("s_add_u32 s60, s60, 131072")
    st_ob_addr(1); pv_addr()
    A("s_waitcnt vmcnt(0)")
    A("s_lshl_b32 s52, s29, 1"); A("s_lshr_b32 s3, s31, 1"); A("s_add_u32 s52, s52, s3"); A("s_lshl_b32 s52, s52, 3"); A("s_add_u32 s52, s52, s67")
    g.nonce("T_np", "s52", 3)
    g.stamp(4)
    A("s_lshl_b32 s52, s4, 1"); A("s_add_u32 s52, s52, s29"); A("s_lshl_b32 s52, s52, 2"); A("s_add_u32 s52, s52, s31"); A("s_lshl_b32 s52, s52, 13"); A("s_add_u32 s53, s52, 4096")
    A(f"s_mul_i32 s3, s31, {4*PITCH}"); A(f"s_add_u32 s3, s3, {L_QI}"); A(f"v_lshl_add_u32 v{vA}, v1, 3, s3")
    hs = [0]
    def helps(n):
        for _ in range(n):
            i = hs[0]
            if i >= o.hsv: return
            hs[0] += 1
            if i % 2 == 0:
                k = 19 - i // 2
                A(f"s_movk_i32 s63, {1280*(k//5)}"); A(f"buffer_load_dwordx4 v[124:127], v6, s[56:59], s63 offen offset:{256*(k%5)}")
            else:
                A(f"s_mov_b32 s63, {8192*(15 - i // 2)}"); A(f"buffer_load_dwordx4 v[124:127], v9, s[44:47], s63 offen")
    if o.hsv:
        A("s_lshl_b32 s3, s28, 1"); A("s_add_u32 s3, s3, s29"); A("s_lshl_b32 s3, s3, 2"); A("s_add_u32 s3, s3, s31"); A("s_mul_i32 s63, s3, 20480")
        g.srd(56, 18, "s63", 5242880)
        A("s_lshl_b32 s3, s31, 20"); A("s_lshl_b32 s36, s28, 8"); A("s_add_u32 s3, s3, s36"); A("s_lshl_b32 s36, s29, 7"); A("s_add_u32 s3, s3, s36")
        g.srd(44, 16, "s3", 4194304)
        A("v_lshrrev_b32 v9, 3, v1"); A("v_lshlrev_b32 v9, 17, v9"); A("v_and_b32 v8, 7, v1"); A("v_lshl_add_u32 v9, v8, 4, v9")
        A("v_lshrrev_b32 v47, 4, v1"); A("v_mul_u32_u24 v6, 5120, v47"); A("v_and_b32 v46, 15, v1"); A("v_lshl_add_u32 v6, v46, 4, v6")
    if o.k3:
        A("s_lshr_b32 s3, s6, 4"); A("s_lshl_b32 s3, s3, 10"); A("s_lshl_b32 s36, s5, 11"); A("s_add_u32 s3, s3, s36"); A("s_add_u32 s3, s3, 384")
        A("s_lshl_b32 s36, s31, 20"); A("s_add_u32 s3, s3, s36")
        g.srd(64, 16, "s3", 4194304)
        A("s_bfe_u32 s3, s6, 0x30001"); A("s_sub_u32 s69, 15, s3"); A("s_lshl_b32 s69, s69, 13")
        A("v_lshrrev_b32 v10, 3, v1"); A("v_lshlrev_b32 v10, 17, v10"); A("v_and_b32 v8, 7, v1"); A("v_lshl_add_u32 v10, v8, 4, v10")
    def k3():
        for n in range(o.k3):
            A("buffer_load_dwordx4 v[124:127], v10, s[64:67], s69 offen")
            if n == 0 and o.k3 > 1: A("s_sub_u32 s69, s69, 65536")
    if o.k3 and o.k3e: k3()
    A("s_barrier")
    GA = 48
    A("v_and_b32 v37, 15, v1"); A("v_lshlrev_b32 v37, 7, v37"); A("v_and_b32 v36, 16, v1"); A("v_lshl_add_u32 v37, v36, 8, v37")
    g.sleep(o.da)
    A("s_mov_b32 s33, 0x40000")
    A("L_T_ga:")
    for n in range(8): A(f"buffer_load_dwordx4 v[{GA+4*n}:{GA+4*n+3}], v{vL16}, s[40:43], s{52+(n>>2)} offen offset:{1024*(n&3)} sc1")
    for n in range(8):
        A(f"s_waitcnt vmcnt({7-n})")
        A(f"ds_write_b64 v{vA}, v[{GA+4*n}:{GA+4*n+1}] offset:{(n>>1)*PITCH + 512*(n&1)}")
        d = "vcc" if n == 0 else "s[70:71]"
        A(f"v_cmp_ne_u64 {d}, s[54:55], v[{GA+4*n+2}:{GA+4*n+3}]")
        if n: A("s_or_b64 vcc, vcc, s[70:71]")
    A("s_cbranch_vccz L_T_ga_ok")
    if o.h1: helps(o.h1)
    A("L_T_ha:")
    A(f"s_sleep {o.sleepa}")
    A("buffer_load_dwordx2 v[48:49], v37, s[40:43], s52 offen offset:8 sc1")
    A("s_waitcnt vmcnt(0)")
    A("s_sub_u32 s33, s33, 1"); A("s_cbranch_scc1 L_T_ga_ok")
    A("v_cmp_ne_u64 vcc, s[54:55], v[48:49]"); A("s_cbranch_vccnz L_T_ha")
    A("s_branch L_T_ga")
    A("L_T_ga_ok:")
    g.stamp(5)
    A("s_waitcnt lgkmcnt(0)")
    g.stamp(6)
    A("s_barrier")
    if o.k3 and not o.k3e: k3()
    lg.clear(); vi[0] = 0
    while vi[0] < 16: rdv()
    if o.hsv: helps(o.h2)
    A("s_barrier")
    A("s_barrier")
    pv(False)
    while hs[0] < o.hsv:
        A(f"s_waitcnt vmcnt({o.hsd2-1})"); helps(1)
    g.fin()
    A("L_SU:")
    UV = 128; SEL = 8
    g.selectors(SEL, 46)
    A("s_lshr_b32 s52, s26, 1"); A("s_lshl_b32 s52, s52, 2"); A("s_add_u32 s52, s52, s31"); A("s_lshl_b32 s52, s52, 12"); A(f"s_add_u32 s52, s52, {QQ}")
    A("s_lshl_b32 s3, s31, 10"); A(f"s_add_u32 s3, s3, {L_QS}"); A("v_lshl_add_u32 v38, v1, 3, s3")
    A("s_barrier")
    g.stamp(3)
    A("ds_read_b64 v[42:43], v39")
    A("s_lshl_b32 s3, s31, 20"); A("s_lshl_b32 s36, s28, 8"); A("s_add_u32 s3, s3, s36"); A("s_lshl_b32 s36, s29, 7"); A("s_add_u32 s3, s3, s36")
    g.srd(44, 16, "s3", 4194304)
    A("v_lshrrev_b32 v5, 3, v1"); A("v_and_b32 v6, 7, v1"); A("v_lshrrev_b32 v4, 4, v1"); A("v_and_b32 v3, 15, v1")
    A("v_lshlrev_b32 v24, 17, v5"); A("v_lshl_add_u32 v24, v6, 4, v24")
    A(f"v_lshlrev_b32 v{vA}, 13, v4"); A(f"v_lshl_add_u32 v{vA}, v3, 4, v{vA}")
    A("v_and_b32 v46, 31, v1"); A(f"v_lshlrev_b32 v{vB}, 8, v46"); A(f"v_lshlrev_b32 v19, 3, v46"); A(f"v_add_u32 v19, {L_EW + 256}, v19")
    A("v_and_b32 v36, 24, v1")
    A("s_lshr_b32 s59, s26, 4"); A("s_lshl_b32 s59, s59, 9"); A("s_and_b32 s3, s28, 15"); A("s_add_u32 s59, s59, s3")
    A("s_lshl_b32 s59, s59, 4"); A(f"s_add_u32 s59, s59, {ST}")
    A("s_lshl_b32 s3, s31, 6"); A(f"s_add_u32 s3, s3, {L_EW}"); A("v_lshl_add_u32 v37, v46, 1, s3"); A("v_lshl_add_u32 v23, v4, 4, s3")
    A("s_lshl_b32 s58, s26, 15"); A("s_lshl_b32 s3, s31, 8"); A("s_add_u32 s58, s58, s3"); A(f"s_add_u32 s58, s58, {OB}"); A("s_add_u32 s60, s58, 4096")
    A("v_and_b32 v46, 16, v1"); A("v_lshl_add_u32 v21, v6, 5, v46"); A(f"s_add_u32 s54, s3, {L_CX}"); A("v_add_u32 v21, s54, v21")
    A(f"s_add_u32 s3, s3, {L_CC}"); A("v_lshlrev_b32 v20, 4, v3"); A("v_lshl_add_u32 v20, v4, 3, v20"); A("v_add_u32 v20, s3, v20"); A("v_lshl_add_u32 v22, v5, 5, s3")
    A("s_barrier")
    g.sleep(o.dq)
    A("s_mov_b32 s33, 0x40000"); A("s_mov_b32 s39, 0")
    def gq():
        for n in range(4): A(f"buffer_load_dwordx4 v[{48+4*n}:{51+4*n}], v{vL16}, s[40:43], s52 offen offset:{1024*n} sc1")
    def ld_uv(n):
        A(f"buffer_load_dwordx4 v[{UV+4*n}:{UV+4*n+3}], v24, s[44:47], s39 offen {o.lduv}"); g.vmi(("uv", n))
        A("s_add_u32 s39, s39, 8192")
    gq()
    for n in range(o.vpre): ld_uv(n)
    A(f"s_waitcnt vmcnt({o.vpre}) lgkmcnt(0)")
    A("s_branch L_U_gq_t")
    A("L_U_gq:")
    gq()
    A("s_waitcnt vmcnt(0)")
    A("L_U_gq_t:")
    for n in range(4):
        d = "vcc" if n == 0 else "s[54:55]"
        A(f"v_cmp_ne_u64 {d}, v[{50+4*n}:{51+4*n}], v[42:43]")
        if n: A("s_or_b64 vcc, vcc, s[54:55]")
    A("s_cbranch_vccz L_U_gq_ok")
    g.retry("L_U_gq", o.sleepa)
    A("L_U_gq_ok:")
    for k in range(2):
        for r in range(2): A(f"v_add_f32 v{48+4*k+r}, v{48+4*k+r}, v{56+4*k+r}")
    A("ds_write_b64 v38, v[48:49]"); A("ds_write_b64 v38, v[52:53] offset:512")
    A("s_waitcnt lgkmcnt(0)")
    g.stamp(10)
    A("s_barrier")
    if o.prew:
        A("s_cmp_lg_u32 s31, 0"); A("s_cbranch_scc1 L_U_noprew")
        A("s_lshl_b32 s62, s26, 1"); A("s_add_u32 s62, s62, s29"); A("s_mul_i32 s62, s62, 5120"); A(f"s_add_u32 s62, s62, {OC}")
        for n in range(4): A(f"buffer_store_dwordx4 v[{SEN}:{SEN+3}], v{vL16}, s[40:43], s62 offen offset:{1024*n} sc1")
        A("s_add_u32 s62, s62, 4096")
        A(f"buffer_store_dwordx4 v[{SEN}:{SEN+3}], v{vL16}, s[40:43], s62 offen sc1")
        A("L_U_noprew:")
    g.sleep(o.dv)
    for n in range(o.vpre, 16):
        g.vmlimit(o.tv - 1); ld_uv(n)
    g.stamp(4)
    if o.ubar: A("s_barrier")
    g.sleep(o.db)
    GB = 48; GS = 80; FC = 192
    g.vm = []
    A("s_cmp_lg_u32 s31, 0"); A("s_cbranch_scc1 L_U_gs_ok")
    A("s_mov_b32 s33, 0x40000")
    A("L_U_gn:")
    A("buffer_load_dwordx2 v[40:41], v36, s[48:51], s67 offen offset:192 sc1")
    A("s_waitcnt vmcnt(0)")
    A("v_cmp_eq_u32 vcc, 0, v40"); A("s_cbranch_vccz L_U_gn_ok")
    g.retry("L_U_gn", 8)
    A("L_U_gn_ok:")
    A("s_mov_b32 s33, 0x40000")
    A(f"buffer_load_dwordx4 v[84:87], v{vB}, s[40:43], s59 offen sc1")
    A("L_U_gs:")
    if o.sleepb: A(f"s_sleep {o.sleepb}")
    A(f"buffer_load_dwordx4 v[80:83], v{vB}, s[40:43], s59 offen sc1")
    A("s_waitcnt vmcnt(1)")
    A("v_cmp_ne_u64 vcc, v[86:87], v[40:41]"); A("s_cbranch_vccz L_U_gs_b")
    if o.sleepb: A(f"s_sleep {o.sleepb}")
    A(f"buffer_load_dwordx4 v[84:87], v{vB}, s[40:43], s59 offen sc1")
    A("s_waitcnt vmcnt(1)")
    A("v_cmp_ne_u64 vcc, v[82:83], v[40:41]"); A("s_cbranch_vccz L_U_gs_a")
    g.retry("L_U_gs")
    A("L_U_gs_a:")
    A("ds_write_b64 v19, v[80:81]"); A("s_branch L_U_gs_c")
    A("L_U_gs_b:")
    A("ds_write_b64 v19, v[84:85]")
    A("L_U_gs_c:")
    A("s_waitcnt lgkmcnt(0)")
    A("L_U_gs_ok:")
    A("s_barrier")
    g.stamp(9)
    def gB():
        for n in range(8): A(f"buffer_load_dwordx4 v[{GB+4*n}:{GB+4*n+3}], v{vA}, s[40:43], s{58 if n < 4 else 60} offen offset:{1024*(n&3)} sc1")
    gB()
    g.fine(0)
    def wred(op, r, t):
        for c in ("quad_perm:[1,0,3,2]", "quad_perm:[2,3,0,1]", "row_half_mirror", "row_ror:8"):
            A(f"{op}_dpp v{r}, v{r}, v{r} {c} row_mask:0xf bank_mask:0xf")
        A(f"v_mov_b32 v{t}, v{r}"); A(f"v_permlane16_swap_b32 v{r}, v{t}"); A(f"{op} v{r}, v{r}, v{t}")
    A("ds_read_b64 v[88:89], v19")
    A("s_waitcnt lgkmcnt(0)")
    A("v_mov_b32 v44, v88")
    wred("v_max_f32", 44, 45)
    A("v_sub_f32 v88, v88, v44"); A("v_exp_f32 v88, v88")
    A("v_cvt_pk_bf16_f32 v45, v88, v88")
    A("ds_write_b16 v37, v45")
    A("ds_read_b128 v[28:31], v23")
    A("v_mul_f32 v44, v88, v89")
    wred("v_add_f32", 44, 45)
    A("v_rcp_f32 v44, v44")
    A("s_waitcnt lgkmcnt(0)")
    for n in range(8): g.frag(FC + 4 * n, 28 + (n >> 1), n & 1, SEL)
    A("s_mov_b32 s33, 0x40000")
    A("L_U_gb:")
    for n in range(8):
        A(f"s_waitcnt vmcnt({7-n})")
        g.mfma(32, FC + 4 * n, GB + 4 * n, n == 0)
        if n == 0: A(f"v_max3_u32 v43, v{GB}, v{GB+1}, v{GB+2}"); A(f"v_max_u32 v43, v43, v{GB+3}")
        else: A(f"v_max3_u32 v43, v43, v{GB+4*n}, v{GB+4*n+1}"); A(f"v_max3_u32 v43, v43, v{GB+4*n+2}, v{GB+4*n+3}")
    A("v_cmp_eq_u32 vcc, -1, v43")
    A("s_cbranch_vccz L_U_gb_ok")
    gB()
    g.retry("L_U_gb")
    A("L_U_gb_ok:")
    g.stamp(6)
    for k in range(2): A(f"v_cvt_pk_bf16_f32 v{32+k}, v{32+2*k}, v{33+2*k}")
    A("s_mov_b32 exec_hi, 0")
    A("ds_write_b64 v20, v[32:33]")
    A("s_mov_b32 exec_hi, -1")
    for k in range(2): A(f"ds_read_b128 v[{112+4*k}:{115+4*k}], v22 offset:{16*k}")
    A("s_waitcnt lgkmcnt(0)")
    g.stamp(7); g.fine(1)
    g.frag(72, 112, 0, SEL)
    for n in range(16):
        if n < 15: g.frag(72 + 4 * ((n + 1) & 1), 112 + ((n + 1) >> 1), (n + 1) & 1, SEL)
        g.mfma(32, 72 + 4 * (n & 1), UV + 4 * n, n == 0)
    g.fine(2)
    g.fold(32, 88)
    for r in range(4): A(f"v_mul_f32 v{32+r}, v{32+r}, v44")
    A("s_mov_b64 exec, 0x00ff00ff")
    A("ds_write_b128 v21, v[32:35]")
    A("s_mov_b64 exec, -1")
    A("s_waitcnt lgkmcnt(0)")
    g.stamp(8); g.fine(3)
    A("s_barrier")
    g.fine(4)
    if o.stamps:
        A("L_stamps:")
        A("s_mov_b64 exec, 1")
        A("s_waitcnt lgkmcnt(0)")
    if o.stamps == 3:
        A("v_readfirstlane_b32 s3, v0"); A("s_cmp_lg_u32 s3, 0"); A("s_cbranch_scc1 L_end")
        g.srd0(40, 22, 64); A("v_mov_b32 v2, 0")
        A(f"s_cmp_eq_u32 s2, {o.wt}"); A("s_cbranch_scc1 L_dT")
        A(f"s_cmp_lg_u32 s2, {o.wt + 8}"); A("s_cbranch_scc1 L_end")
        for k, i in enumerate((0, 1, 3, 4, 5, 7, 9, 10)):
            A(f"v_mov_b32 v4, s{72+2*i}"); A(f"buffer_store_dword v4, v2, s[40:43], 0 offen offset:{32+4*k}"); A("s_nop 1")
        A("s_endpgm")
        A("L_dT:")
        for k, i in enumerate((0, 3, 5, 6, 7, 9, 10, 11)):
            A(f"v_mov_b32 v4, s{72+2*i}"); A(f"buffer_store_dword v4, v2, s[40:43], 0 offen offset:{4*k}"); A("s_nop 1")
    elif o.stamps:
        A("v_lshrrev_b32 v2, 6, v0"); A("s_lshl_b32 s3, s2, 3"); A("v_add_u32 v2, s3, v2"); A(f"v_mul_u32_u24 v2, {NST*8}, v2")
        A("s_add_u32 s40, s24, 0x8000000"); A("s_addc_u32 s41, s25, 0"); A("s_mov_b32 s42, 0x1000000"); A("s_mov_b32 s43, 0x20000")
        for i in range(NST):
            A(f"v_mov_b32 v4, s{72+2*i}"); A(f"v_mov_b32 v5, s{73+2*i}")
            A(f"buffer_store_dwordx2 v[4:5], v2, s[40:43], 0 offen offset:{8*i}")
            A("s_nop 1")
    A("L_end:")
    A("s_endpgm")
    lines, nn = hz.fix([l for l in g.L if l is not None])
    body = "\n".join(("" if l.endswith(":") else "    ") + l for l in lines)
    txt = (HDR + f"; @launch grid=(256,1,1) block=(512,1,1) lds={L_END}\n"
        ".amdgcn_target \"amdgcn-amd-amdhsa--gfx950\"\n.text\n"
        f".globl {NAME}_kernel\n.p2align 8\n.type {NAME}_kernel,@function\n{NAME}_kernel:\n" + body + "\n"
        + (f".org {NAME}_kernel+{o.pf*1024}, 0\n" if o.pf else "") +
        ".section .rodata,\"a\"\n.p2align 6\n"
        f".amdhsa_kernel {NAME}_kernel\n  .amdhsa_next_free_vgpr 256\n  .amdhsa_next_free_sgpr 96\n"
        "  .amdhsa_accum_offset 256\n  .amdhsa_group_segment_fixed_size 0\n  .amdhsa_kernarg_size 120\n"
        "  .amdhsa_user_sgpr_count 2\n  .amdhsa_user_sgpr_kernarg_segment_ptr 1\n  .amdhsa_system_sgpr_workgroup_id_x 1\n"
        ".end_amdhsa_kernel\n")
    return txt, nn

def parse(argv):
    ap = argparse.ArgumentParser()
    ap.add_argument("-o", default="k4.s")
    for k, d in dict(stamps=0, tw=7, tk=7, tk2=8, tu=7, to=4, tv=4, npre=0, r0=0, wt=8, k3=0, k3e=1, h1=0, h1w=0, h2=3, vpre=0, hsv=0, hsd=6, hsd2=6, db=0, ubar=1, nto=12, to2=7, hs=0, hinta=0, da=0, hu=0, uearly=0, dn=14, pf=16, dinv=0, dq=0, du=0, dv=0,
                     sleepa=3, sleepb=1, sleepc0=20, sleepc=2, sleepn=8, sleepf=16, hlp=0, hd=6, prew=1, thr=4, nvs=15, nvm=1).items():
        ap.add_argument("--" + k, type=int, default=d)
    for k in ("ldq", "lduk", "ldkv", "ldkv2", "ldo", "lduv"): ap.add_argument("--" + k, default="")
    ap.add_argument("--stb", default="sc1")
    return ap.parse_args(argv)
if __name__ == "__main__":
    o = parse(sys.argv[1:])
    txt, nn = gen(o)
    open(o.o, "w").write(txt)
    print("written", o.o, "nops inserted", nn)
```

```python
import sys, argparse
sys.path.insert(0, "gen")
import hz
NAME = "concat_heads__compressed_kv_cla__compressed_kv_cla__decode"
HDR = open("cdna_kernels/%s.s.ref" % NAME).read().split("; Override launch")[0]

QA = 0x0
QQ = 0x20000
ST = 0x180000
OC = 0xC0000
OB = 0x200000
WS_END = 0x400000
PITCH = 1056
L_QI = 128 * PITCH
L_MISC = L_QI + 16 * PITCH
L_QP = L_MISC
L_MX = L_MISC
L_LS = L_MISC + 1024
L_P = L_MISC + 4096
L_NON = L_MISC + 8192
L_EW = 22528
L_END = L_NON + 16
L_OUTP = 0
L_QS = 16384
L_CX = 20480
L_CC = 21504
SCALE = 0x3e0293ee
NST = 12

class G:
    def __init__(s, opt):
        s.L = []; s.o = opt; s.vm = []
    def A(s, t): s.L.append(t)
    def vmi(s, tag): s.vm.append(tag)
    def vmwait(s, tag):
        if tag not in s.vm: return
        k = len(s.vm) - 1 - max(i for i, t in enumerate(s.vm) if t == tag)
        s.A(f"s_waitcnt vmcnt({k})")
        s.vm = s.vm[len(s.vm) - k:]
    def vmlimit(s, k):
        if len(s.vm) > k:
            s.A(f"s_waitcnt vmcnt({k})"); s.vm = s.vm[len(s.vm) - k:]
    def stamp(s, i):
        if s.o.stamps in (1, 3): s.A(f"s_memrealtime s[{72+2*i}:{73+2*i}]")
    def fine(s, i):
        if s.o.stamps == 2: s.A(f"s_memtime s[{72+2*i}:{73+2*i}]")
    def sleep(s, n):
        while n > 0:
            s.A(f"s_sleep {min(n, 100)}"); n -= 100
    def srd(s, d, base, off, size):
        s.A(f"s_add_u32 s{d}, s{base}, {off}"); s.A(f"s_addc_u32 s{d+1}, s{base+1}, 0")
        s.A(f"s_sub_u32 s{d+2}, {size}, {off}"); s.A(f"s_mov_b32 s{d+3}, 0x20000")
    def srd0(s, d, base, size):
        s.A(f"s_mov_b32 s{d}, s{base}"); s.A(f"s_mov_b32 s{d+1}, s{base+1}"); s.A(f"s_mov_b32 s{d+2}, {size}"); s.A(f"s_mov_b32 s{d+3}, 0x20000")
    def selectors(s, sel, tmp, sel2=None):
        A = s.A
        A(f"v_and_b32 v{tmp}, 1, v1")
        A(f"v_cmp_eq_u32 vcc, 1, v{tmp}")
        A(f"v_mov_b32 v{tmp+1}, 0x0c0c0100"); A(f"v_mov_b32 v{tmp+2}, 0x01000c0c")
        A(f"v_cndmask_b32 v{tmp+1}, v{tmp+1}, v{tmp+2}, vcc")
        A(f"v_mov_b32 v{tmp+2}, 0x0c0c0302"); A(f"v_mov_b32 v{tmp+3}, 0x03020c0c")
        A(f"v_cndmask_b32 v{tmp+2}, v{tmp+2}, v{tmp+3}, vcc")
        A(f"v_mov_b32 v{tmp+3}, 0x0c0c0c0c")
        A(f"v_bfe_u32 v{tmp}, v1, 1, 2")
        for r in range(4):
            A(f"v_cmp_eq_u32 vcc, {r}, v{tmp}")
            A(f"v_cndmask_b32 v{sel+r}, v{tmp+3}, v{tmp+1}, vcc")
            A(f"v_cndmask_b32 v{sel+4+r}, v{tmp+3}, v{tmp+2}, vcc")
        if sel2 is not None:
            A("s_mov_b32 vcc_lo, 0xff0000ff"); A("s_mov_b32 vcc_hi, 0xff0000ff")
            for r in range(8): A(f"v_cndmask_b32 v{sel2+r}, v{tmp+3}, v{sel+r}, vcc")
    def frag(s, dst, src, par, sel):
        for r in range(4): s.A(f"v_perm_b32 v{dst+r}, v{src}, v{src}, v{sel+4*par+r}")
    def fold(s, d, t, n=4):
        for r in range(n): s.A(f"v_mov_b32 v{t+r}, v{d+r}")
        for r in range(n): s.A(f"v_permlane32_swap_b32 v{d+r}, v{t+r}")
        for r in range(n): s.A(f"v_add_f32_dpp v{d+r}, v{t+r}, v{d+r} row_ror:8 row_mask:0xf bank_mask:0xf")
    def xred(s, op, r, t):
        for sw in ("16", "32"):
            s.A(f"v_mov_b32 v{t}, v{r}"); s.A(f"v_permlane{sw}_swap_b32 v{r}, v{t}"); s.A(f"{op} v{r}, v{r}, v{t}")
    def mfma(s, d, a, b, first):
        s.A(f"v_mfma_f32_16x16x32_bf16 v[{d}:{d+3}], v[{a}:{a+3}], v[{b}:{b+3}], " + ("0" if first else f"v[{d}:{d+3}]"))
    def validate(s, first, n, lab_ok):
        A = s.A
        A(f"v_max3_u32 v46, v{first}, v{first+1}, v{first+2}")
        A(f"v_max3_u32 v47, v{first+3}, v{first+4}, v{first+5}")
        k = 6; which = 46
        while k + 1 < n:
            A(f"v_max3_u32 v{which}, v{which}, v{first+k}, v{first+k+1}"); k += 2; which = 93 - which
        A("v_max_u32 v46, v46, v47")
        A("v_cmp_eq_u32 vcc, -1, v46")
        A(f"s_cbranch_vccz {lab_ok}")
    def retry(s, lab, sleep=0):
        if sleep: s.A(f"s_sleep {sleep}")
        s.A("s_sub_u32 s33, s33, 1"); s.A(f"s_cbranch_scc0 {lab}")
    def nonce(s, tag, goff, first=0):
        A = s.A
        A(f"s_add_u32 s34, s22, {goff}"); A("s_addc_u32 s35, s23, 0")
        for r in range(max(first, s.o.r0), 4):
            A(f"s_load_dwordx2 s[54:55], s[34:35], {64*r}"); A("s_waitcnt lgkmcnt(0)")
            A("s_cmp_lg_u32 s54, 0"); A(f"s_cbranch_scc1 L_{tag}_ok")
            A(f"s_sleep {s.o.sleepn}")
        A("s_mov_b32 s33, 0x40000"); A("v_mov_b32 v46, 0")
        A(f"L_{tag}:")
        A(f"buffer_load_dwordx2 v[48:49], v46, s[48:51], {goff} offen offset:192 sc1")
        A("s_waitcnt vmcnt(0)")
        A("v_readfirstlane_b32 s54, v48"); A("v_readfirstlane_b32 s55, v49")
        A("s_cmp_lg_u32 s54, 0"); A(f"s_cbranch_scc1 L_{tag}_ok")
        s.retry(f"L_{tag}", 16)
        A(f"L_{tag}_ok:")
    def fin(s):
        if s.o.stamps: s.A("s_branch L_stamps")
        else: s.A("s_endpgm")

def gen(o):
    g = G(o); A = g.A
    if o.stamps:
        for i in range(NST): A(f"s_mov_b64 s[{72+2*i}:{73+2*i}], 0")
    g.stamp(0)
    A("s_cmp_ge_u32 s2, 256"); A("s_cbranch_scc1 L_end")
    A("s_bfe_u32 s4, s2, 0x10002")
    A("s_mul_i32 s3, s4, 48")
    A("s_add_u32 s34, s0, s3"); A("s_addc_u32 s35, s1, 0")
    A("s_load_dwordx4 s[8:11], s[34:35], 0")
    A("s_load_dwordx4 s[12:15], s[34:35], 16")
    A("s_load_dwordx4 s[16:19], s[34:35], 32")
    A("s_load_dwordx4 s[20:23], s[0:1], 96")
    A("s_load_dwordx2 s[24:25], s[0:1], 112")
    A("v_lshrrev_b32 v4, 6, v0")
    A("v_and_b32 v1, 63, v0")
    A("v_readfirstlane_b32 s31, v4")
    A("s_and_b32 s5, s2, 3"); A("s_lshr_b32 s6, s2, 3"); A("s_and_b32 s7, s6, 7")
    A("s_lshl_b32 s28, s5, 3"); A("s_lshr_b32 s3, s6, 2"); A("s_add_u32 s28, s28, s3")
    A("s_and_b32 s27, s28, 30")
    A("s_bfe_u32 s29, s6, 0x10001"); A("s_and_b32 s30, s6, 1")
    A("s_lshl_b32 s26, s4, 5"); A("s_add_u32 s26, s26, s28")
    vL16 = 7
    A(f"v_lshlrev_b32 v{vL16}, 4, v1")
    A("s_cmp_ge_u32 s31, 4"); A("s_cbranch_scc1 L_S")
    SEL = 8; SEL2 = 16; XV = 52; FR = 32; ACC = 40; WQ = 64; UK = 140
    vWQ, vX, vUK, vWO = 2, 3, 5, 6
    NT = o.nt; NU = 20 - o.nt
    A("v_lshrrev_b32 v4, 5, v1"); A("v_and_b32 v44, 31, v1")
    A("s_lshr_b32 s3, s7, 1"); A("s_lshl_b32 s3, s3, 2"); A("s_add_u32 s65, s3, s31")
    A("s_cmp_eq_u32 s30, 0"); A(f"s_cselect_b32 s39, {2*NU}, {2*NT}"); A(f"s_cselect_b32 s37, 0, {64*NU}")
    A("s_mul_i32 s3, s65, s39"); A("s_lshl_b32 s3, s3, 1"); A("s_add_u32 s37, s37, s3")
    A(f"v_mul_u32_u24 v{vX}, s39, v4"); A(f"v_lshlrev_b32 v{vWQ}, 12, v{vX}"); A(f"v_lshl_add_u32 v{vWQ}, v44, 4, v{vWQ}")
    A("s_lshl_b32 s36, s37, 12"); A("s_lshl_b32 s38, s27, 8"); A("s_add_u32 s36, s36, s38")
    A("s_mov_b32 s39, 0")
    A("s_waitcnt lgkmcnt(0)")
    g.stamp(1)
    g.srd0(40, 8, 1280)
    g.srd(44, 12, "s36", 5242880)
    A(f"buffer_load_dwordx4 v[{XV}:{XV+3}], v{vX}, s[40:43], s37 offen"); g.vmi("x")
    A(f"buffer_load_dwordx4 v[{XV+4}:{XV+7}], v{vX}, s[40:43], s37 offen offset:16"); g.vmi("x")
    def ld_wq(n):
        A(f"buffer_load_dwordx4 v[{WQ+4*n}:{WQ+4*n+3}], v{vWQ}, s[44:47], s39 offen {o.ldq}"); g.vmi(("wq", n))
        A("s_add_u32 s39, s39, 8192")
    NW0 = min(o.tw, NU)
    for n in range(NW0): ld_wq(n)
    g.selectors(SEL, 46, SEL2)
    A("s_mov_b32 s40, s24"); A("s_mov_b32 s41, s25"); A(f"s_mov_b32 s42, {WS_END}")
    A("v_lshlrev_b32 v30, 9, v4"); A("v_and_b32 v46, 15, v1"); A("v_lshl_add_u32 v30, v46, 5, v30"); A("v_and_b32 v47, 16, v1"); A("v_add_u32 v30, v30, v47")
    A("s_lshl_b32 s3, s31, 10"); A(f"s_add_u32 s3, s3, {L_QP}"); A("v_add_u32 v30, s3, v30")
    A("s_lshl_b32 s3, s31, 8"); A(f"s_add_u32 s3, s3, {L_QP}"); A("v_lshl_add_u32 v31, v1, 3, s3")
    A("s_lshr_b32 s62, s26, 1"); A("s_lshl_b32 s62, s62, 3"); A("s_add_u32 s62, s62, s7"); A("s_lshl_b32 s62, s62, 2"); A("s_add_u32 s62, s62, s31")
    A("s_lshl_b32 s62, s62, 9"); A(f"s_add_u32 s62, s62, {QQ}")
    A(f"v_mov_b32 v29, {L_NON}")
    A("s_cmp_eq_u32 s30, 0"); A("s_cbranch_scc1 L_PU")
    vm_save = list(g.vm)
    def q_part(nxt, depth, NQ):
        todo = list(range(NW0, NQ))
        def step():
            if todo: ld_wq(todo.pop(0))
            else: nxt()
        while len(g.vm) < depth + 2: step()
        g.vmwait("x")
        g.frag(FR, XV, 0, SEL2)
        for n in range(NQ):
            g.vmwait(("wq", n))
            while len(g.vm) < depth: step()
            if n < NQ - 1: g.frag(FR + 4 * ((n + 1) & 1), XV + ((n + 1) >> 1), (n + 1) & 1, SEL2)
            g.mfma(ACC, FR + 4 * (n & 1), WQ + 4 * n, n == 0)
        A(f"ds_write_b128 v30, v[{ACC}:{ACC+3}]")
        A("s_waitcnt lgkmcnt(0)")
        g.stamp(2)
        A("s_barrier")
        g.stamp(3)
        for w in range(4): A(f"ds_read_b64 v[{32+2*w}:{33+2*w}], v31 offset:{1024*w}")
        A("ds_read_b64 v[42:43], v29")
        g.vmlimit(depth - 1); nxt()
        A("s_waitcnt lgkmcnt(0)")
        for r in range(2): A(f"v_add_f32 v{32+r}, v{32+r}, v{34+r}")
        for r in range(2): A(f"v_add_f32 v{36+r}, v{36+r}, v{38+r}")
        for r in range(2): A(f"v_add_f32 v{40+r}, v{32+r}, v{36+r}")
        A("s_mov_b32 exec_hi, 0")
        A(f"buffer_store_dwordx4 v[40:43], v{vL16}, s[40:43], s62 offen sc1"); g.vmi("qq")
        A("s_mov_b32 exec_hi, -1")
    A("s_lshl_b32 s3, s28, 17")
    g.srd(52, 10, "s3", 4194304)
    if o.rot: A("s_lshl_b32 s64, s29, 2"); A("s_add_u32 s64, s64, s31")
    else: A("s_mov_b32 s64, s31")
    A("s_xor_b32 s65, s64, 4"); A("s_lshl_b32 s64, s64, 14"); A("s_lshl_b32 s65, s65, 14")
    A(f"s_mul_i32 s66, s31, {32*PITCH}")
    kp = [0]
    hu = list(range(15, 15 - o.hu, -1))
    if o.hu:
        A("s_lshr_b32 s3, s7, 1"); A("s_lshl_b32 s3, s3, 2"); A("s_add_u32 s3, s3, s31"); A("s_lshl_b32 s3, s3, 18"); A("s_add_u32 s3, s3, s38")
        g.srd(48, 14, "s3", 4194304)
        A(f"v_lshlrev_b32 v{vUK}, 17, v4"); A(f"v_lshl_add_u32 v{vUK}, v44, 4, v{vUK}")
    def nxt_kv():
        if hu:
            A(f"s_mov_b32 s67, {8192*hu.pop(0)}")
            A(f"buffer_load_dwordx4 v[140:143], v{vUK}, s[48:51], s67 offen"); g.vmi("hu")
            return
        k = kp[0]
        if k >= 32: return
        kp[0] += 1
        so = "s64" if k < 16 else "s65"
        A("s_mov_b32 m0, s66"); A(f"s_add_u32 s66, s66, {PITCH}")
        A(f"buffer_load_dwordx4 v{vL16}, s[52:55], {so} offen {o.ldkv if k < 16 else o.ldkv2} lds"); g.vmi("kv")
        A(f"s_add_u32 {so}, {so}, 1024")
    q_part(nxt_kv, o.tk, NT)
    vK = 21; vQ = 22; vT0 = 23; vT1 = 24; vB = 26
    GA = 28; QR = 48; SA = 112; PF = 92; KF = 128; OA = 48; PK = 28
    A("v_mov_b32 v16, v42"); A("v_mov_b32 v17, v43")
    A("v_and_b32 v46, 15, v1"); A("v_lshrrev_b32 v47, 4, v1")
    A(f"v_mul_u32_u24 v{vQ}, {PITCH}, v46"); A(f"v_lshl_add_u32 v{vQ}, v47, 4, v{vQ}")
    A(f"s_mul_i32 s3, s31, {32*PITCH}"); A(f"v_add_u32 v{vK}, s3, v{vQ}"); A(f"v_add_u32 v{vQ}, {L_QI}, v{vQ}")
    def st_ob_addr(hi):
        A("s_lshl_b32 s68, s31, 1")
        if hi: A("s_add_u32 s68, s68, 1")
        A("s_lshl_b32 s60, s4, 1"); A("s_add_u32 s60, s60, s29")
        A("s_lshl_b32 s61, s60, 5"); A("s_add_u32 s61, s61, s28"); A("s_lshl_b32 s61, s61, 8"); A(f"s_add_u32 s61, s61, {ST}")
        A("s_lshl_b32 s60, s60, 9"); A("s_add_u32 s60, s60, s28"); A("s_lshl_b32 s60, s60, 3"); A("s_add_u32 s60, s60, s68"); A("s_lshl_b32 s60, s60, 7"); A(f"s_add_u32 s60, s60, {OB}")
    def pv_addr():
        A("v_and_b32 v46, 15, v1")
        A("v_lshrrev_b32 v44, 2, v1"); A(f"v_mul_u32_u24 v{vT0}, {PITCH}, v44"); A("v_and_b32 v44, 3, v1"); A(f"v_lshl_add_u32 v{vT0}, v44, 3, v{vT0}")
        A("s_lshl_b32 s3, s68, 7"); A(f"v_add_u32 v{vT0}, s3, v{vT0}"); A(f"v_add_u32 v{vT1}, {64*PITCH}, v{vT0}")
        A(f"v_lshlrev_b32 v{vB}, 15, v46"); A("v_and_b32 v44, 16, v1"); A(f"v_lshl_add_u32 v{vB}, v44, 1, v{vB}")
        A("v_lshrrev_b32 v44, 5, v1"); A(f"v_lshl_add_u32 v{vB}, v44, 4, v{vB}")
        A(f"v_add_u32 v27, {L_MX}, v{vL16}"); A(f"v_add_u32 v20, {L_P}, v{vL16}")
    st_ob_addr(0); pv_addr()
    A("s_lshl_b32 s3, s31, 2"); A("v_add_u32 v25, s3, v27")
    A("s_lshl_b32 s3, s31, 10"); A("v_add_u32 v19, s3, v20")
    while kp[0] < 32:
        if o.tearly and kp[0] == 32 - o.tearly: A("s_barrier")
        g.vmlimit((o.tk if kp[0] < 16 else o.tk2) - 1); nxt_kv()
    if not o.tearly: A("s_barrier")
    g.stamp(5)
    A("s_waitcnt vmcnt(0)"); g.vm = []
    g.stamp(6)
    for kk in range(16):
        for t in range(2):
            d = KF + 4 * (2 * kk + t)
            A(f"ds_read_b128 v[{d}:{d+3}], v{vK} offset:{16*t*PITCH + 64*kk}")
    A("s_barrier")
    g.stamp(7); g.fine(0)
    if o.prio: A(f"s_setprio {o.prio}")
    vfr = [(ct, ks) for ct in range(4) for ks in range(4)]
    lg = []
    def lgw(tag):
        if tag not in lg: return
        k = len(lg) - 1 - max(i for i, t in enumerate(lg) if t == tag)
        A(f"s_waitcnt lgkmcnt({min(k,15)})"); del lg[:len(lg) - min(k, 15)]
    vi = [0]
    def rdv():
        idx = vi[0]
        if idx >= 16: return
        vi[0] += 1
        ct, ks = vfr[idx]; d = KF + 4 * idx
        base = vT0 if ks < 2 else vT1
        for hf in range(2):
            A(f"ds_read_b64_tr_b16 v[{d+2*hf}:{d+2*hf+1}], v{base} offset:{(32*(ks&1)+16*hf)*PITCH + 32*ct}"); lg.append(("v", idx))
    def rdq(kk):
        A(f"ds_read_b128 v[{QR+4*kk}:{QR+4*kk+3}], v{vQ} offset:{64*kk}"); lg.append(("q", kk))
    for kk in range(6): rdq(kk)
    for kk in range(16):
        lgw(("q", kk))
        for t in range(2): g.mfma(SA + 4 * t, KF + 4 * (2 * kk + t), QR + 4 * kk, kk == 0)
        if kk == 0: g.fine(1)
        if kk == 7: g.fine(2)
        if kk == 15: g.fine(3)
        if kk + 6 < 16: rdq(kk + 6)
        if 1 <= kk <= o.nvs: rdv()
    A(f"s_mov_b32 s3, {SCALE}")
    A(f"v_max3_f32 v46, v{SA}, v{SA+1}, v{SA+2}"); A(f"v_max3_f32 v47, v{SA+4}, v{SA+5}, v{SA+6}")
    A(f"v_max3_f32 v46, v46, v{SA+3}, v{SA+7}"); A("v_max_f32 v46, v46, v47")
    g.xred("v_max_f32", 46, 47)
    A("ds_write_b32 v25, v46")
    g.fine(4)
    A(f"v_mul_f32 v45, s3, v46")
    for r in range(8): A(f"v_fma_f32 v{SA+r}, v{SA+r}, s3, -v45")
    A("s_waitcnt lgkmcnt(0)"); lg.clear()
    A("s_barrier")
    g.fine(5)
    A(f"ds_read_b128 v[{GA}:{GA+3}], v27"); lg.append("mx")
    for _ in range(o.nvm): rdv()
    for r in range(8): A(f"v_exp_f32 v{SA+r}, v{SA+r}")
    lgw("mx")
    A(f"v_max3_f32 v46, v{GA}, v{GA+1}, v{GA+2}"); A(f"v_max_f32 v46, v46, v{GA+3}")
    A(f"v_mul_f32 v44, s3, v46")
    A("v_sub_f32 v45, v45, v44"); A("v_exp_f32 v45, v45")
    for r in range(8): A(f"v_mul_f32 v{SA+r}, v{SA+r}, v45")
    for k in range(4): A(f"v_cvt_pk_bf16_f32 v{GA+k}, v{SA+2*k}, v{SA+2*k+1}")
    A(f"ds_write_b128 v19, v[{GA}:{GA+3}]")
    for k in range(4): A(f"v_add_f32 v{SA+k}, v{SA+k}, v{SA+4+k}")
    A(f"v_add_f32 v{SA}, v{SA}, v{SA+1}"); A(f"v_add_f32 v{SA+2}, v{SA+2}, v{SA+3}"); A(f"v_add_f32 v{SA}, v{SA}, v{SA+2}")
    A(f"ds_write_b32 v25, v{SA} offset:{L_LS - L_MX}")
    g.fine(6)
    A("s_waitcnt lgkmcnt(0)"); lg.clear()
    A("s_barrier")
    g.stamp(8); g.fine(7)
    def pv(fine):
        for w in range(4): A(f"ds_read_b128 v[{PF+4*w}:{PF+4*w+3}], v20 offset:{1024*w}"); lg.append(("p", w))
        if fine: A(f"ds_read_b128 v[{SA}:{SA+3}], v27 offset:{L_LS - L_MX}"); lg.append("ls")
        def pack(ct):
            a = OA + 4 * ct
            A(f"v_cvt_pk_bf16_f32 v{PK+2*ct}, v{a}, v{a+1}"); A(f"v_cvt_pk_bf16_f32 v{PK+2*ct+1}, v{a+2}, v{a+3}")
        def ship(p):
            b = PK + 4 * p
            A(f"v_permlane16_swap_b32 v{b}, v{b+2}"); A(f"v_permlane16_swap_b32 v{b+1}, v{b+3}")
            A(f"buffer_store_dwordx4 v[{b}:{b+3}], v{vB}, s[40:43], s60 offen offset:{64*p} {o.stb}")
        for ct in range(4):
            for ks in range(4):
                lgw(("p", ks)); lgw(("v", 4 * ct + ks))
                g.mfma(OA + 4 * ct, KF + 4 * (4 * ct + ks), PF + 4 * ks, ks == 0)
                if ct == 0 and ks == 0: g.fine(8)
                if ct == 3 and ks == 3: g.fine(9)
                if fine and ct == 1 and ks == 0:
                    lgw("ls")
                    A(f"v_add_f32 v45, v{SA}, v{SA+1}"); A(f"v_add_f32 v46, v{SA+2}, v{SA+3}"); A("v_add_f32 v45, v45, v46")
                if fine and ct == 1 and ks == 2: g.xred("v_add_f32", 45, 46); A("v_mov_b32 v46, v16"); A("v_mov_b32 v47, v17")
                if ct == 2 and ks == 1: pack(0)
                if ct == 2 and ks == 3: pack(1)
                if ct == 3 and ks == 1: ship(0)
                if ct == 3 and ks == 3: pack(2)
        pack(3); ship(1)
        g.fine(11)
        A("s_barrier")
        if fine:
            A("s_cmp_lg_u32 s31, 0"); A("s_cbranch_scc1 L_T_nost")
            A("s_mov_b64 exec, 0xffff")
            A(f"buffer_store_dwordx4 v[44:47], v{vL16}, s[40:43], s61 offen sc1")
            A("s_mov_b64 exec, -1")
            A("L_T_nost:")
    while vi[0] < 16: rdv()
    pv(True)
    g.stamp(9); g.fine(10)
    if o.stamps == 1: A("s_waitcnt vmcnt(0)"); g.stamp(4)
    A("s_cmp_lg_u32 s31, 0"); A("s_cbranch_scc1 L_fin")
    A("s_cmp_ge_u32 s6, 20"); A("s_cbranch_scc1 L_fin")
    A("s_mul_i32 s3, s5, 10"); A("s_lshr_b32 s52, s6, 1"); A("s_add_u32 s3, s3, s52")
    A("v_lshrrev_b32 v46, 3, v1"); A(f"v_mul_u32_u24 v25, 5120, v46"); A("v_and_b32 v46, 7, v1"); A(f"v_lshl_add_u32 v25, v46, 4, v25")
    A(f"s_mul_i32 s52, s4, {64*5120}"); A("s_lshl_b32 s53, s3, 7"); A("s_add_u32 s52, s52, s53"); A(f"s_add_u32 s52, s52, {OC}")
    for n in range(1, 8): A(f"s_add_u32 s{52+n}, s{51+n}, {8*5120}")
    A("s_mul_i32 s61, s4, 1280"); A("s_lshl_b32 s3, s3, 5"); A("s_add_u32 s61, s61, s3")
    g.srd0(44, 20, 2560)
    g.srd0(48, 22, 256)
    A("s_lshl_b32 s67, s4, 5"); A("v_mov_b32 v26, 0"); A("v_lshlrev_b32 v27, 2, v1")
    A("s_mov_b32 s33, 0x40000")
    A("L_R_non:")
    A("buffer_load_dwordx4 v[28:31], v26, s[48:51], s67 offen offset:192 sc1"); A("buffer_load_dwordx4 v[32:35], v26, s[48:51], s67 offen offset:208 sc1")
    A("s_waitcnt vmcnt(0)")
    A("v_min_u32 v46, v28, v30"); A("v_min3_u32 v46, v46, v32, v34"); A("v_cmp_eq_u32 vcc, 0, v46")
    A("s_cbranch_vccz L_R_non_ok")
    g.retry("L_R_non", 8)
    A("L_R_non_ok:")
    g.sleep(o.sleepc0)
    GC = 52
    A("s_mov_b32 s33, 0x40000")
    A("L_T_gc:")
    for n in range(8): A(f"buffer_load_dwordx4 v[{GC+4*n}:{GC+4*n+3}], v25, s[40:43], s{52+n} offen sc1")
    for n in range(8):
        A(f"s_waitcnt vmcnt({7-n})")
        d = "vcc" if n == 0 else "s[62:63]"
        A(f"v_cmp_ne_u64 {d}, v[{GC+4*n+2}:{GC+4*n+3}], v[{28+2*(n>>1)}:{29+2*(n>>1)}]")
        if n & 1:
            for r in range(2): A(f"v_add_f32 v{GC+4*n+r}, v{GC+4*n+r}, v{GC+4*n-4+r}")
        if n: A("s_or_b64 vcc, vcc, s[62:63]")
    A("s_cbranch_vccz L_T_gc_ok")
    g.retry("L_T_gc", o.sleepc)
    A("L_T_gc_ok:")
    g.stamp(10)
    for r in range(2): A(f"v_add_f32 v{GC+r}, v{GC+4+r}, v{GC+12+r}")
    for r in range(2): A(f"v_add_f32 v{GC+4+r}, v{GC+20+r}, v{GC+28+r}")
    for r in range(2): A(f"v_add_f32 v{GC+r}, v{GC+r}, v{GC+4+r}")
    for r in range(2): A(f"v_add_f32_dpp v{GC+r}, v{GC+r}, v{GC+r} row_ror:8 row_mask:0xf bank_mask:0xf")
    for sw in ("16", "32"):
        for r in range(2): A(f"v_mov_b32 v{GC+4+r}, v{GC+r}")
        for r in range(2): A(f"v_permlane{sw}_swap_b32 v{GC+r}, v{GC+4+r}")
        for r in range(2): A(f"v_add_f32 v{GC+r}, v{GC+r}, v{GC+4+r}")
    A(f"v_cvt_pk_bf16_f32 v{GC}, v{GC}, v{GC+1}")
    A("s_mov_b64 exec, 0xff")
    A(f"buffer_store_dword v{GC}, v27, s[44:47], s61 offen")
    if o.stamps: A("s_waitcnt vmcnt(0)"); g.stamp(11)
    A("L_fin:")
    g.fin()
    A("L_PU:")
    g.vm = list(vm_save)
    A("s_lshl_b32 s3, s65, 18"); A("s_add_u32 s3, s3, s38")
    g.srd(48, 14, "s3", 4194304)
    A(f"v_lshlrev_b32 v{vUK}, 17, v4"); A(f"v_lshl_add_u32 v{vUK}, v44, 4, v{vUK}")
    A("s_mov_b32 s66, 0")
    wsrd = [56]
    def wo_addr(cb):
        A("s_lshl_b32 s3, s28, 1"); A("s_add_u32 s3, s3, s29"); A("s_mul_i32 s63, s3, 81920")
        A(f"s_lshl_b32 s3, {cb}, 8"); A("s_add_u32 s63, s63, s3")
        g.srd(wsrd[0], 18, "s63", 5242880)
        A(f"v_lshrrev_b32 v47, 4, v1"); A(f"v_mul_u32_u24 v{vWO}, 20480, v47"); A("v_and_b32 v46, 15, v1"); A(f"v_lshl_add_u32 v{vWO}, v46, 4, v{vWO}")
        A("s_mov_b32 s64, 0")
    wo_addr("s31")
    useq = [("uk", n) for n in range(16)] + [("wo", i) for i in range(16)]
    up = [0]
    def wo_reg(i): return 96 + 4 * i if i < 11 else 204 + 4 * (i - 11)
    def ld_wo(n, d):
        A(f"buffer_load_dwordx4 v[{d}:{d+3}], v{vWO}, s[{wsrd[0]}:{wsrd[0]+3}], s64 offen offset:{1280*(n%3)} {o.ldo}")
        if n % 3 == 2: A("s_add_u32 s64, s64, 3840")
    def nxt_u():
        if up[0] >= len(useq): return
        k, n = useq[up[0]]; up[0] += 1
        if k == "uk":
            A(f"buffer_load_dwordx4 v[{UK+4*n}:{UK+4*n+3}], v{vUK}, s[48:51], s66 offen {o.lduk}")
            if n < 15: A("s_add_u32 s66, s66, 8192")
        else:
            ld_wo(n, wo_reg(n))
        g.vmi((k, n))
    q_part(nxt_u, o.tu, NU)
    A("v_mov_b32 v26, v42"); A("v_mov_b32 v27, v43")
    A(f"v_lshlrev_b32 v46, 5, v44"); A(f"v_add_u32 v46, {L_QS}, v46")
    A("v_and_b32 v2, 16, v1"); A("v_lshlrev_b32 v2, 7, v2"); A("v_lshl_add_u32 v2, v4, 6, v2"); A("v_and_b32 v3, 12, v1"); A("v_lshl_add_u32 v2, v3, 2, v2")
    A("s_and_b32 s62, s26, 62"); A("s_lshl_b32 s62, s62, 4"); A("s_add_u32 s62, s62, s65"); A("s_lshl_b32 s62, s62, 7")
    while up[0] < 16 - o.uearly:
        g.vmlimit(o.tu - 1); nxt_u()
    A("s_barrier")
    while up[0] < 16 + o.npre:
        g.vmlimit(o.tu - 1); nxt_u()
    A("s_barrier")
    QP = 56; PP = 60
    for w in range(4):
        A(f"ds_read_b128 v[{60+8*w}:{63+8*w}], v46 offset:{1024*w}"); A(f"ds_read_b128 v[{64+8*w}:{67+8*w}], v46 offset:{1024*w+16}")
    A("s_waitcnt lgkmcnt(0)")
    for k in range(8): A(f"v_add_f32 v{60+k}, v{60+k}, v{68+k}")
    for k in range(8): A(f"v_add_f32 v{76+k}, v{76+k}, v{84+k}")
    for k in range(8): A(f"v_add_f32 v{48+k}, v{60+k}, v{76+k}")
    for k in range(4): A(f"v_cvt_pk_bf16_f32 v{QP+k}, v{48+2*k}, v{49+2*k}")
    for n0 in (0, 8):
        g.vmwait(("uk", n0 + 7))
        for k in range(4):
            for n in range(n0, n0 + 8):
                if k == 0: A(f"v_dot2_f32_bf16 v{PP+n}, v{UK+4*n}, v{QP}, 0")
                else: A(f"v_dot2c_f32_bf16 v{PP+n}, v{UK+4*n+k}, v{QP+k}")
        if n0 == 0:
            for n in range(8): A(f"v_add_f32_dpp v{PP+n}, v{PP+n}, v{PP+n} row_ror:8 row_mask:0xf bank_mask:0x3")
    for n in range(8): A(f"v_add_f32_dpp v{PP+n}, v{PP+n+8}, v{PP+n+8} row_ror:8 row_mask:0xf bank_mask:0xc")
    for n in range(4): A(f"v_add_f32_dpp v{PP+n}, v{PP+n}, v{PP+n} row_half_mirror row_mask:0xf bank_mask:0x5")
    for n in range(4): A(f"v_add_f32_dpp v{PP+n}, v{PP+n+4}, v{PP+n+4} row_half_mirror row_mask:0xf bank_mask:0xa")
    for n in range(4): A(f"v_add_f32_dpp v{PP+n}, v{PP+n}, v{PP+n} quad_perm:[2,3,0,1] row_mask:0xf bank_mask:0xf")
    for n in range(4): A(f"v_add_f32_dpp v{PP+n}, v{PP+n}, v{PP+n} quad_perm:[1,0,3,2] row_mask:0xf bank_mask:0xf")
    A(f"v_cvt_pk_bf16_f32 v24, v{PP}, v{PP+1}"); A(f"v_cvt_pk_bf16_f32 v25, v{PP+2}, v{PP+3}")
    A("s_mov_b32 exec_lo, 0x11111111"); A("s_mov_b32 exec_hi, 0x11111111")
    A(f"buffer_store_dwordx4 v[24:27], v2, s[40:43], s62 offen sc1"); g.vmi("qa")
    A("s_mov_b64 exec, -1")
    g.stamp(4)
    def p7_addr(cb, wv):
        A(f"v_lshlrev_b32 v44, 2, v1"); A(f"v_add_u32 v44, {L_CX}, v44")
        A(f"s_lshl_b32 s3, {wv}, 7"); A(f"s_add_u32 s3, s3, {L_OUTP}"); A("v_lshl_add_u32 v46, v1, 1, s3")
        A("v_lshrrev_b32 v47, 4, v1"); A("v_lshl_add_u32 v47, v47, 5, s3")
        A("v_and_b32 v45, 15, v1"); A("v_lshlrev_b32 v45, 6, v45"); A("v_and_b32 v48, 16, v1"); A("v_lshl_add_u32 v45, v48, 1, v45"); A("v_lshrrev_b32 v48, 5, v1"); A("v_lshl_add_u32 v45, v48, 4, v45")
        A("s_lshl_b32 s62, s26, 1"); A("s_add_u32 s62, s62, s29"); A("s_mul_i32 s62, s62, 5"); A(f"s_add_u32 s62, s62, {cb}"); A("s_lshl_b32 s62, s62, 10"); A(f"s_add_u32 s62, s62, {OC}")
    p7_addr("s31", "s31")
    if o.stamps == 1: A("s_waitcnt vmcnt(0)"); g.stamp(6)
    g.sleep(o.du)
    while up[0] < len(useq):
        if o.ubar and up[0] == len(useq) - o.ubar + 1: A("s_barrier")
        g.vmlimit((o.to if up[0] < 16 + o.nto else o.to2) - 1); nxt_u()
    if o.ubar == 1: A("s_barrier")
    g.stamp(5)
    A("s_barrier")
    g.stamp(7); g.fine(0)
    def p7(reg, fine):
        for w in range(4): A(f"ds_read_b32 v{80+w}, v44 offset:{256*w}")
        A("s_waitcnt lgkmcnt(0)")
        A("v_add_f32 v80, v80, v81"); A("v_add_f32 v82, v82, v83"); A("v_add_f32 v80, v80, v82")
        A("v_cvt_pk_bf16_f32 v80, v80, v80")
        A("ds_write_b16 v46, v80")
        A("ds_read_b128 v[56:59], v47"); A("ds_read_b128 v[60:63], v47 offset:16")
        A("s_waitcnt lgkmcnt(0)")
        if fine: g.fine(1)
        g.frag(64, 56, 0, SEL)
        for n in range(16):
            if n < 15: g.frag(64 + 4 * ((n + 1) & 1), 56 + ((n + 1) >> 1), (n + 1) & 1, SEL)
            g.vmwait(("wo", n))
            g.mfma(72, 64 + 4 * (n & 1), reg(n), n == 0)
        if fine: g.stamp(8); g.fine(2); g.fine(3)
        A("v_mov_b32 v24, v72"); A("v_mov_b32 v25, v73")
        for r in range(2): A(f"v_mov_b32_dpp v{24+r}, v{74+r} quad_perm:[0,1,2,3] row_mask:0xc bank_mask:0xf")
        A(f"buffer_store_dwordx4 v[24:27], v45, s[40:43], s62 offen sc1")
    p7(wo_reg, True)
    g.stamp(9); g.fine(4)
    if o.stamps: A("s_waitcnt vmcnt(0)"); g.stamp(10); g.fine(5)
    g.fin()
    g.vm = []
    A("L_S:")
    A("s_sub_u32 s31, s31, 4")
    SEN = 16; vA = 25; vB = 26
    for r in range(4): A(f"v_mov_b32 v{SEN+r}, -1")
    A("v_mov_b32 v44, 0"); A(f"v_mov_b32 v39, {L_NON}")
    A("s_lshl_b32 s67, s4, 5")
    A("s_waitcnt lgkmcnt(0)")
    g.stamp(1)
    g.srd0(40, 24, WS_END)
    g.srd0(48, 22, 256)
    A("s_cmp_lg_u32 s31, 0"); A("s_cbranch_scc1 L_S_w123")
    A("s_and_b32 s52, s2, 7"); A("s_lshl_b32 s52, s52, 3")
    A("s_cmp_lg_u32 s6, 0"); A("s_cbranch_scc1 L_S_nolead")
    A("s_memrealtime s[54:55]"); A("v_lshlrev_b32 v45, 6, v1"); A("s_waitcnt lgkmcnt(0)"); A("s_or_b32 s54, s54, 1")
    A("v_mov_b32 v46, s54"); A("v_mov_b32 v47, s55")
    A(f"s_mov_b64 exec, {15 & ~((1 << o.r0) - 1)}")
    A("buffer_store_dwordx2 v[46:47], v45, s[48:51], s52 offen sc1")
    A("s_mov_b64 exec, -1")
    A("s_branch L_S_np_ok")
    A("L_S_nolead:")
    g.sleep(o.dn)
    g.nonce("S_np", "s52")
    A("v_mov_b32 v46, s54"); A("v_mov_b32 v47, s55")
    A("ds_write_b64 v39, v[46:47]"); A("ds_write_b32 v39, v44 offset:8")
    A("s_waitcnt lgkmcnt(0)")
    g.stamp(2)
    A("L_S_w123:")
    if o.pf:
        A("s_cmp_lg_u32 s31, 2"); A("s_cbranch_scc1 L_S_npf")
        A("s_getpc_b64 s[34:35]")
        A("L_pc:")
        A(f"s_sub_u32 s34, s34, L_pc-{NAME}_kernel"); A("s_subb_u32 s35, s35, 0")
        A(f"s_and_b32 s3, s6, {o.pf-1}"); A("s_lshl_b32 s3, s3, 10"); A(f"v_add_u32 v46, s3, v{vL16}")
        A(f"global_load_dwordx4 v[200:203], v46, s[34:35]")
        A("L_S_npf:")
    A("s_cmp_eq_u32 s30, 0"); A("s_cbranch_scc1 L_SU")
    vB = 26
    st_ob_addr(0)
    A("v_lshrrev_b32 v38, 4, v1"); A("v_lshlrev_b32 v38, 15, v38"); A("v_and_b32 v37, 15, v1"); A("v_lshl_add_u32 v38, v37, 4, v38")
    A("s_barrier")
    g.stamp(3)
    def inval():
        for n in range(4):
            A(f"buffer_store_dwordx4 v[{SEN}:{SEN+3}], v38, s[40:43], s62 offen sc1")
            if n < 3: A("s_add_u32 s62, s62, 131072")
    A("s_mov_b32 s62, s60")
    if not o.latei:
        g.sleep(o.dinv); inval()
    st_ob_addr(1); pv_addr()
    A("s_waitcnt vmcnt(0)")
    A("s_lshl_b32 s52, s29, 1"); A("s_lshr_b32 s3, s31, 1"); A("s_add_u32 s52, s52, s3"); A("s_lshl_b32 s52, s52, 3"); A("s_add_u32 s52, s52, s67")
    g.nonce("T_np", "s52", 3)
    g.stamp(4)
    A("s_lshl_b32 s52, s4, 1"); A("s_add_u32 s52, s52, s29"); A("s_lshl_b32 s52, s52, 2"); A("s_add_u32 s52, s52, s31"); A("s_lshl_b32 s52, s52, 13"); A("s_add_u32 s53, s52, 4096")
    A(f"s_mul_i32 s3, s31, {4*PITCH}"); A(f"s_add_u32 s3, s3, {L_QI}"); A(f"v_lshl_add_u32 v{vA}, v1, 3, s3")
    if o.k3:
        A("s_lshr_b32 s3, s6, 4"); A("s_lshl_b32 s3, s3, 10"); A("s_lshl_b32 s36, s5, 11"); A("s_add_u32 s3, s3, s36"); A("s_add_u32 s3, s3, 384")
        A("s_lshl_b32 s36, s31, 20"); A("s_add_u32 s3, s3, s36")
        g.srd(48, 16, "s3", 4194304)
        A("s_bfe_u32 s3, s6, 0x30001"); A("s_sub_u32 s69, 15, s3"); A("s_lshl_b32 s69, s69, 13")
        A("v_lshrrev_b32 v10, 3, v1"); A("v_lshlrev_b32 v10, 17, v10"); A("v_and_b32 v8, 7, v1"); A("v_lshl_add_u32 v10, v8, 4, v10")
    if o.hsv:
        wsrd[0] = 56; wo_addr("s31")
        A("s_lshl_b32 s3, s31, 20"); A("s_lshl_b32 s36, s28, 8"); A("s_add_u32 s3, s3, s36"); A("s_lshl_b32 s36, s29, 7"); A("s_add_u32 s3, s3, s36")
        g.srd(44, 16, "s3", 4194304)
        A("v_lshrrev_b32 v9, 3, v1"); A("v_lshlrev_b32 v9, 17, v9"); A("v_and_b32 v8, 7, v1"); A("v_lshl_add_u32 v9, v8, 4, v9")
    hs = [0]
    def helps(n):
        for _ in range(n):
            i = hs[0]
            if i >= o.hsv: return
            hs[0] += 1
            if i % 2 == 0: A(f"s_movk_i32 s63, {1280*(15 - i // 2)}"); A(f"buffer_load_dwordx4 v[124:127], v6, s[56:59], s63 offen")
            else: A(f"s_mov_b32 s63, {8192*(15 - i // 2)}"); A(f"buffer_load_dwordx4 v[124:127], v9, s[44:47], s63 offen")
    def k3():
        for n in range(o.k3):
            A("buffer_load_dwordx4 v[124:127], v10, s[48:51], s69 offen")
            if n == 0 and o.k3 > 1: A("s_sub_u32 s69, s69, 65536")
    if o.k3 and o.k3e: k3()
    A("s_barrier")
    GA = 48
    A("v_and_b32 v37, 15, v1"); A("v_lshlrev_b32 v37, 7, v37"); A("v_and_b32 v36, 16, v1"); A("v_lshl_add_u32 v37, v36, 8, v37")
    g.sleep(o.da)
    A("s_mov_b32 s33, 0x40000")
    if o.hfirst: A("s_branch L_T_ha0")
    A("L_T_ga:")
    for n in range(8): A(f"buffer_load_dwordx4 v[{GA+4*n}:{GA+4*n+3}], v{vL16}, s[40:43], s{52+(n>>2)} offen offset:{1024*(n&3)} sc1")
    for n in range(8):
        A(f"s_waitcnt vmcnt({7-n})")
        A(f"ds_write_b64 v{vA}, v[{GA+4*n}:{GA+4*n+1}] offset:{(n>>1)*PITCH + 512*(n&1)}")
        d = "vcc" if n == 0 else "s[70:71]"
        A(f"v_cmp_ne_u64 {d}, s[54:55], v[{GA+4*n+2}:{GA+4*n+3}]")
        if n: A("s_or_b64 vcc, vcc, s[70:71]")
    A("s_cbranch_vccz L_T_ga_ok")
    g.stamp(7)
    A("L_T_ha:")
    A(f"s_sleep {o.sleepa}")
    A("L_T_ha0:")
    A("buffer_load_dwordx2 v[48:49], v37, s[40:43], s52 offen offset:8 sc1")
    A("s_waitcnt vmcnt(0)")
    A("s_sub_u32 s33, s33, 1"); A("s_cbranch_scc1 L_T_ga_ok")
    A("v_cmp_ne_u64 vcc, s[54:55], v[48:49]"); A("s_cbranch_vccnz L_T_ha")
    g.stamp(8)
    A("s_branch L_T_ga")
    A("L_T_ga_ok:")
    g.stamp(5)
    if o.latei: inval()
    A("s_waitcnt lgkmcnt(0)")
    g.stamp(6)
    A("s_barrier")
    if o.k3 and not o.k3e: k3()
    helps(o.h2)
    lg.clear(); vi[0] = 0
    g.fine(0)
    for _ in range(o.nsv): rdv()
    A("s_barrier")
    g.fine(5)
    while vi[0] < 16: rdv()
    g.fine(1)
    if o.latei: A(f"s_waitcnt vmcnt({(o.k3 if not o.k3e else 0) + min(o.h2, o.hsv)})")
    A("s_barrier")
    g.fine(7)
    pv(False)
    g.fine(10)
    helps(99)
    g.fin()
    A("L_SU:")
    UV = 128; SEL = 8
    g.selectors(SEL, 46)
    A("s_lshr_b32 s52, s26, 1"); A("s_lshl_b32 s52, s52, 2"); A("s_add_u32 s52, s52, s31"); A("s_lshl_b32 s52, s52, 12"); A(f"s_add_u32 s52, s52, {QQ}")
    A("s_lshl_b32 s3, s31, 10"); A(f"s_add_u32 s3, s3, {L_QS}"); A("v_lshl_add_u32 v38, v1, 3, s3")
    A("s_barrier")
    g.stamp(3)
    A("ds_read_b64 v[42:43], v39")
    A("s_lshl_b32 s3, s31, 20"); A("s_lshl_b32 s36, s28, 8"); A("s_add_u32 s3, s3, s36"); A("s_lshl_b32 s36, s29, 7"); A("s_add_u32 s3, s3, s36")
    g.srd(44, 16, "s3", 4194304)
    A("v_lshrrev_b32 v5, 3, v1"); A("v_and_b32 v6, 7, v1"); A("v_lshrrev_b32 v4, 4, v1"); A("v_and_b32 v3, 15, v1")
    A("v_lshlrev_b32 v24, 17, v5"); A("v_lshl_add_u32 v24, v6, 4, v24")
    A(f"v_lshlrev_b32 v{vA}, 13, v4"); A(f"v_lshl_add_u32 v{vA}, v3, 4, v{vA}")
    A("v_and_b32 v46, 31, v1"); A(f"v_lshlrev_b32 v{vB}, 8, v46"); A(f"v_lshlrev_b32 v19, 3, v46"); A(f"v_add_u32 v19, {L_EW + 256}, v19")
    A("v_and_b32 v36, 24, v1")
    A("s_lshr_b32 s59, s26, 4"); A("s_lshl_b32 s59, s59, 9"); A("s_and_b32 s3, s28, 15"); A("s_add_u32 s59, s59, s3")
    A("s_lshl_b32 s59, s59, 4"); A(f"s_add_u32 s59, s59, {ST}")
    A("s_lshl_b32 s3, s31, 6"); A(f"s_add_u32 s3, s3, {L_EW}"); A("v_lshl_add_u32 v37, v46, 1, s3"); A("v_lshl_add_u32 v23, v4, 4, s3")
    A("s_lshl_b32 s58, s26, 15"); A("s_lshl_b32 s3, s31, 8"); A("s_add_u32 s58, s58, s3"); A(f"s_add_u32 s58, s58, {OB}"); A("s_add_u32 s60, s58, 4096")
    A("v_and_b32 v46, 16, v1"); A("v_lshl_add_u32 v21, v6, 5, v46"); A(f"s_add_u32 s54, s3, {L_CX}"); A("v_add_u32 v21, s54, v21")
    A(f"s_add_u32 s3, s3, {L_CC}"); A("v_lshlrev_b32 v20, 4, v3"); A("v_lshl_add_u32 v20, v4, 3, v20"); A("v_add_u32 v20, s3, v20"); A("v_lshl_add_u32 v22, v5, 5, s3")
    A("s_barrier")
    g.sleep(o.dq)
    A("s_mov_b32 s33, 0x40000"); A("s_mov_b32 s39, 0")
    def gq():
        for n in range(4): A(f"buffer_load_dwordx4 v[{48+4*n}:{51+4*n}], v{vL16}, s[40:43], s52 offen offset:{1024*n} sc1")
    def ld_uv(n):
        A(f"buffer_load_dwordx4 v[{UV+4*n}:{UV+4*n+3}], v24, s[44:47], s39 offen {o.lduv}"); g.vmi(("uv", n))
        A("s_add_u32 s39, s39, 8192")
    gq()
    for n in range(o.vpre): ld_uv(n)
    A(f"s_waitcnt vmcnt({o.vpre}) lgkmcnt(0)")
    A("s_branch L_U_gq_t")
    A("L_U_gq:")
    gq()
    A("s_waitcnt vmcnt(0)")
    A("L_U_gq_t:")
    for n in range(4):
        d = "vcc" if n == 0 else "s[54:55]"
        A(f"v_cmp_ne_u64 {d}, v[{50+4*n}:{51+4*n}], v[42:43]")
        if n: A("s_or_b64 vcc, vcc, s[54:55]")
    A("s_cbranch_vccz L_U_gq_ok")
    g.retry("L_U_gq", o.sleepa)
    A("L_U_gq_ok:")
    for k in range(2):
        for r in range(2): A(f"v_add_f32 v{48+4*k+r}, v{48+4*k+r}, v{56+4*k+r}")
    A("ds_write_b64 v38, v[48:49]"); A("ds_write_b64 v38, v[52:53] offset:512")
    A("s_waitcnt lgkmcnt(0)")
    g.stamp(10)
    A("s_barrier")
    if o.prew:
        A("s_cmp_lg_u32 s31, 0"); A("s_cbranch_scc1 L_U_noprew")
        A("s_lshl_b32 s62, s26, 1"); A("s_add_u32 s62, s62, s29"); A("s_mul_i32 s62, s62, 5120"); A(f"s_add_u32 s62, s62, {OC}")
        for n in range(4): A(f"buffer_store_dwordx4 v[{SEN}:{SEN+3}], v{vL16}, s[40:43], s62 offen offset:{1024*n} sc1")
        A("s_add_u32 s62, s62, 4096")
        A(f"buffer_store_dwordx4 v[{SEN}:{SEN+3}], v{vL16}, s[40:43], s62 offen sc1")
        A("L_U_noprew:")
    g.sleep(o.dv)
    A("s_cmp_lg_u32 s31, 3"); A("s_cbranch_scc1 L_U_n5")
    vm5 = list(g.vm)
    wsrd[0] = 68
    wo_addr("4")
    for n in range(o.vpre, 16):
        g.vmlimit(o.tv5 - 1); ld_uv(n)
    for n in range(16):
        g.vmlimit(o.tv5 - 1); ld_wo(n, 192 + 4 * n); g.vmi(("wo", n))
    A("s_branch L_U_n5d")
    A("L_U_n5:")
    g.vm = vm5
    for n in range(o.vpre, 16):
        g.vmlimit(o.tv - 1); ld_uv(n)
    A("L_U_n5d:")
    g.stamp(4)
    if o.ubar: A("s_barrier")
    g.sleep(o.db)
    GB = 48; GS = 80; FC = 92
    g.vm = []
    A("s_cmp_lg_u32 s31, 0"); A("s_cbranch_scc1 L_U_wait")
    A("s_mov_b32 s33, 0x40000")
    A("L_U_gn:")
    A("buffer_load_dwordx2 v[40:41], v36, s[48:51], s67 offen offset:192 sc1")
    A("s_waitcnt vmcnt(0)")
    A("v_cmp_eq_u32 vcc, 0, v40"); A("s_cbranch_vccz L_U_gn_ok")
    g.retry("L_U_gn", 8)
    A("L_U_gn_ok:")
    A("s_mov_b32 s33, 0x40000")
    A(f"buffer_load_dwordx4 v[84:87], v{vB}, s[40:43], s59 offen sc1")
    A("L_U_gs:")
    if o.sleepb: A(f"s_sleep {o.sleepb}")
    A(f"buffer_load_dwordx4 v[80:83], v{vB}, s[40:43], s59 offen sc1")
    A("s_waitcnt vmcnt(1)")
    A("v_cmp_ne_u64 vcc, v[86:87], v[40:41]"); A("s_cbranch_vccz L_U_gs_b")
    if o.sleepb: A(f"s_sleep {o.sleepb}")
    A(f"buffer_load_dwordx4 v[84:87], v{vB}, s[40:43], s59 offen sc1")
    A("s_waitcnt vmcnt(1)")
    A("v_cmp_ne_u64 vcc, v[82:83], v[40:41]"); A("s_cbranch_vccz L_U_gs_a")
    g.retry("L_U_gs")
    A("L_U_gs_a:")
    A("ds_write_b64 v19, v[80:81]"); A("s_branch L_U_gs_c")
    A("L_U_gs_b:")
    A("ds_write_b64 v19, v[84:85]")
    A("L_U_gs_c:")
    A("v_mov_b32 v45, 1"); A("ds_write_b32 v39, v45 offset:8")
    A("s_branch L_U_gs_ok")
    A("L_U_wait:")
    A("s_mov_b32 s33, 0x400000")
    A("L_U_wl:")
    A("ds_read_b32 v45, v39 offset:8"); A("s_waitcnt lgkmcnt(0)")
    A("v_cmp_ne_u32 vcc, 0, v45"); A("s_cbranch_vccnz L_U_gs_ok")
    g.retry("L_U_wl", 1)
    A("L_U_gs_ok:")
    g.stamp(9)
    def gB():
        for n in range(8): A(f"buffer_load_dwordx4 v[{GB+4*n}:{GB+4*n+3}], v{vA}, s[40:43], s{58 if n < 4 else 60} offen offset:{1024*(n&3)} sc1")
    gB()
    g.fine(0)
    def wred(op, r, t):
        for c in ("quad_perm:[1,0,3,2]", "quad_perm:[2,3,0,1]", "row_half_mirror", "row_ror:8"):
            A(f"{op}_dpp v{r}, v{r}, v{r} {c} row_mask:0xf bank_mask:0xf")
        A(f"v_mov_b32 v{t}, v{r}"); A(f"v_permlane16_swap_b32 v{r}, v{t}"); A(f"{op} v{r}, v{r}, v{t}")
    A("ds_read_b64 v[88:89], v19")
    A("s_waitcnt lgkmcnt(0)")
    A("v_mov_b32 v44, v88")
    wred("v_max_f32", 44, 45)
    A("v_sub_f32 v88, v88, v44"); A("v_exp_f32 v88, v88")
    A("v_cvt_pk_bf16_f32 v45, v88, v88")
    A("ds_write_b16 v37, v45")
    A("ds_read_b128 v[28:31], v23")
    A("v_mul_f32 v44, v88, v89")
    wred("v_add_f32", 44, 45)
    A("v_rcp_f32 v44, v44")
    A("s_waitcnt lgkmcnt(0)")
    for n in range(8): g.frag(FC + 4 * n, 28 + (n >> 1), n & 1, SEL)
    A("s_mov_b32 s33, 0x40000")
    A("L_U_gb:")
    for n in range(8):
        A(f"s_waitcnt vmcnt({7-n})")
        g.mfma(32, FC + 4 * n, GB + 4 * n, n == 0)
        if n == 0: A(f"v_max3_u32 v43, v{GB}, v{GB+1}, v{GB+2}"); A(f"v_max_u32 v43, v43, v{GB+3}")
        else: A(f"v_max3_u32 v43, v43, v{GB+4*n}, v{GB+4*n+1}"); A(f"v_max3_u32 v43, v43, v{GB+4*n+2}, v{GB+4*n+3}")
    A("v_cmp_eq_u32 vcc, -1, v43")
    A("s_cbranch_vccz L_U_gb_ok")
    gB()
    g.retry("L_U_gb")
    A("L_U_gb_ok:")
    g.stamp(6)
    for k in range(2): A(f"v_cvt_pk_bf16_f32 v{32+k}, v{32+2*k}, v{33+2*k}")
    A("s_mov_b32 exec_hi, 0")
    A("ds_write_b64 v20, v[32:33]")
    A("s_mov_b32 exec_hi, -1")
    for k in range(2): A(f"ds_read_b128 v[{48+4*k}:{51+4*k}], v22 offset:{16*k}")
    A("s_waitcnt lgkmcnt(0)")
    g.stamp(7); g.fine(1)
    g.frag(72, 48, 0, SEL)
    for n in range(16):
        if n < 15: g.frag(72 + 4 * ((n + 1) & 1), 48 + ((n + 1) >> 1), (n + 1) & 1, SEL)
        g.mfma(32, 72 + 4 * (n & 1), UV + 4 * n, n == 0)
    g.fine(2)
    g.fold(32, 88)
    for r in range(4): A(f"v_mul_f32 v{32+r}, v{32+r}, v44")
    A("s_mov_b64 exec, 0x00ff00ff")
    A("ds_write_b128 v21, v[32:35]")
    A("s_mov_b64 exec, -1")
    A("s_waitcnt lgkmcnt(0)")
    g.stamp(8); g.fine(3)
    A("s_cmp_lg_u32 s31, 3"); A("s_cbranch_scc1 L_U_last")
    p7_addr("4", "4")
    A("ds_read_b64 v[26:27], v39")
    A("s_barrier")
    g.vm = []
    p7(lambda n: 192 + 4 * n, False)
    g.fin()
    A("L_U_last:")
    A("s_barrier")
    g.fine(4)
    if o.stamps:
        A("L_stamps:")
        A("s_mov_b64 exec, 1")
        A("s_waitcnt lgkmcnt(0)")
    if o.stamps == 3:
        A("v_readfirstlane_b32 s3, v0"); A("s_cmp_lg_u32 s3, 0"); A("s_cbranch_scc1 L_end")
        g.srd0(40, 22, 64); A("v_mov_b32 v2, 0")
        A(f"s_cmp_eq_u32 s2, {o.wt}"); A("s_cbranch_scc1 L_dT")
        A(f"s_cmp_lg_u32 s2, {o.wt + 8}"); A("s_cbranch_scc1 L_end")
        for k, i in enumerate((0, 1, 3, 4, 5, 7, 9, 10)):
            A(f"v_mov_b32 v4, s{72+2*i}"); A(f"buffer_store_dword v4, v2, s[40:43], 0 offen offset:{32+4*k}"); A("s_nop 1")
        A("s_endpgm")
        A("L_dT:")
        for k, i in enumerate((0, 3, 5, 6, 7, 9, 10, 11)):
            A(f"v_mov_b32 v4, s{72+2*i}"); A(f"buffer_store_dword v4, v2, s[40:43], 0 offen offset:{4*k}"); A("s_nop 1")
    elif o.stamps:
        A("v_lshrrev_b32 v2, 6, v0"); A("s_lshl_b32 s3, s2, 3"); A("v_add_u32 v2, s3, v2"); A(f"v_mul_u32_u24 v2, {NST*8}, v2")
        A("s_add_u32 s40, s24, 0x8000000"); A("s_addc_u32 s41, s25, 0"); A("s_mov_b32 s42, 0x1000000"); A("s_mov_b32 s43, 0x20000")
        for i in range(NST):
            A(f"v_mov_b32 v4, s{72+2*i}"); A(f"v_mov_b32 v5, s{73+2*i}")
            A(f"buffer_store_dwordx2 v[4:5], v2, s[40:43], 0 offen offset:{8*i}")
            A("s_nop 1")
    A("L_end:")
    A("s_endpgm")
    lines, nn = hz.fix([l for l in g.L if l is not None])
    body = "\n".join(("" if l.endswith(":") else "    ") + l for l in lines)
    txt = (HDR + f"; @launch grid=(256,1,1) block=(512,1,1) lds={L_END}\n"
        ".amdgcn_target \"amdgcn-amd-amdhsa--gfx950\"\n.text\n"
        f".globl {NAME}_kernel\n.p2align 8\n.type {NAME}_kernel,@function\n{NAME}_kernel:\n" + body + "\n"
        + (f".org {NAME}_kernel+{o.pf*1024}, 0\n" if o.pf else "") +
        ".section .rodata,\"a\"\n.p2align 6\n"
        f".amdhsa_kernel {NAME}_kernel\n  .amdhsa_next_free_vgpr 256\n  .amdhsa_next_free_sgpr 96\n"
        "  .amdhsa_accum_offset 256\n  .amdhsa_group_segment_fixed_size 0\n  .amdhsa_kernarg_size 120\n"
        "  .amdhsa_user_sgpr_count 2\n  .amdhsa_user_sgpr_kernarg_segment_ptr 1\n  .amdhsa_system_sgpr_workgroup_id_x 1\n"
        ".end_amdhsa_kernel\n")
    return txt, nn

def parse(argv):
    ap = argparse.ArgumentParser()
    ap.add_argument("-o", default="k4.s")
    for k, d in dict(stamps=0, tw=7, tk=7, tk2=8, tu=7, to=4, tv=4, npre=0, nt=10, rot=1, latei=0, hfirst=0, nsv=0, prio=0, tv5=6, tearly=0, r0=0, wt=8, k3=0, k3e=1, h1=0, h1w=0, h2=3, vpre=0, hsv=0, hsd=6, hsd2=6, db=0, ubar=1, nto=12, to2=7, hs=0, hinta=0, da=0, hu=0, uearly=0, dn=14, pf=16, dinv=0, dq=0, du=0, dv=0,
                     sleepa=3, sleepb=1, sleepc0=20, sleepc=2, sleepn=8, sleepf=16, hlp=0, hd=6, prew=1, thr=4, nvs=15, nvm=1).items():
        ap.add_argument("--" + k, type=int, default=d)
    for k in ("ldq", "lduk", "ldkv", "ldkv2", "ldo", "lduv"): ap.add_argument("--" + k, default="")
    ap.add_argument("--stb", default="sc1")
    return ap.parse_args(argv)
if __name__ == "__main__":
    o = parse(sys.argv[1:])
    txt, nn = gen(o)
    open(o.o, "w").write(txt)
    print("written", o.o, "nops inserted", nn)
```

```python
import sys, argparse
sys.path.insert(0, "gen")
import hz
NAME = "concat_heads__compressed_kv_cla__compressed_kv_cla__decode"
HDR = open("cdna_kernels/%s.s.ref" % NAME).read().split("; Override launch")[0]

QA = 0x0
QQ = 0x20000
ST = 0x180000
OC = 0xC0000
OB = 0x200000
WS_END = 0x400000
PITCH = 1056
L_QI = 128 * PITCH
L_MISC = L_QI + 16 * PITCH
L_QP = L_MISC
L_MX = L_MISC
L_LS = L_MISC + 1024
L_P = L_MISC + 4096
L_NON = L_MISC + 8192
L_EW = 22528
L_END = L_NON + 16
L_OUTP = 0
L_QS = 16384
L_CX = 20480
L_CC = 21504
SCALE = 0x3e0293ee
NST = 12

class G:
    def __init__(s, opt):
        s.L = []; s.o = opt; s.vm = []
    def A(s, t): s.L.append(t)
    def vmi(s, tag): s.vm.append(tag)
    def vmwait(s, tag):
        if tag not in s.vm: return
        k = len(s.vm) - 1 - max(i for i, t in enumerate(s.vm) if t == tag)
        s.A(f"s_waitcnt vmcnt({k})")
        s.vm = s.vm[len(s.vm) - k:]
    def vmlimit(s, k):
        if len(s.vm) > k:
            s.A(f"s_waitcnt vmcnt({k})"); s.vm = s.vm[len(s.vm) - k:]
    def stamp(s, i):
        if s.o.stamps in (1, 3): s.A(f"s_memrealtime s[{72+2*i}:{73+2*i}]")
    def fine(s, i):
        if s.o.stamps == 2: s.A(f"s_memtime s[{72+2*i}:{73+2*i}]")
    def sleep(s, n):
        while n > 0:
            s.A(f"s_sleep {min(n, 100)}"); n -= 100
    def srd(s, d, base, off, size):
        s.A(f"s_add_u32 s{d}, s{base}, {off}"); s.A(f"s_addc_u32 s{d+1}, s{base+1}, 0")
        s.A(f"s_sub_u32 s{d+2}, {size}, {off}"); s.A(f"s_mov_b32 s{d+3}, 0x20000")
    def srd0(s, d, base, size):
        s.A(f"s_mov_b32 s{d}, s{base}"); s.A(f"s_mov_b32 s{d+1}, s{base+1}"); s.A(f"s_mov_b32 s{d+2}, {size}"); s.A(f"s_mov_b32 s{d+3}, 0x20000")
    def selectors(s, sel, tmp, sel2=None):
        A = s.A
        A(f"v_and_b32 v{tmp}, 1, v1")
        A(f"v_cmp_eq_u32 vcc, 1, v{tmp}")
        A(f"v_mov_b32 v{tmp+1}, 0x0c0c0100"); A(f"v_mov_b32 v{tmp+2}, 0x01000c0c")
        A(f"v_cndmask_b32 v{tmp+1}, v{tmp+1}, v{tmp+2}, vcc")
        A(f"v_mov_b32 v{tmp+2}, 0x0c0c0302"); A(f"v_mov_b32 v{tmp+3}, 0x03020c0c")
        A(f"v_cndmask_b32 v{tmp+2}, v{tmp+2}, v{tmp+3}, vcc")
        A(f"v_mov_b32 v{tmp+3}, 0x0c0c0c0c")
        A(f"v_bfe_u32 v{tmp}, v1, 1, 2")
        for r in range(4):
            A(f"v_cmp_eq_u32 vcc, {r}, v{tmp}")
            A(f"v_cndmask_b32 v{sel+r}, v{tmp+3}, v{tmp+1}, vcc")
            A(f"v_cndmask_b32 v{sel+4+r}, v{tmp+3}, v{tmp+2}, vcc")
        if sel2 is not None:
            A("s_mov_b32 vcc_lo, 0xff0000ff"); A("s_mov_b32 vcc_hi, 0xff0000ff")
            for r in range(8): A(f"v_cndmask_b32 v{sel2+r}, v{tmp+3}, v{sel+r}, vcc")
    def frag(s, dst, src, par, sel):
        for r in range(4): s.A(f"v_perm_b32 v{dst+r}, v{src}, v{src}, v{sel+4*par+r}")
    def fold(s, d, t, n=4):
        for r in range(n): s.A(f"v_mov_b32 v{t+r}, v{d+r}")
        for r in range(n): s.A(f"v_permlane32_swap_b32 v{d+r}, v{t+r}")
        for r in range(n): s.A(f"v_add_f32_dpp v{d+r}, v{t+r}, v{d+r} row_ror:8 row_mask:0xf bank_mask:0xf")
    def xred(s, op, r, t):
        for sw in ("16", "32"):
            s.A(f"v_mov_b32 v{t}, v{r}"); s.A(f"v_permlane{sw}_swap_b32 v{r}, v{t}"); s.A(f"{op} v{r}, v{r}, v{t}")
    def mfma(s, d, a, b, first):
        s.A(f"v_mfma_f32_16x16x32_bf16 v[{d}:{d+3}], v[{a}:{a+3}], v[{b}:{b+3}], " + ("0" if first else f"v[{d}:{d+3}]"))
    def validate(s, first, n, lab_ok):
        A = s.A
        A(f"v_max3_u32 v46, v{first}, v{first+1}, v{first+2}")
        A(f"v_max3_u32 v47, v{first+3}, v{first+4}, v{first+5}")
        k = 6; which = 46
        while k + 1 < n:
            A(f"v_max3_u32 v{which}, v{which}, v{first+k}, v{first+k+1}"); k += 2; which = 93 - which
        A("v_max_u32 v46, v46, v47")
        A("v_cmp_eq_u32 vcc, -1, v46")
        A(f"s_cbranch_vccz {lab_ok}")
    def retry(s, lab, sleep=0):
        if sleep: s.A(f"s_sleep {sleep}")
        s.A("s_sub_u32 s33, s33, 1"); s.A(f"s_cbranch_scc0 {lab}")
    def nonce(s, tag, goff, first=0):
        A = s.A
        A(f"s_add_u32 s34, s22, {goff}"); A("s_addc_u32 s35, s23, 0")
        for r in range(max(first, s.o.r0), 4):
            A(f"s_load_dwordx2 s[54:55], s[34:35], {64*r}"); A("s_waitcnt lgkmcnt(0)")
            A("s_cmp_lg_u32 s54, 0"); A(f"s_cbranch_scc1 L_{tag}_ok")
            A(f"s_sleep {s.o.sleepn}")
        A("s_mov_b32 s33, 0x40000"); A("v_mov_b32 v46, 0")
        A(f"L_{tag}:")
        A(f"buffer_load_dwordx2 v[48:49], v46, s[48:51], {goff} offen offset:192 sc1")
        A("s_waitcnt vmcnt(0)")
        A("v_readfirstlane_b32 s54, v48"); A("v_readfirstlane_b32 s55, v49")
        A("s_cmp_lg_u32 s54, 0"); A(f"s_cbranch_scc1 L_{tag}_ok")
        s.retry(f"L_{tag}", 16)
        A(f"L_{tag}_ok:")
    def fin(s):
        if s.o.stamps: s.A("s_branch L_stamps")
        else: s.A("s_endpgm")

def gen(o):
    g = G(o); A = g.A
    if o.stamps:
        for i in range(NST): A(f"s_mov_b64 s[{72+2*i}:{73+2*i}], 0")
    g.stamp(0)
    A("s_cmp_ge_u32 s2, 256"); A("s_cbranch_scc1 L_end")
    A("s_bfe_u32 s4, s2, 0x10002")
    A("s_mul_i32 s3, s4, 48")
    A("s_add_u32 s34, s0, s3"); A("s_addc_u32 s35, s1, 0")
    A("s_load_dwordx4 s[8:11], s[34:35], 0")
    A("s_load_dwordx4 s[12:15], s[34:35], 16")
    A("s_load_dwordx4 s[16:19], s[34:35], 32")
    A("s_load_dwordx4 s[20:23], s[0:1], 96")
    A("s_load_dwordx2 s[24:25], s[0:1], 112")
    A("v_lshrrev_b32 v4, 6, v0")
    A("v_and_b32 v1, 63, v0")
    A("v_readfirstlane_b32 s31, v4")
    A("s_and_b32 s5, s2, 3"); A("s_lshr_b32 s6, s2, 3"); A("s_and_b32 s7, s6, 7")
    A("s_lshl_b32 s28, s5, 3"); A("s_lshr_b32 s3, s6, 2"); A("s_add_u32 s28, s28, s3")
    A("s_and_b32 s27, s28, 30")
    A("s_bfe_u32 s29, s6, 0x10001"); A("s_and_b32 s30, s6, 1")
    A("s_lshl_b32 s26, s4, 5"); A("s_add_u32 s26, s26, s28")
    vL16 = 7
    A(f"v_lshlrev_b32 v{vL16}, 4, v1")
    A("s_cmp_ge_u32 s31, 4"); A("s_cbranch_scc1 L_S")
    SEL = 8; SEL2 = 16; XV = 52; FR = 32; ACC = 40; WQ = 64; UK = 140
    vWQ, vX, vUK, vWO = 2, 3, 5, 6
    NT = o.nt; NU = 20 - o.nt
    A("v_lshrrev_b32 v4, 5, v1"); A("v_and_b32 v44, 31, v1")
    A("s_lshr_b32 s3, s7, 1"); A("s_lshl_b32 s3, s3, 2"); A("s_add_u32 s65, s3, s31")
    A("s_cmp_eq_u32 s30, 0"); A(f"s_cselect_b32 s39, {2*NU}, {2*NT}"); A(f"s_cselect_b32 s37, 0, {64*NU}")
    A("s_mul_i32 s3, s65, s39"); A("s_lshl_b32 s3, s3, 1"); A("s_add_u32 s37, s37, s3")
    A(f"v_mul_u32_u24 v{vX}, s39, v4"); A(f"v_lshlrev_b32 v{vWQ}, 12, v{vX}"); A(f"v_lshl_add_u32 v{vWQ}, v44, 4, v{vWQ}")
    A("s_lshl_b32 s36, s37, 12"); A("s_lshl_b32 s38, s27, 8"); A("s_add_u32 s36, s36, s38")
    A("s_mov_b32 s39, 0")
    A("s_waitcnt lgkmcnt(0)")
    g.stamp(1)
    g.srd0(40, 8, 1280)
    g.srd(44, 12, "s36", 5242880)
    A(f"buffer_load_dwordx4 v[{XV}:{XV+3}], v{vX}, s[40:43], s37 offen"); g.vmi("x")
    A(f"buffer_load_dwordx4 v[{XV+4}:{XV+7}], v{vX}, s[40:43], s37 offen offset:16"); g.vmi("x")
    def ld_wq(n):
        A(f"buffer_load_dwordx4 v[{WQ+4*n}:{WQ+4*n+3}], v{vWQ}, s[44:47], s39 offen {o.ldq}"); g.vmi(("wq", n))
        A("s_add_u32 s39, s39, 8192")
    NW0 = min(o.tw, NU)
    for n in range(NW0): ld_wq(n)
    g.selectors(SEL, 46, SEL2)
    A("s_mov_b32 s40, s24"); A("s_mov_b32 s41, s25"); A(f"s_mov_b32 s42, {WS_END}")
    A("v_lshlrev_b32 v30, 9, v4"); A("v_and_b32 v46, 15, v1"); A("v_lshl_add_u32 v30, v46, 5, v30"); A("v_and_b32 v47, 16, v1"); A("v_add_u32 v30, v30, v47")
    A("s_lshl_b32 s3, s31, 10"); A(f"s_add_u32 s3, s3, {L_QP}"); A("v_add_u32 v30, s3, v30")
    A("s_lshl_b32 s3, s31, 8"); A(f"s_add_u32 s3, s3, {L_QP}"); A("v_lshl_add_u32 v31, v1, 3, s3")
    A("s_lshr_b32 s62, s26, 1"); A("s_lshl_b32 s62, s62, 3"); A("s_add_u32 s62, s62, s7"); A("s_lshl_b32 s62, s62, 2"); A("s_add_u32 s62, s62, s31")
    A("s_lshl_b32 s62, s62, 9"); A(f"s_add_u32 s62, s62, {QQ}")
    A(f"v_mov_b32 v29, {L_NON}")
    A("s_cmp_eq_u32 s30, 0"); A("s_cbranch_scc1 L_PU")
    vm_save = list(g.vm)
    def q_part(nxt, depth, NQ):
        todo = list(range(NW0, NQ))
        cur = [-1]
        def step():
            if todo: ld_wq(todo.pop(0)); return True
            if cur[0] < o.qhold: return False
            nxt(); return True
        while len(g.vm) < o.tq + 2 and step(): pass
        g.vmwait("x")
        g.frag(FR, XV, 0, SEL2)
        for n in range(NQ):
            g.vmwait(("wq", n)); cur[0] = n
            while len(g.vm) < (o.tq if todo else depth) and step(): pass
            if n < NQ - 1: g.frag(FR + 4 * ((n + 1) & 1), XV + ((n + 1) >> 1), (n + 1) & 1, SEL2)
            g.mfma(ACC, FR + 4 * (n & 1), WQ + 4 * n, n == 0)
        A(f"ds_write_b128 v30, v[{ACC}:{ACC+3}]")
        A("s_waitcnt lgkmcnt(0)")
        g.stamp(2)
        A("s_barrier")
        g.stamp(3)
        for w in range(4): A(f"ds_read_b64 v[{32+2*w}:{33+2*w}], v31 offset:{1024*w}")
        A("ds_read_b64 v[42:43], v29")
        g.vmlimit(depth - 1); nxt()
        A("s_waitcnt lgkmcnt(0)")
        for r in range(2): A(f"v_add_f32 v{32+r}, v{32+r}, v{34+r}")
        for r in range(2): A(f"v_add_f32 v{36+r}, v{36+r}, v{38+r}")
        for r in range(2): A(f"v_add_f32 v{40+r}, v{32+r}, v{36+r}")
        A("s_mov_b32 exec_hi, 0")
        A(f"buffer_store_dwordx4 v[40:43], v{vL16}, s[40:43], s62 offen sc1"); g.vmi("qq")
        A("s_mov_b32 exec_hi, -1")
    A("s_lshl_b32 s3, s28, 17")
    g.srd(52, 10, "s3", 4194304)
    if o.rot: A("s_lshl_b32 s64, s29, 2"); A("s_add_u32 s64, s64, s31")
    else: A("s_mov_b32 s64, s31")
    A("s_xor_b32 s65, s64, 4"); A("s_lshl_b32 s64, s64, 14"); A("s_lshl_b32 s65, s65, 14")
    A(f"s_mul_i32 s66, s31, {32*PITCH}")
    kp = [0]
    hu = list(range(15, 15 - o.hu, -1))
    if o.hu:
        A("s_lshr_b32 s3, s7, 1"); A("s_lshl_b32 s3, s3, 2"); A("s_add_u32 s3, s3, s31"); A("s_lshl_b32 s3, s3, 18"); A("s_add_u32 s3, s3, s38")
        g.srd(48, 14, "s3", 4194304)
        A(f"v_lshlrev_b32 v{vUK}, 17, v4"); A(f"v_lshl_add_u32 v{vUK}, v44, 4, v{vUK}")
    def nxt_kv():
        if hu:
            A(f"s_mov_b32 s67, {8192*hu.pop(0)}")
            A(f"buffer_load_dwordx4 v[140:143], v{vUK}, s[48:51], s67 offen"); g.vmi("hu")
            return
        k = kp[0]
        if k >= 32: return
        kp[0] += 1
        so = "s64" if k < 16 else "s65"
        A("s_mov_b32 m0, s66"); A(f"s_add_u32 s66, s66, {PITCH}")
        A(f"buffer_load_dwordx4 v{vL16}, s[52:55], {so} offen {o.ldkv if k < 16 else o.ldkv2} lds"); g.vmi("kv")
        A(f"s_add_u32 {so}, {so}, 1024")
    q_part(nxt_kv, o.tk, NT)
    vK = 21; vQ = 22; vT0 = 23; vT1 = 24; vB = 26
    GA = 28; QR = 48; SA = 112; PF = 92; KF = 128; OA = 48; PK = 28
    A("v_mov_b32 v16, v42"); A("v_mov_b32 v17, v43")
    A("v_and_b32 v46, 15, v1"); A("v_lshrrev_b32 v47, 4, v1")
    A(f"v_mul_u32_u24 v{vQ}, {PITCH}, v46"); A(f"v_lshl_add_u32 v{vQ}, v47, 4, v{vQ}")
    A(f"s_mul_i32 s3, s31, {32*PITCH}"); A(f"v_add_u32 v{vK}, s3, v{vQ}"); A(f"v_add_u32 v{vQ}, {L_QI}, v{vQ}")
    def st_ob_addr(hi):
        A("s_lshl_b32 s68, s31, 1")
        if hi: A("s_add_u32 s68, s68, 1")
        A("s_lshl_b32 s60, s4, 1"); A("s_add_u32 s60, s60, s29")
        A("s_lshl_b32 s61, s60, 5"); A("s_add_u32 s61, s61, s28"); A("s_lshl_b32 s61, s61, 8"); A(f"s_add_u32 s61, s61, {ST}")
        A("s_lshl_b32 s60, s60, 9"); A("s_add_u32 s60, s60, s28"); A("s_lshl_b32 s60, s60, 3"); A("s_add_u32 s60, s60, s68"); A("s_lshl_b32 s60, s60, 7"); A(f"s_add_u32 s60, s60, {OB}")
    def pv_addr():
        A("v_and_b32 v46, 15, v1")
        A("v_lshrrev_b32 v44, 2, v1"); A(f"v_mul_u32_u24 v{vT0}, {PITCH}, v44"); A("v_and_b32 v44, 3, v1"); A(f"v_lshl_add_u32 v{vT0}, v44, 3, v{vT0}")
        A("s_lshl_b32 s3, s68, 7"); A(f"v_add_u32 v{vT0}, s3, v{vT0}"); A(f"v_add_u32 v{vT1}, {64*PITCH}, v{vT0}")
        A(f"v_lshlrev_b32 v{vB}, 15, v46"); A("v_and_b32 v44, 16, v1"); A(f"v_lshl_add_u32 v{vB}, v44, 1, v{vB}")
        A("v_lshrrev_b32 v44, 5, v1"); A(f"v_lshl_add_u32 v{vB}, v44, 4, v{vB}")
        A(f"v_add_u32 v27, {L_MX}, v{vL16}"); A(f"v_add_u32 v20, {L_P}, v{vL16}")
    st_ob_addr(0); pv_addr()
    A("s_lshl_b32 s3, s31, 2"); A("v_add_u32 v25, s3, v27")
    A("s_lshl_b32 s3, s31, 10"); A("v_add_u32 v19, s3, v20")
    while kp[0] < 32:
        if o.tearly and kp[0] == 32 - o.tearly: A("s_barrier")
        g.vmlimit((o.tk if kp[0] < 16 else o.tk2) - 1); nxt_kv()
    if not o.tearly: A("s_barrier")
    g.stamp(5)
    A("s_waitcnt vmcnt(0)"); g.vm = []
    g.stamp(6)
    for kk in range(16):
        for t in range(2):
            d = KF + 4 * (2 * kk + t)
            A(f"ds_read_b128 v[{d}:{d+3}], v{vK} offset:{16*t*PITCH + 64*kk}")
    A("s_barrier")
    g.stamp(7); g.fine(0)
    if o.prio: A(f"s_setprio {o.prio}")
    vfr = [(ct, ks) for ct in range(4) for ks in range(4)]
    lg = []
    def lgw(tag):
        if tag not in lg: return
        k = len(lg) - 1 - max(i for i, t in enumerate(lg) if t == tag)
        A(f"s_waitcnt lgkmcnt({min(k,15)})"); del lg[:len(lg) - min(k, 15)]
    vi = [0]
    def rdv():
        idx = vi[0]
        if idx >= 16: return
        vi[0] += 1
        ct, ks = vfr[idx]; d = KF + 4 * idx
        base = vT0 if ks < 2 else vT1
        for hf in range(2):
            A(f"ds_read_b64_tr_b16 v[{d+2*hf}:{d+2*hf+1}], v{base} offset:{(32*(ks&1)+16*hf)*PITCH + 32*ct}"); lg.append(("v", idx))
    def rdq(kk):
        A(f"ds_read_b128 v[{QR+4*kk}:{QR+4*kk+3}], v{vQ} offset:{64*kk}"); lg.append(("q", kk))
    for kk in range(6): rdq(kk)
    for kk in range(16):
        lgw(("q", kk))
        for t in range(2): g.mfma(SA + 4 * t, KF + 4 * (2 * kk + t), QR + 4 * kk, kk == 0)
        if kk == 0: g.fine(1)
        if kk == 7: g.fine(2)
        if kk == 15: g.fine(3)
        if kk + 6 < 16: rdq(kk + 6)
        if 1 <= kk <= o.nvs: rdv()
    A(f"s_mov_b32 s3, {SCALE}")
    A(f"v_max3_f32 v46, v{SA}, v{SA+1}, v{SA+2}"); A(f"v_max3_f32 v47, v{SA+4}, v{SA+5}, v{SA+6}")
    A(f"v_max3_f32 v46, v46, v{SA+3}, v{SA+7}"); A("v_max_f32 v46, v46, v47")
    g.xred("v_max_f32", 46, 47)
    A("ds_write_b32 v25, v46")
    g.fine(4)
    A(f"v_mul_f32 v45, s3, v46")
    for r in range(8): A(f"v_fma_f32 v{SA+r}, v{SA+r}, s3, -v45")
    A("s_waitcnt lgkmcnt(0)"); lg.clear()
    A("s_barrier")
    g.fine(5)
    A(f"ds_read_b128 v[{GA}:{GA+3}], v27"); lg.append("mx")
    for _ in range(o.nvm): rdv()
    for r in range(8): A(f"v_exp_f32 v{SA+r}, v{SA+r}")
    lgw("mx")
    A(f"v_max3_f32 v46, v{GA}, v{GA+1}, v{GA+2}"); A(f"v_max_f32 v46, v46, v{GA+3}")
    A(f"v_mul_f32 v44, s3, v46")
    A("v_sub_f32 v45, v45, v44"); A("v_exp_f32 v45, v45")
    for r in range(8): A(f"v_mul_f32 v{SA+r}, v{SA+r}, v45")
    for k in range(4): A(f"v_cvt_pk_bf16_f32 v{GA+k}, v{SA+2*k}, v{SA+2*k+1}")
    A(f"ds_write_b128 v19, v[{GA}:{GA+3}]")
    for k in range(4): A(f"v_add_f32 v{SA+k}, v{SA+k}, v{SA+4+k}")
    A(f"v_add_f32 v{SA}, v{SA}, v{SA+1}"); A(f"v_add_f32 v{SA+2}, v{SA+2}, v{SA+3}"); A(f"v_add_f32 v{SA}, v{SA}, v{SA+2}")
    A(f"ds_write_b32 v25, v{SA} offset:{L_LS - L_MX}")
    g.fine(6)
    A("s_waitcnt lgkmcnt(0)"); lg.clear()
    A("s_barrier")
    g.stamp(8); g.fine(7)
    def pv(fine):
        for w in range(4): A(f"ds_read_b128 v[{PF+4*w}:{PF+4*w+3}], v20 offset:{1024*w}"); lg.append(("p", w))
        if fine: A(f"ds_read_b128 v[{SA}:{SA+3}], v27 offset:{L_LS - L_MX}"); lg.append("ls")
        def pack(ct):
            a = OA + 4 * ct
            A(f"v_cvt_pk_bf16_f32 v{PK+2*ct}, v{a}, v{a+1}"); A(f"v_cvt_pk_bf16_f32 v{PK+2*ct+1}, v{a+2}, v{a+3}")
        def ship(p):
            b = PK + 4 * p
            A(f"v_permlane16_swap_b32 v{b}, v{b+2}"); A(f"v_permlane16_swap_b32 v{b+1}, v{b+3}")
            A(f"buffer_store_dwordx4 v[{b}:{b+3}], v{vB}, s[40:43], s60 offen offset:{64*p} {o.stb}")
        for ct in range(4):
            for ks in range(4):
                lgw(("p", ks)); lgw(("v", 4 * ct + ks))
                g.mfma(OA + 4 * ct, KF + 4 * (4 * ct + ks), PF + 4 * ks, ks == 0)
                if ct == 0 and ks == 0: g.fine(8)
                if ct == 3 and ks == 3: g.fine(9)
                if fine and ct == 1 and ks == 0:
                    lgw("ls")
                    A(f"v_add_f32 v45, v{SA}, v{SA+1}"); A(f"v_add_f32 v46, v{SA+2}, v{SA+3}"); A("v_add_f32 v45, v45, v46")
                if fine and ct == 1 and ks == 2: g.xred("v_add_f32", 45, 46); A("v_mov_b32 v46, v16"); A("v_mov_b32 v47, v17")
                if ct == 2 and ks == 1: pack(0)
                if ct == 2 and ks == 3: pack(1)
                if ct == 3 and ks == 1: ship(0)
                if ct == 3 and ks == 3: pack(2)
        pack(3); ship(1)
        g.fine(11)
        A("s_barrier")
        if fine:
            A("s_cmp_lg_u32 s31, 0"); A("s_cbranch_scc1 L_T_nost")
            A("s_mov_b64 exec, 0xffff")
            A(f"buffer_store_dwordx4 v[44:47], v{vL16}, s[40:43], s61 offen sc1")
            A("s_mov_b64 exec, -1")
            A("L_T_nost:")
    while vi[0] < 16: rdv()
    pv(True)
    g.stamp(9); g.fine(10)
    if o.stamps == 1: A("s_waitcnt vmcnt(0)"); g.stamp(4)
    A("s_cmp_lg_u32 s31, 0"); A("s_cbranch_scc1 L_fin")
    A("s_cmp_ge_u32 s6, 20"); A("s_cbranch_scc1 L_fin")
    A("s_mul_i32 s3, s5, 10"); A("s_lshr_b32 s52, s6, 1"); A("s_add_u32 s3, s3, s52")
    A("v_lshrrev_b32 v46, 3, v1"); A(f"v_mul_u32_u24 v25, 5120, v46"); A("v_and_b32 v46, 7, v1"); A(f"v_lshl_add_u32 v25, v46, 4, v25")
    A(f"s_mul_i32 s52, s4, {64*5120}"); A("s_lshl_b32 s53, s3, 7"); A("s_add_u32 s52, s52, s53"); A(f"s_add_u32 s52, s52, {OC}")
    for n in range(1, 8): A(f"s_add_u32 s{52+n}, s{51+n}, {8*5120}")
    A("s_mul_i32 s61, s4, 1280"); A("s_lshl_b32 s3, s3, 5"); A("s_add_u32 s61, s61, s3")
    g.srd0(44, 20, 2560)
    g.srd0(48, 22, 256)
    A("s_lshl_b32 s67, s4, 5"); A("v_mov_b32 v26, 0"); A("v_lshlrev_b32 v27, 2, v1")
    A("s_mov_b32 s33, 0x40000")
    A("L_R_non:")
    A("buffer_load_dwordx4 v[28:31], v26, s[48:51], s67 offen offset:192 sc1"); A("buffer_load_dwordx4 v[32:35], v26, s[48:51], s67 offen offset:208 sc1")
    A("s_waitcnt vmcnt(0)")
    A("v_min_u32 v46, v28, v30"); A("v_min3_u32 v46, v46, v32, v34"); A("v_cmp_eq_u32 vcc, 0, v46")
    A("s_cbranch_vccz L_R_non_ok")
    g.retry("L_R_non", 8)
    A("L_R_non_ok:")
    g.sleep(o.sleepc0)
    GC = 52
    A("s_mov_b32 s33, 0x40000")
    A("L_T_gc:")
    for n in range(8): A(f"buffer_load_dwordx4 v[{GC+4*n}:{GC+4*n+3}], v25, s[40:43], s{52+n} offen sc1")
    for n in range(8):
        A(f"s_waitcnt vmcnt({7-n})")
        d = "vcc" if n == 0 else "s[62:63]"
        A(f"v_cmp_ne_u64 {d}, v[{GC+4*n+2}:{GC+4*n+3}], v[{28+2*(n>>1)}:{29+2*(n>>1)}]")
        if n & 1:
            for r in range(2): A(f"v_add_f32 v{GC+4*n+r}, v{GC+4*n+r}, v{GC+4*n-4+r}")
        if n: A("s_or_b64 vcc, vcc, s[62:63]")
    A("s_cbranch_vccz L_T_gc_ok")
    g.retry("L_T_gc", o.sleepc)
    A("L_T_gc_ok:")
    g.stamp(10)
    for r in range(2): A(f"v_add_f32 v{GC+r}, v{GC+4+r}, v{GC+12+r}")
    for r in range(2): A(f"v_add_f32 v{GC+4+r}, v{GC+20+r}, v{GC+28+r}")
    for r in range(2): A(f"v_add_f32 v{GC+r}, v{GC+r}, v{GC+4+r}")
    for r in range(2): A(f"v_add_f32_dpp v{GC+r}, v{GC+r}, v{GC+r} row_ror:8 row_mask:0xf bank_mask:0xf")
    for sw in ("16", "32"):
        for r in range(2): A(f"v_mov_b32 v{GC+4+r}, v{GC+r}")
        for r in range(2): A(f"v_permlane{sw}_swap_b32 v{GC+r}, v{GC+4+r}")
        for r in range(2): A(f"v_add_f32 v{GC+r}, v{GC+r}, v{GC+4+r}")
    A(f"v_cvt_pk_bf16_f32 v{GC}, v{GC}, v{GC+1}")
    A("s_mov_b64 exec, 0xff")
    A(f"buffer_store_dword v{GC}, v27, s[44:47], s61 offen")
    if o.stamps: A("s_waitcnt vmcnt(0)"); g.stamp(11)
    A("L_fin:")
    g.fin()
    A("L_PU:")
    g.vm = list(vm_save)
    A("s_lshl_b32 s3, s65, 18"); A("s_add_u32 s3, s3, s38")
    g.srd(48, 14, "s3", 4194304)
    A(f"v_lshlrev_b32 v{vUK}, 17, v4"); A(f"v_lshl_add_u32 v{vUK}, v44, 4, v{vUK}")
    A("s_mov_b32 s66, 0")
    wsrd = [56]
    def wo_addr(cb):
        A("s_lshl_b32 s3, s28, 1"); A("s_add_u32 s3, s3, s29"); A("s_mul_i32 s63, s3, 81920")
        A(f"s_lshl_b32 s3, {cb}, 8"); A("s_add_u32 s63, s63, s3")
        g.srd(wsrd[0], 18, "s63", 5242880)
        A(f"v_lshrrev_b32 v47, 4, v1"); A(f"v_mul_u32_u24 v{vWO}, 20480, v47"); A("v_and_b32 v46, 15, v1"); A(f"v_lshl_add_u32 v{vWO}, v46, 4, v{vWO}")
        A("s_mov_b32 s64, 0")
    wo_addr("s31")
    useq = [("uk", n) for n in range(16)] + [("wo", i) for i in range(16)]
    up = [0]
    def wo_reg(i): return 96 + 4 * i if i < 11 else 204 + 4 * (i - 11)
    def ld_wo(n, d):
        A(f"buffer_load_dwordx4 v[{d}:{d+3}], v{vWO}, s[{wsrd[0]}:{wsrd[0]+3}], s64 offen offset:{1280*(n%3)} {o.ldo}")
        if n % 3 == 2: A("s_add_u32 s64, s64, 3840")
    def nxt_u():
        if up[0] >= len(useq): return
        k, n = useq[up[0]]; up[0] += 1
        if k == "uk":
            A(f"buffer_load_dwordx4 v[{UK+4*n}:{UK+4*n+3}], v{vUK}, s[48:51], s66 offen {o.lduk}")
            if n < 15: A("s_add_u32 s66, s66, 8192")
        else:
            ld_wo(n, wo_reg(n))
        g.vmi((k, n))
    q_part(nxt_u, o.tu, NU)
    A("v_mov_b32 v26, v42"); A("v_mov_b32 v27, v43")
    A(f"v_lshlrev_b32 v46, 5, v44"); A(f"v_add_u32 v46, {L_QS}, v46")
    A("v_and_b32 v2, 16, v1"); A("v_lshlrev_b32 v2, 7, v2"); A("v_lshl_add_u32 v2, v4, 6, v2"); A("v_and_b32 v3, 12, v1"); A("v_lshl_add_u32 v2, v3, 2, v2")
    A("s_and_b32 s62, s26, 62"); A("s_lshl_b32 s62, s62, 4"); A("s_add_u32 s62, s62, s65"); A("s_lshl_b32 s62, s62, 7")
    while up[0] < 16 - o.uearly:
        g.vmlimit(o.tu - 1); nxt_u()
    A("s_barrier")
    while up[0] < 16 + o.npre:
        g.vmlimit(o.tu - 1); nxt_u()
    A("s_barrier")
    QP = 56; PP = 60
    for w in range(4):
        A(f"ds_read_b128 v[{60+8*w}:{63+8*w}], v46 offset:{1024*w}"); A(f"ds_read_b128 v[{64+8*w}:{67+8*w}], v46 offset:{1024*w+16}")
    A("s_waitcnt lgkmcnt(0)")
    for k in range(8): A(f"v_add_f32 v{60+k}, v{60+k}, v{68+k}")
    for k in range(8): A(f"v_add_f32 v{76+k}, v{76+k}, v{84+k}")
    for k in range(8): A(f"v_add_f32 v{48+k}, v{60+k}, v{76+k}")
    for k in range(4): A(f"v_cvt_pk_bf16_f32 v{QP+k}, v{48+2*k}, v{49+2*k}")
    for n0 in (0, 8):
        g.vmwait(("uk", n0 + 7))
        for k in range(4):
            for n in range(n0, n0 + 8):
                if k == 0: A(f"v_dot2_f32_bf16 v{PP+n}, v{UK+4*n}, v{QP}, 0")
                else: A(f"v_dot2c_f32_bf16 v{PP+n}, v{UK+4*n+k}, v{QP+k}")
        if n0 == 0:
            for n in range(8): A(f"v_add_f32_dpp v{PP+n}, v{PP+n}, v{PP+n} row_ror:8 row_mask:0xf bank_mask:0x3")
    for n in range(8): A(f"v_add_f32_dpp v{PP+n}, v{PP+n+8}, v{PP+n+8} row_ror:8 row_mask:0xf bank_mask:0xc")
    for n in range(4): A(f"v_add_f32_dpp v{PP+n}, v{PP+n}, v{PP+n} row_half_mirror row_mask:0xf bank_mask:0x5")
    for n in range(4): A(f"v_add_f32_dpp v{PP+n}, v{PP+n+4}, v{PP+n+4} row_half_mirror row_mask:0xf bank_mask:0xa")
    for n in range(4): A(f"v_add_f32_dpp v{PP+n}, v{PP+n}, v{PP+n} quad_perm:[2,3,0,1] row_mask:0xf bank_mask:0xf")
    for n in range(4): A(f"v_add_f32_dpp v{PP+n}, v{PP+n}, v{PP+n} quad_perm:[1,0,3,2] row_mask:0xf bank_mask:0xf")
    A(f"v_cvt_pk_bf16_f32 v24, v{PP}, v{PP+1}"); A(f"v_cvt_pk_bf16_f32 v25, v{PP+2}, v{PP+3}")
    A("s_mov_b32 exec_lo, 0x11111111"); A("s_mov_b32 exec_hi, 0x11111111")
    A(f"buffer_store_dwordx4 v[24:27], v2, s[40:43], s62 offen sc1"); g.vmi("qa")
    A("s_mov_b64 exec, -1")
    g.stamp(4)
    def p7_addr(cb, wv):
        A(f"v_lshlrev_b32 v44, 2, v1"); A(f"v_add_u32 v44, {L_CX}, v44")
        A(f"s_lshl_b32 s3, {wv}, 7"); A(f"s_add_u32 s3, s3, {L_OUTP}"); A("v_lshl_add_u32 v46, v1, 1, s3")
        A("v_lshrrev_b32 v47, 4, v1"); A("v_lshl_add_u32 v47, v47, 5, s3")
        A("v_and_b32 v45, 15, v1"); A("v_lshlrev_b32 v45, 6, v45"); A("v_and_b32 v48, 16, v1"); A("v_lshl_add_u32 v45, v48, 1, v45"); A("v_lshrrev_b32 v48, 5, v1"); A("v_lshl_add_u32 v45, v48, 4, v45")
        A("s_lshl_b32 s62, s26, 1"); A("s_add_u32 s62, s62, s29"); A("s_mul_i32 s62, s62, 5"); A(f"s_add_u32 s62, s62, {cb}"); A("s_lshl_b32 s62, s62, 10"); A(f"s_add_u32 s62, s62, {OC}")
    p7_addr("s31", "s31")
    if o.stamps == 1: A("s_waitcnt vmcnt(0)"); g.stamp(6)
    g.sleep(o.du)
    while up[0] < len(useq):
        if o.ubar and up[0] == len(useq) - o.ubar + 1: A("s_barrier")
        g.vmlimit((o.to if up[0] < 16 + o.nto else o.to2) - 1); nxt_u()
    if o.ubar == 1: A("s_barrier")
    g.stamp(5)
    A("s_barrier")
    g.stamp(7); g.fine(0)
    def p7(reg, fine):
        for w in range(4): A(f"ds_read_b32 v{80+w}, v44 offset:{256*w}")
        A("s_waitcnt lgkmcnt(0)")
        A("v_add_f32 v80, v80, v81"); A("v_add_f32 v82, v82, v83"); A("v_add_f32 v80, v80, v82")
        A("v_cvt_pk_bf16_f32 v80, v80, v80")
        A("ds_write_b16 v46, v80")
        A("ds_read_b128 v[56:59], v47"); A("ds_read_b128 v[60:63], v47 offset:16")
        A("s_waitcnt lgkmcnt(0)")
        if fine: g.fine(1)
        g.frag(64, 56, 0, SEL)
        for n in range(16):
            if n < 15: g.frag(64 + 4 * ((n + 1) & 1), 56 + ((n + 1) >> 1), (n + 1) & 1, SEL)
            g.vmwait(("wo", n))
            g.mfma(72, 64 + 4 * (n & 1), reg(n), n == 0)
        if fine: g.stamp(8); g.fine(2); g.fine(3)
        A("v_mov_b32 v24, v72"); A("v_mov_b32 v25, v73")
        for r in range(2): A(f"v_mov_b32_dpp v{24+r}, v{74+r} quad_perm:[0,1,2,3] row_mask:0xc bank_mask:0xf")
        A(f"buffer_store_dwordx4 v[24:27], v45, s[40:43], s62 offen sc1")
    p7(wo_reg, True)
    g.stamp(9); g.fine(4)
    if o.stamps: A("s_waitcnt vmcnt(0)"); g.stamp(10); g.fine(5)
    g.fin()
    g.vm = []
    A("L_S:")
    A("s_sub_u32 s31, s31, 4")
    SEN = 16; vA = 25; vB = 26
    for r in range(4): A(f"v_mov_b32 v{SEN+r}, -1")
    A("v_mov_b32 v44, 0"); A(f"v_mov_b32 v39, {L_NON}")
    A("s_lshl_b32 s67, s4, 5")
    A("s_waitcnt lgkmcnt(0)")
    g.stamp(1)
    g.srd0(40, 24, WS_END)
    g.srd0(48, 22, 256)
    A("s_cmp_lg_u32 s31, 0"); A("s_cbranch_scc1 L_S_w123")
    A("s_and_b32 s52, s2, 7"); A("s_lshl_b32 s52, s52, 3")
    A("s_cmp_lg_u32 s6, 0"); A("s_cbranch_scc1 L_S_nolead")
    A("s_memrealtime s[54:55]"); A("v_lshlrev_b32 v45, 6, v1"); A("s_waitcnt lgkmcnt(0)"); A("s_or_b32 s54, s54, 1")
    A("v_mov_b32 v46, s54"); A("v_mov_b32 v47, s55")
    A(f"s_mov_b64 exec, {15 & ~((1 << o.r0) - 1)}")
    A("buffer_store_dwordx2 v[46:47], v45, s[48:51], s52 offen sc1")
    A("s_mov_b64 exec, -1")
    A("s_branch L_S_np_ok")
    A("L_S_nolead:")
    g.sleep(o.dn)
    g.nonce("S_np", "s52")
    A("v_mov_b32 v46, s54"); A("v_mov_b32 v47, s55")
    A("ds_write_b64 v39, v[46:47]"); A("ds_write_b32 v39, v44 offset:8")
    A("s_waitcnt lgkmcnt(0)")
    g.stamp(2)
    A("L_S_w123:")
    if o.pf:
        A("s_cmp_lg_u32 s31, 2"); A("s_cbranch_scc1 L_S_npf")
        A("s_getpc_b64 s[34:35]")
        A("L_pc:")
        A(f"s_sub_u32 s34, s34, L_pc-{NAME}_kernel"); A("s_subb_u32 s35, s35, 0")
        A(f"s_and_b32 s3, s6, {o.pf-1}"); A("s_lshl_b32 s3, s3, 10"); A(f"v_add_u32 v46, s3, v{vL16}")
        A(f"global_load_dwordx4 v[200:203], v46, s[34:35]")
        A("L_S_npf:")
    A("s_cmp_eq_u32 s30, 0"); A("s_cbranch_scc1 L_SU")
    vB = 26
    st_ob_addr(0)
    A("v_lshrrev_b32 v38, 4, v1"); A("v_lshlrev_b32 v38, 15, v38"); A("v_and_b32 v37, 15, v1"); A("v_lshl_add_u32 v38, v37, 4, v38")
    A("s_barrier")
    g.stamp(3)
    def inval():
        for n in range(4):
            A(f"buffer_store_dwordx4 v[{SEN}:{SEN+3}], v38, s[40:43], s62 offen sc1")
            if n < 3: A("s_add_u32 s62, s62, 131072")
    A("s_mov_b32 s62, s60")
    if not o.latei:
        g.sleep(o.dinv); inval()
    st_ob_addr(1); pv_addr()
    A("s_waitcnt vmcnt(0)")
    A("s_lshl_b32 s52, s29, 1"); A("s_lshr_b32 s3, s31, 1"); A("s_add_u32 s52, s52, s3"); A("s_lshl_b32 s52, s52, 3"); A("s_add_u32 s52, s52, s67")
    g.nonce("T_np", "s52", 3)
    g.stamp(4)
    A("s_lshl_b32 s52, s4, 1"); A("s_add_u32 s52, s52, s29"); A("s_lshl_b32 s52, s52, 2"); A("s_add_u32 s52, s52, s31"); A("s_lshl_b32 s52, s52, 13"); A("s_add_u32 s53, s52, 4096")
    A(f"s_mul_i32 s3, s31, {4*PITCH}"); A(f"s_add_u32 s3, s3, {L_QI}"); A(f"v_lshl_add_u32 v{vA}, v1, 3, s3")
    if o.k3:
        A("s_lshr_b32 s3, s6, 4"); A("s_lshl_b32 s3, s3, 10"); A("s_lshl_b32 s36, s5, 11"); A("s_add_u32 s3, s3, s36"); A("s_add_u32 s3, s3, 384")
        A("s_lshl_b32 s36, s31, 20"); A("s_add_u32 s3, s3, s36")
        g.srd(48, 16, "s3", 4194304)
        A("s_bfe_u32 s3, s6, 0x30001"); A("s_sub_u32 s69, 15, s3"); A("s_lshl_b32 s69, s69, 13")
        A("v_lshrrev_b32 v10, 3, v1"); A("v_lshlrev_b32 v10, 17, v10"); A("v_and_b32 v8, 7, v1"); A("v_lshl_add_u32 v10, v8, 4, v10")
    if o.hsv:
        wsrd[0] = 56; wo_addr("s31")
        A("s_lshl_b32 s3, s31, 20"); A("s_lshl_b32 s36, s28, 8"); A("s_add_u32 s3, s3, s36"); A("s_lshl_b32 s36, s29, 7"); A("s_add_u32 s3, s3, s36")
        g.srd(44, 16, "s3", 4194304)
        A("v_lshrrev_b32 v9, 3, v1"); A("v_lshlrev_b32 v9, 17, v9"); A("v_and_b32 v8, 7, v1"); A("v_lshl_add_u32 v9, v8, 4, v9")
    hs = [0]
    def helps(n):
        for _ in range(n):
            i = hs[0]
            if i >= o.hsv: return
            hs[0] += 1
            if i % 2 == 0: A(f"s_movk_i32 s63, {1280*(15 - i // 2)}"); A(f"buffer_load_dwordx4 v[124:127], v6, s[56:59], s63 offen")
            else: A(f"s_mov_b32 s63, {8192*(15 - i // 2)}"); A(f"buffer_load_dwordx4 v[124:127], v9, s[44:47], s63 offen")
    def k3():
        for n in range(o.k3):
            A("buffer_load_dwordx4 v[124:127], v10, s[48:51], s69 offen")
            if n == 0 and o.k3 > 1: A("s_sub_u32 s69, s69, 65536")
    if o.k3 and o.k3e: k3()
    A("s_barrier")
    GA = 48
    A("v_and_b32 v37, 15, v1"); A("v_lshlrev_b32 v37, 7, v37"); A("v_and_b32 v36, 16, v1"); A("v_lshl_add_u32 v37, v36, 8, v37")
    g.sleep(o.da)
    A("s_mov_b32 s33, 0x40000")
    if o.hfirst: A("s_branch L_T_ha0")
    A("L_T_ga:")
    for n in range(8): A(f"buffer_load_dwordx4 v[{GA+4*n}:{GA+4*n+3}], v{vL16}, s[40:43], s{52+(n>>2)} offen offset:{1024*(n&3)} sc1")
    for n in range(8):
        A(f"s_waitcnt vmcnt({7-n})")
        A(f"ds_write_b64 v{vA}, v[{GA+4*n}:{GA+4*n+1}] offset:{(n>>1)*PITCH + 512*(n&1)}")
        d = "vcc" if n == 0 else "s[70:71]"
        A(f"v_cmp_ne_u64 {d}, s[54:55], v[{GA+4*n+2}:{GA+4*n+3}]")
        if n: A("s_or_b64 vcc, vcc, s[70:71]")
    A("s_cbranch_vccz L_T_ga_ok")
    g.stamp(7)
    A("L_T_ha:")
    A(f"s_sleep {o.sleepa}")
    A("L_T_ha0:")
    A("buffer_load_dwordx2 v[48:49], v37, s[40:43], s52 offen offset:8 sc1")
    A("s_waitcnt vmcnt(0)")
    A("s_sub_u32 s33, s33, 1"); A("s_cbranch_scc1 L_T_ga_ok")
    A("v_cmp_ne_u64 vcc, s[54:55], v[48:49]"); A("s_cbranch_vccnz L_T_ha")
    g.stamp(8)
    A("s_branch L_T_ga")
    A("L_T_ga_ok:")
    g.stamp(5)
    if o.latei: inval()
    A("s_waitcnt lgkmcnt(0)")
    g.stamp(6)
    A("s_barrier")
    if o.k3 and not o.k3e: k3()
    helps(o.h2)
    lg.clear(); vi[0] = 0
    g.fine(0)
    for _ in range(o.nsv): rdv()
    A("s_barrier")
    g.fine(5)
    while vi[0] < 16: rdv()
    g.fine(1)
    if o.latei: A(f"s_waitcnt vmcnt({(o.k3 if not o.k3e else 0) + min(o.h2, o.hsv)})")
    A("s_barrier")
    g.fine(7)
    pv(False)
    g.fine(10)
    helps(99)
    g.fin()
    A("L_SU:")
    UV = 128; SEL = 8
    g.selectors(SEL, 46)
    A("s_lshr_b32 s52, s26, 1"); A("s_lshl_b32 s52, s52, 2"); A("s_add_u32 s52, s52, s31"); A("s_lshl_b32 s52, s52, 12"); A(f"s_add_u32 s52, s52, {QQ}")
    A("s_lshl_b32 s3, s31, 10"); A(f"s_add_u32 s3, s3, {L_QS}"); A("v_lshl_add_u32 v38, v1, 3, s3")
    A("s_barrier")
    g.stamp(3)
    A("ds_read_b64 v[42:43], v39")
    A("s_lshl_b32 s3, s31, 20"); A("s_lshl_b32 s36, s28, 8"); A("s_add_u32 s3, s3, s36"); A("s_lshl_b32 s36, s29, 7"); A("s_add_u32 s3, s3, s36")
    g.srd(44, 16, "s3", 4194304)
    A("v_lshrrev_b32 v5, 3, v1"); A("v_and_b32 v6, 7, v1"); A("v_lshrrev_b32 v4, 4, v1"); A("v_and_b32 v3, 15, v1")
    A("v_lshlrev_b32 v24, 17, v5"); A("v_lshl_add_u32 v24, v6, 4, v24")
    A(f"v_lshlrev_b32 v{vA}, 13, v4"); A(f"v_lshl_add_u32 v{vA}, v3, 4, v{vA}")
    A("v_and_b32 v46, 31, v1"); A(f"v_lshlrev_b32 v{vB}, 8, v46"); A(f"v_lshlrev_b32 v19, 3, v46"); A(f"v_add_u32 v19, {L_EW + 256}, v19")
    A("v_and_b32 v36, 24, v1")
    A("s_lshr_b32 s59, s26, 4"); A("s_lshl_b32 s59, s59, 9"); A("s_and_b32 s3, s28, 15"); A("s_add_u32 s59, s59, s3")
    A("s_lshl_b32 s59, s59, 4"); A(f"s_add_u32 s59, s59, {ST}")
    A("s_lshl_b32 s3, s31, 6"); A(f"s_add_u32 s3, s3, {L_EW}"); A("v_lshl_add_u32 v37, v46, 1, s3"); A("v_lshl_add_u32 v23, v4, 4, s3")
    A("s_lshl_b32 s58, s26, 15"); A("s_lshl_b32 s3, s31, 8"); A("s_add_u32 s58, s58, s3"); A(f"s_add_u32 s58, s58, {OB}"); A("s_add_u32 s60, s58, 4096")
    A("v_and_b32 v46, 16, v1"); A("v_lshl_add_u32 v21, v6, 5, v46"); A(f"s_add_u32 s54, s3, {L_CX}"); A("v_add_u32 v21, s54, v21")
    A(f"s_add_u32 s3, s3, {L_CC}"); A("v_lshlrev_b32 v20, 4, v3"); A("v_lshl_add_u32 v20, v4, 3, v20"); A("v_add_u32 v20, s3, v20"); A("v_lshl_add_u32 v22, v5, 5, s3")
    A("s_barrier")
    g.sleep(o.dq)
    A("s_mov_b32 s33, 0x40000"); A("s_mov_b32 s39, 0")
    def gq():
        for n in range(4): A(f"buffer_load_dwordx4 v[{48+4*n}:{51+4*n}], v{vL16}, s[40:43], s52 offen offset:{1024*n} sc1")
    def ld_uv(n):
        A(f"buffer_load_dwordx4 v[{UV+4*n}:{UV+4*n+3}], v24, s[44:47], s39 offen {o.lduv}"); g.vmi(("uv", n))
        A("s_add_u32 s39, s39, 8192")
    gq()
    for n in range(o.vpre): ld_uv(n)
    A(f"s_waitcnt vmcnt({o.vpre}) lgkmcnt(0)")
    A("s_branch L_U_gq_t")
    A("L_U_gq:")
    gq()
    A("s_waitcnt vmcnt(0)")
    A("L_U_gq_t:")
    for n in range(4):
        d = "vcc" if n == 0 else "s[54:55]"
        A(f"v_cmp_ne_u64 {d}, v[{50+4*n}:{51+4*n}], v[42:43]")
        if n: A("s_or_b64 vcc, vcc, s[54:55]")
    A("s_cbranch_vccz L_U_gq_ok")
    g.retry("L_U_gq", o.sleepa)
    A("L_U_gq_ok:")
    for k in range(2):
        for r in range(2): A(f"v_add_f32 v{48+4*k+r}, v{48+4*k+r}, v{56+4*k+r}")
    A("ds_write_b64 v38, v[48:49]"); A("ds_write_b64 v38, v[52:53] offset:512")
    A("s_waitcnt lgkmcnt(0)")
    g.stamp(10)
    A("s_barrier")
    if o.prew:
        A("s_cmp_lg_u32 s31, 0"); A("s_cbranch_scc1 L_U_noprew")
        A("s_lshl_b32 s62, s26, 1"); A("s_add_u32 s62, s62, s29"); A("s_mul_i32 s62, s62, 5120"); A(f"s_add_u32 s62, s62, {OC}")
        for n in range(4): A(f"buffer_store_dwordx4 v[{SEN}:{SEN+3}], v{vL16}, s[40:43], s62 offen offset:{1024*n} sc1")
        A("s_add_u32 s62, s62, 4096")
        A(f"buffer_store_dwordx4 v[{SEN}:{SEN+3}], v{vL16}, s[40:43], s62 offen sc1")
        A("L_U_noprew:")
    g.sleep(o.dv)
    A("s_cmp_lg_u32 s31, 3"); A("s_cbranch_scc1 L_U_n5")
    vm5 = list(g.vm)
    wsrd[0] = 68
    wo_addr("4")
    for n in range(o.vpre, 16):
        g.vmlimit(o.tv5 - 1); ld_uv(n)
    for n in range(16):
        g.vmlimit(o.tv5 - 1); ld_wo(n, 192 + 4 * n); g.vmi(("wo", n))
    A("s_branch L_U_n5d")
    A("L_U_n5:")
    g.vm = vm5
    for n in range(o.vpre, 16):
        g.vmlimit(o.tv - 1); ld_uv(n)
    A("L_U_n5d:")
    g.stamp(4)
    if o.ubar: A("s_barrier")
    g.sleep(o.db)
    GB = 48; GS = 80; FC = 92
    g.vm = []
    A("s_cmp_lg_u32 s31, 0"); A("s_cbranch_scc1 L_U_wait")
    A("s_mov_b32 s33, 0x40000")
    A("L_U_gn:")
    A("buffer_load_dwordx2 v[40:41], v36, s[48:51], s67 offen offset:192 sc1")
    A("s_waitcnt vmcnt(0)")
    A("v_cmp_eq_u32 vcc, 0, v40"); A("s_cbranch_vccz L_U_gn_ok")
    g.retry("L_U_gn", 8)
    A("L_U_gn_ok:")
    A("s_mov_b32 s33, 0x40000")
    A(f"buffer_load_dwordx4 v[84:87], v{vB}, s[40:43], s59 offen sc1")
    A("L_U_gs:")
    if o.sleepb: A(f"s_sleep {o.sleepb}")
    A(f"buffer_load_dwordx4 v[80:83], v{vB}, s[40:43], s59 offen sc1")
    A("s_waitcnt vmcnt(1)")
    A("v_cmp_ne_u64 vcc, v[86:87], v[40:41]"); A("s_cbranch_vccz L_U_gs_b")
    if o.sleepb: A(f"s_sleep {o.sleepb}")
    A(f"buffer_load_dwordx4 v[84:87], v{vB}, s[40:43], s59 offen sc1")
    A("s_waitcnt vmcnt(1)")
    A("v_cmp_ne_u64 vcc, v[82:83], v[40:41]"); A("s_cbranch_vccz L_U_gs_a")
    g.retry("L_U_gs")
    A("L_U_gs_a:")
    A("ds_write_b64 v19, v[80:81]"); A("s_branch L_U_gs_c")
    A("L_U_gs_b:")
    A("ds_write_b64 v19, v[84:85]")
    A("L_U_gs_c:")
    A("v_mov_b32 v45, 1"); A("ds_write_b32 v39, v45 offset:8")
    A("s_branch L_U_gs_ok")
    A("L_U_wait:")
    A("s_mov_b32 s33, 0x400000")
    A("L_U_wl:")
    A("ds_read_b32 v45, v39 offset:8"); A("s_waitcnt lgkmcnt(0)")
    A("v_cmp_ne_u32 vcc, 0, v45"); A("s_cbranch_vccnz L_U_gs_ok")
    g.retry("L_U_wl", 1)
    A("L_U_gs_ok:")
    g.stamp(9)
    def gB():
        for n in range(8): A(f"buffer_load_dwordx4 v[{GB+4*n}:{GB+4*n+3}], v{vA}, s[40:43], s{58 if n < 4 else 60} offen offset:{1024*(n&3)} sc1")
    gB()
    g.fine(0)
    def wred(op, r, t):
        for c in ("quad_perm:[1,0,3,2]", "quad_perm:[2,3,0,1]", "row_half_mirror", "row_ror:8"):
            A(f"{op}_dpp v{r}, v{r}, v{r} {c} row_mask:0xf bank_mask:0xf")
        A(f"v_mov_b32 v{t}, v{r}"); A(f"v_permlane16_swap_b32 v{r}, v{t}"); A(f"{op} v{r}, v{r}, v{t}")
    A("ds_read_b64 v[88:89], v19")
    A("s_waitcnt lgkmcnt(0)")
    A("v_mov_b32 v44, v88")
    wred("v_max_f32", 44, 45)
    A("v_sub_f32 v88, v88, v44"); A("v_exp_f32 v88, v88")
    A("v_cvt_pk_bf16_f32 v45, v88, v88")
    A("ds_write_b16 v37, v45")
    A("ds_read_b128 v[28:31], v23")
    A("v_mul_f32 v44, v88, v89")
    wred("v_add_f32", 44, 45)
    A("v_rcp_f32 v44, v44")
    A("s_waitcnt lgkmcnt(0)")
    for n in range(8): g.frag(FC + 4 * n, 28 + (n >> 1), n & 1, SEL)
    A("s_mov_b32 s33, 0x40000")
    A("L_U_gb:")
    for n in range(8):
        A(f"s_waitcnt vmcnt({7-n})")
        g.mfma(32, FC + 4 * n, GB + 4 * n, n == 0)
        if n == 0: A(f"v_max3_u32 v43, v{GB}, v{GB+1}, v{GB+2}"); A(f"v_max_u32 v43, v43, v{GB+3}")
        else: A(f"v_max3_u32 v43, v43, v{GB+4*n}, v{GB+4*n+1}"); A(f"v_max3_u32 v43, v43, v{GB+4*n+2}, v{GB+4*n+3}")
    A("v_cmp_eq_u32 vcc, -1, v43")
    A("s_cbranch_vccz L_U_gb_ok")
    gB()
    g.retry("L_U_gb")
    A("L_U_gb_ok:")
    g.stamp(6)
    for k in range(2): A(f"v_cvt_pk_bf16_f32 v{32+k}, v{32+2*k}, v{33+2*k}")
    A("s_mov_b32 exec_hi, 0")
    A("ds_write_b64 v20, v[32:33]")
    A("s_mov_b32 exec_hi, -1")
    for k in range(2): A(f"ds_read_b128 v[{48+4*k}:{51+4*k}], v22 offset:{16*k}")
    A("s_waitcnt lgkmcnt(0)")
    g.stamp(7); g.fine(1)
    g.frag(72, 48, 0, SEL)
    for n in range(16):
        if n < 15: g.frag(72 + 4 * ((n + 1) & 1), 48 + ((n + 1) >> 1), (n + 1) & 1, SEL)
        g.mfma(32, 72 + 4 * (n & 1), UV + 4 * n, n == 0)
    g.fine(2)
    g.fold(32, 88)
    for r in range(4): A(f"v_mul_f32 v{32+r}, v{32+r}, v44")
    A("s_mov_b64 exec, 0x00ff00ff")
    A("ds_write_b128 v21, v[32:35]")
    A("s_mov_b64 exec, -1")
    A("s_waitcnt lgkmcnt(0)")
    g.stamp(8); g.fine(3)
    A("s_cmp_lg_u32 s31, 3"); A("s_cbranch_scc1 L_U_last")
    p7_addr("4", "4")
    A("ds_read_b64 v[26:27], v39")
    A("s_barrier")
    g.vm = []
    p7(lambda n: 192 + 4 * n, False)
    g.fin()
    A("L_U_last:")
    A("s_barrier")
    g.fine(4)
    if o.stamps:
        A("L_stamps:")
        A("s_mov_b64 exec, 1")
        A("s_waitcnt lgkmcnt(0)")
    if o.stamps == 3:
        A("v_readfirstlane_b32 s3, v0"); A("s_cmp_lg_u32 s3, 0"); A("s_cbranch_scc1 L_end")
        g.srd0(40, 22, 64); A("v_mov_b32 v2, 0")
        A(f"s_cmp_eq_u32 s2, {o.wt}"); A("s_cbranch_scc1 L_dT")
        A(f"s_cmp_lg_u32 s2, {o.wt + 8}"); A("s_cbranch_scc1 L_end")
        for k, i in enumerate((0, 1, 3, 4, 5, 7, 9, 10)):
            A(f"v_mov_b32 v4, s{72+2*i}"); A(f"buffer_store_dword v4, v2, s[40:43], 0 offen offset:{32+4*k}"); A("s_nop 1")
        A("s_endpgm")
        A("L_dT:")
        for k, i in enumerate((0, 3, 5, 6, 7, 9, 10, 11)):
            A(f"v_mov_b32 v4, s{72+2*i}"); A(f"buffer_store_dword v4, v2, s[40:43], 0 offen offset:{4*k}"); A("s_nop 1")
    elif o.stamps:
        A("v_lshrrev_b32 v2, 6, v0"); A("s_lshl_b32 s3, s2, 3"); A("v_add_u32 v2, s3, v2"); A(f"v_mul_u32_u24 v2, {NST*8}, v2")
        A("s_add_u32 s40, s24, 0x8000000"); A("s_addc_u32 s41, s25, 0"); A("s_mov_b32 s42, 0x1000000"); A("s_mov_b32 s43, 0x20000")
        for i in range(NST):
            A(f"v_mov_b32 v4, s{72+2*i}"); A(f"v_mov_b32 v5, s{73+2*i}")
            A(f"buffer_store_dwordx2 v[4:5], v2, s[40:43], 0 offen offset:{8*i}")
            A("s_nop 1")
    A("L_end:")
    A("s_endpgm")
    lines, nn = hz.fix([l for l in g.L if l is not None])
    body = "\n".join(("" if l.endswith(":") else "    ") + l for l in lines)
    txt = (HDR + f"; @launch grid=(256,1,1) block=(512,1,1) lds={L_END}\n"
        ".amdgcn_target \"amdgcn-amd-amdhsa--gfx950\"\n.text\n"
        f".globl {NAME}_kernel\n.p2align 8\n.type {NAME}_kernel,@function\n{NAME}_kernel:\n" + body + "\n"
        + (f".org {NAME}_kernel+{o.pf*1024}, 0\n" if o.pf else "") +
        ".section .rodata,\"a\"\n.p2align 6\n"
        f".amdhsa_kernel {NAME}_kernel\n  .amdhsa_next_free_vgpr 256\n  .amdhsa_next_free_sgpr 96\n"
        "  .amdhsa_accum_offset 256\n  .amdhsa_group_segment_fixed_size 0\n  .amdhsa_kernarg_size 120\n"
        "  .amdhsa_user_sgpr_count 2\n  .amdhsa_user_sgpr_kernarg_segment_ptr 1\n  .amdhsa_system_sgpr_workgroup_id_x 1\n"
        ".end_amdhsa_kernel\n")
    return txt, nn

def parse(argv):
    ap = argparse.ArgumentParser()
    ap.add_argument("-o", default="k4.s")
    for k, d in dict(stamps=0, tw=7, tk=7, tk2=8, tu=7, to=4, tv=4, npre=0, qhold=-1, tq=6, nt=10, rot=1, latei=0, hfirst=0, nsv=0, prio=0, tv5=6, tearly=0, r0=0, wt=8, k3=0, k3e=1, h1=0, h1w=0, h2=3, vpre=0, hsv=0, hsd=6, hsd2=6, db=0, ubar=1, nto=12, to2=7, hs=0, hinta=0, da=0, hu=0, uearly=0, dn=14, pf=16, dinv=0, dq=0, du=0, dv=0,
                     sleepa=3, sleepb=1, sleepc0=20, sleepc=2, sleepn=8, sleepf=16, hlp=0, hd=6, prew=1, thr=4, nvs=15, nvm=1).items():
        ap.add_argument("--" + k, type=int, default=d)
    for k in ("ldq", "lduk", "ldkv", "ldkv2", "ldo", "lduv"): ap.add_argument("--" + k, default="")
    ap.add_argument("--stb", default="sc1")
    return ap.parse_args(argv)
if __name__ == "__main__":
    o = parse(sys.argv[1:])
    txt, nn = gen(o)
    open(o.o, "w").write(txt)
    print("written", o.o, "nops inserted", nn)
```
